```python
import torch

def _softmax(x, axis=-1):
    return torch.softmax(x, dim=axis)
def _gelu(x):
    return torch.nn.functional.gelu(x, approximate="tanh")
def _silu(x):
    return torch.nn.functional.silu(x)
def _sigmoid(x):
    return torch.sigmoid(x)
def _layernorm(x, axis=-1, eps=1e-5):
    m = x.mean(dim=axis, keepdim=True)
    v = x.var(dim=axis, keepdim=True, unbiased=False)
    return (x - m) / torch.sqrt(v + eps)
def _scatter_add(tgt, idx, src, axis=0):
    return tgt.clone().index_add_(axis, idx, src)
def _segment_sum(src, seg, n):
    out = torch.zeros((n,) + src.shape[1:], dtype=src.dtype)
    return out.index_add_(0, seg, src)
def _pad(x, pw):
    flat = tuple(v for pair in reversed(pw) for v in pair)
    return torch.nn.functional.pad(x, flat)

kernel_name = 'recurrent_scan__linear_kernel_hedgehog__swiglu_ffn__prompt'

def setup_inputs():

    _w = (lambda a: (lambda t: t.to(torch.bfloat16) if t.is_floating_point() else t)(torch.as_tensor(a)))
    def _A_setup():
        B, S, D, H = 1, 2048, 640, 32
        Dh = D // H
        return {
            "x": _w((lambda *s: torch.randn(*s, dtype=torch.bfloat16) * 0.05)(B, S, D)),
            "wqkv": _w((lambda *s: torch.randn(*s, dtype=torch.bfloat16) * 0.2)(D, 3 * D)),
            "w_phi": _w((lambda *s: torch.randn(*s, dtype=torch.bfloat16) * 0.2)(H, Dh, Dh) * (Dh ** -0.5)),
            "wo": _w((lambda *s: torch.randn(*s, dtype=torch.bfloat16) * 0.05)(D, D)),
        }
    _A_in = _A_setup()

    def _B_setup():
        B, S, D, F = 1, 2048, 640, 1728
        return {
            "x": _w((lambda *s: torch.randn(*s, dtype=torch.bfloat16) * 0.05)(B, S, D)),
            "w_gate": _w((lambda *s: torch.randn(*s, dtype=torch.bfloat16) * 0.05)(D, F)),
            "w_up": _w((lambda *s: torch.randn(*s, dtype=torch.bfloat16) * 0.05)(D, F)),
            "w_down": _w((lambda *s: torch.randn(*s, dtype=torch.bfloat16) * 0.05)(F, D)),
        }
    _B_in = _B_setup()

    return {
        "A_x": _A_in["x"],
        "A_wqkv": _A_in["wqkv"],
        "A_w_phi": _A_in["w_phi"],
        "A_wo": _A_in["wo"],
        "B_x": _B_in["x"],
        "B_w_gate": _B_in["w_gate"],
        "B_w_up": _B_in["w_up"],
        "B_w_down": _B_in["w_down"],
    }

def reference(A_x, A_wqkv, A_w_phi, A_wo, B_x, B_w_gate, B_w_up, B_w_down):
    def _A_ref(x, wqkv, w_phi, wo):
        B, S, D = x.shape
        H = 32; Dh = D // H
        qkv = (lambda x, *d: x.permute(*d))((x @ wqkv).reshape(B, S, 3, H, Dh), 2, 0, 3, 1, 4)
        q, k, v = qkv[0], qkv[1], qkv[2]
        pq = torch.einsum("bhsd,hdf->bhsf", q, w_phi)
        pk = torch.einsum("bhsd,hdf->bhsf", k, w_phi)
        phi_q = torch.concatenate([_softmax(pq, axis=-1), _softmax(-pq, axis=-1)], axis=-1)
        phi_k = torch.concatenate([_softmax(pk, axis=-1), _softmax(-pk, axis=-1)], axis=-1)
        kv = torch.einsum("bhsf,bhsd->bhfd", phi_k, v)
        z  = torch.einsum("bhsf->bhf", phi_k)
        num = torch.einsum("bhqf,bhfd->bhqd", phi_q, kv)
        den = torch.einsum("bhqf,bhf->bhq", phi_q, z)[..., None] + 1e-6
        o = num / den
        return (lambda x, *d: x.permute(*d))(o, 0, 2, 1, 3).reshape(B, S, D) @ wo

    def _B_ref(x, w_gate, w_up, w_down):
        g = _silu(x @ w_gate)
        u = x @ w_up
        return (g * u) @ w_down

    x = A_x
    xn = _layernorm(x, axis=-1)
    s = _A_ref(xn, A_wqkv, A_w_phi, A_wo)
    g = _silu(_B_ref(xn, B_w_gate, B_w_up, B_w_down))
    return x + s * g
```

```python
class Asm:
    def __init__(self):
        self.lines = []
    def __call__(self, s):
        if isinstance(s, (list, tuple)):
            for x in s: self(x)
        else:
            self.lines.append("    " + s)
    def label(self, n):
        self.lines.append(n + ":")
    def raw(self, s):
        self.lines.append(s)
    def text(self):
        return "\n".join(self.lines) + "\n"

def vr(b, n=1):
    return f"v{b}" if n == 1 else f"v[{b}:{b+n-1}]"
def sr(b, n=1):
    return f"s{b}" if n == 1 else f"s[{b}:{b+n-1}]"

def interleave(main, fill, lead=0):
    out = []
    fill = list(fill)
    for _ in range(min(lead, len(fill))):
        out.append(fill.pop(0))
    n = len(main)
    m = len(fill)
    k = 0
    for i, x in enumerate(main):
        out.append(x)
        tgt = (m * (i + 1) + n - 1) // n if n else m
        while k < tgt:
            out.append(fill[k]); k += 1
    while k < m:
        out.append(fill[k]); k += 1
    return out

def kernel_header(name):
    return f".globl {name}\n.p2align 8\n.type {name},@function\n{name}:"

def kernel_desc(name, vgpr, sgpr=102, accum=None):
    accum = accum or ((vgpr + 3) // 4 * 4)
    return f""".p2align 6
.amdhsa_kernel {name}
  .amdhsa_next_free_vgpr {vgpr}
  .amdhsa_next_free_sgpr {sgpr}
  .amdhsa_accum_offset {accum}
  .amdhsa_group_segment_fixed_size 0
  .amdhsa_kernarg_size 88
  .amdhsa_user_sgpr_count 2
  .amdhsa_user_sgpr_kernarg_segment_ptr 1
  .amdhsa_system_sgpr_workgroup_id_x 1
.end_amdhsa_kernel
"""
def srd(a, d, base, nbytes):
    a(f"s_mov_b32 s{d}, s{base}")
    a(f"s_and_b32 s{d+1}, s{base+1}, 0xffff")
    a(f"s_mov_b32 s{d+2}, {nbytes}")
    a(f"s_mov_b32 s{d+3}, 0x20000")
```

```python
import re
TRANS = ("v_exp_f32","v_log_f32","v_rcp_f32","v_rsq_f32","v_sqrt_f32","v_sin_f32","v_cos_f32","v_rcp_iflag_f32")
def regs(tok):
    tok = tok.strip()
    neg = tok.lstrip("-|").rstrip("|")
    m = re.fullmatch(r"abs\((.*)\)", neg)
    if m: neg = m.group(1)
    m = re.fullmatch(r"([vsa])(\d+)", neg)
    if m: return [(m.group(1), int(m.group(2)))]
    m = re.fullmatch(r"([vsa])\[(\d+):(\d+)\]", neg)
    if m: return [(m.group(1), i) for i in range(int(m.group(2)), int(m.group(3))+1)]
    if neg == "vcc": return [("s","vcc")]
    if neg in ("vcc_lo","vcc_hi"): return [("s","vcc")]
    if neg == "exec" or neg in ("exec_lo","exec_hi"): return [("s","exec")]
    if neg == "m0": return [("s","m0")]
    return []
def parse(line):
    s = line.split(";")[0].strip()
    if not s or s.endswith(":") or s.startswith("."): return None
    parts = s.split(None, 1)
    op = parts[0]; rest = parts[1] if len(parts) > 1 else ""
    ops = [x.strip() for x in rest.split(",")] if rest else []
    if ops:
        last = ops[-1].split()
        ops[-1] = last[0] if last else ""
        mods = " ".join(last[1:])
    else: mods = ""
    return op, ops, mods
def classify(op, ops, mods):
    d, s = [], []
    R = lambda i: regs(ops[i]) if i < len(ops) else []
    allr = lambda a: sum((regs(x) for x in ops[a:]), [])
    kind = "other"
    if op.startswith("v_mfma"):
        kind = "mfma"; d = R(0); s = allr(1)
    elif op.startswith("v_cmp"):
        kind = "valu"; d = R(0); s = allr(1)
        if op.startswith("v_cmpx"): d = d + [("s","exec")]
    elif op in ("v_readfirstlane_b32","v_readlane_b32"):
        kind = "valu"; d = R(0); s = allr(1)
    elif op.startswith("v_permlane") and "swap" in op:
        kind = "valu"; d = R(0)+R(1); s = R(0)+R(1)
    elif op.startswith("v_add_co") or op.startswith("v_sub_co") or op.startswith("v_addc_co") or op.startswith("v_subb_co"):
        kind = "valu"; d = R(0)+R(1); s = allr(2)
    elif op.startswith("v_"):
        kind = "valu"; d = R(0); s = allr(1)
        if op.startswith(("v_fmac","v_dot2c","v_writelane","v_mac")): s = s + R(0)
        if op.startswith("v_cndmask") and len(ops) == 3: s = s + [("s","vcc")]
    elif op.startswith("buffer_") or op.startswith("global_"):
        kind = "vmem"
        if "lds" in mods.split() or "_lds_" in op: s = allr(0) + [("s","m0")]
        elif "store" in op or ("atomic" in op and "sc0" not in mods.split()): s = allr(0)
        elif op in ("buffer_wbl2","buffer_inv"): pass
        else: d = R(0); s = allr(1)
    elif op.startswith("ds_"):
        kind = "ds"
        if "write" in op or op.startswith("ds_add") : s = allr(0)
        else: d = R(0); s = allr(1)
    elif op.startswith("s_"):
        kind = "salu"
        if op.startswith(("s_cmp","s_cbranch","s_branch","s_waitcnt","s_barrier","s_nop","s_endpgm","s_sleep","s_setprio")): s = allr(0)
        else: d = R(0); s = allr(1)
        if "saveexec" in op: d = d + [("s","exec")]
    return kind, d, s
def passes(op):
    if "32x32x16" in op or "32x32x8" in op: return 8
    if "16x16x32" in op or "16x16x16" in op: return 4
    raise ValueError(op)
def fix(text, verbose=False):
    out = []
    hist = []
    pos = 0
    ninserted = 0
    for line in text.split("\n"):
        p = parse(line)
        if p is None:
            out.append(line); continue
        op, ops, mods = p
        kind, d, s = classify(op, ops, mods)
        need = 0
        isdpp = "_dpp" in op or "row_" in mods or "quad_perm" in mods
        for (hp, hk, hop, hd, hs, hops) in hist:
            dist = pos - hp - 1
            req = 0
            hds = set(hd)
            if hk == "mfma":
                n = passes(hop)
                if kind == "mfma":
                    C = regs(ops[3]); AB = regs(ops[1]) + regs(ops[2])
                    if hds & set(AB): req = max(req, {4:8, 8:12}[n])
                    if hds & set(C):
                        if not (regs(ops[3]) == hd and passes(op) == n): req = max(req, {4:6, 8:10}[n])
                    elif hds & set(d): req = max(req, {4:8, 8:12}[n])
                elif kind in ("valu","vmem","ds"):
                    if hds & (set(s) | set(d)): req = max(req, {4:8, 8:12}[n])
                    if kind == "valu":
                        hC = set(regs(hops[3]))
                        if hC & set(d): req = max(req, {4:3, 8:7}[n])
            elif hk == "valu":
                hv = {r for r in hds if r[0] in "va"}; hsg = {r for r in hds if r[0] == "s"}
                if kind == "mfma" and hv & set(s): req = max(req, 2)
                if kind == "mfma" and ("s","exec") in hsg: req = max(req, 4)
                if kind == "valu":
                    if hop.startswith(TRANS) and not op.startswith(TRANS) and hv & set(s): req = max(req, 1)
                    if op.startswith("v_permlane") and hv & set(s): req = max(req, 2)
                    if isdpp and hv & set(s): req = max(req, 2)
                    if op in ("v_readfirstlane_b32","v_readlane_b32") and hv & set(s): req = max(req, 1)
                    if hsg & set(s):
                        req = max(req, 4 if op in ("v_readlane_b32","v_writelane_b32") else 2)
                    if ("sdwa" in hop or "op_sel" in " ".join(hops)) and hv & set(s): req = max(req, 1)
                    if isdpp and ("s","exec") in hsg: req = max(req, 5)
                if kind == "vmem" and hsg & set(s): req = max(req, 5)
                if kind == "salu" and hsg & set(s): req = max(req, 1)
            elif hk == "salu":
                if ("s","m0") in hds and kind in ("vmem","ds") and ("s","m0") in s: req = max(req, 1)
            elif hk == "vmem":
                if ("store" in hop or "atomic" in hop) and ("x4" in hop or "x3" in hop):
                    data = set(regs(hops[0])) if hop.startswith("buffer") else set(regs(hops[1]))
                    if data & set(d): req = max(req, 2 if kind == "valu" else 1)
            if req - dist > need: need = req - dist
        while need > 0:
            k = min(need, 16)
            out.append(f"    s_nop {k-1}"); pos += k; need -= k; ninserted += 1
        out.append(line)
        if op == "s_nop": pos += int(ops[0]) + 1
        else:
            hist.append((pos, kind, op, d, s, ops)); pos += 1
        hist = [h for h in hist if pos - h[0] <= 22]
    if verbose: print("hazard: inserted", ninserted, "s_nop")
    return "\n".join(out)
```

```python
from asmlib import *

WS_FLAG = 0x0
WS_RS   = 0x8000
WS_CS   = 0x10000
WS_PQ   = 0x100000
WS_KVP  = 0x400000
WS_O    = 0x600000
WS_H    = 0x1000000
WS_DBG  = 0x2000000
WS_SIZE = 0x10000000

SLOT = 28928; XOFF = 12544; UOFF = 6272
L_WPHI = 135168
L_ZERO = L_WPHI + 6400
L_CS   = L_ZERO + 800
L_CS2  = L_CS + 768
LDS_P1 = L_CS2 + 768
KVROW = 528

S_KARG=0; S_WG=2
S_X=8; S_W0=12; S_W1=16; S_WS=20; S_XALL=24; S_PHI=28
S_WAVE=32; S_RT=33; S_CT=34; S_TYPE=35; S_CTG=36; S_TG=37; S_FG=38
S_M0X=39; S_M0W=40; S_WOFF=41; S_EXW=42
S_CSOFF=44; S_T0=45; S_T1=46; S_T2=47; S_T3=48
S_WSTR=49
S_PTR=52
P = lambda i: S_PTR + 2*i
T_Q, T_KV, T_GU, T_SP = 0, 1, 2, 3

V_LANE=0; V_X0=1; V_X1=2; V_W0=3; V_W1=4; V_C0=5; V_C1=6
V_XR=[7,8]; V_WR=[9,10]
V_T=11
ACC=32; XB=[128,144]; WB=[160,172]; FREE=184
LOG2E = 0x3fb8aa3b

def load_ptrs(a):
    a(f"s_load_dwordx16 s[{S_PTR}:{S_PTR+15}], s[0:1], 0")
    a(f"s_load_dwordx4 s[{S_PTR+16}:{S_PTR+19}], s[0:1], 64")
    a(f"s_load_dwordx2 s[{S_PTR+20}:{S_PTR+21}], s[0:1], 80")

def decode_ids(a):
    a(f"v_lshrrev_b32 v{V_T}, 6, v0"); a(f"v_and_b32 v0, 63, v0")
    a(f"s_and_b32 s{S_T0}, s2, 7"); a(f"s_lshr_b32 s{S_T1}, s2, 3")
    a(f"v_readfirstlane_b32 s{S_WAVE}, v{V_T}")
    a(f"s_and_b32 s{S_RT}, s{S_T0}, 1"); a(f"s_lshl_b32 s{S_RT}, s{S_RT}, 2"); a(f"s_and_b32 s{S_T2}, s{S_T1}, 3"); a(f"s_add_u32 s{S_RT}, s{S_RT}, s{S_T2}")
    a(f"s_lshr_b32 s{S_T0}, s{S_T0}, 1")
    a(f"s_lshr_b32 s{S_T1}, s{S_T1}, 2")
    a(f"s_mul_i32 s{S_CT}, s{S_T0}, 5"); a(f"s_cmp_eq_u32 s{S_T0}, 3"); a(f"s_cselect_b32 s{S_T2}, 4, 3")
    a(f"s_add_u32 s{S_CT}, s{S_CT}, s{S_T1}"); a(f"s_sub_u32 s{S_CT}, s{S_CT}, s{S_T2}")
    a(f"s_add_u32 s{S_CTG}, s{S_CT}, 12"); a(f"s_mov_b32 s{S_TYPE}, {T_GU}")
    a(f"s_lshl_b32 s{S_T2}, s{S_T1}, 2"); a(f"s_add_u32 s{S_T2}, s{S_T2}, s{S_T0}"); a(f"s_cmp_ge_u32 s{S_T2}, 30"); a(f"s_cselect_b32 s{S_TYPE}, {T_SP}, s{S_TYPE}")
    a(f"s_lshl_b32 s{S_T2}, s{S_T0}, 1"); a(f"s_add_u32 s{S_T2}, s{S_T2}, s{S_T1}"); a(f"s_sub_u32 s{S_T2}, s{S_T2}, 1")
    a(f"s_add_u32 s{S_T3}, s{S_T2}, 4")
    a(f"s_cmp_lt_u32 s{S_T1}, 3"); a(f"s_cselect_b32 s{S_CT}, s{S_T2}, s{S_CT}"); a(f"s_cselect_b32 s{S_CTG}, s{S_T3}, s{S_CTG}"); a(f"s_cselect_b32 s{S_TYPE}, {T_KV}, s{S_TYPE}")
    a(f"s_cmp_eq_u32 s{S_T1}, 0"); a(f"s_cselect_b32 s{S_CT}, s{S_T0}, s{S_CT}"); a(f"s_cselect_b32 s{S_CTG}, s{S_T0}, s{S_CTG}"); a(f"s_cselect_b32 s{S_TYPE}, {T_Q}, s{S_TYPE}")
    a(f"s_and_b32 s{S_TG}, s{S_WAVE}, 3"); a(f"s_lshr_b32 s{S_FG}, s{S_WAVE}, 2")

def x_dma_addr(a):
    t=V_T
    a(f"v_lshrrev_b32 v{t}, 2, v0"); a(f"s_lshl_b32 s{S_T0}, s{S_WAVE}, 5"); a(f"v_add_u32 v{t}, s{S_T0}, v{t}"); a(f"v_mul_u32_u24 v{t}, 1280, v{t}")
    a(f"v_lshrrev_b32 v{t+1}, 4, v0"); a(f"v_sub_u32 v{t+1}, 0, v{t+1}"); a(f"v_xor_b32 v{t+1}, v{t+1}, v0"); a(f"v_and_b32 v{t+1}, 3, v{t+1}")
    a(f"v_lshl_add_u32 v{V_X0}, v{t+1}, 4, v{t}"); a(f"v_add_u32 v{V_X1}, 20480, v{V_X0}")
    a(f"s_lshl_b32 s{S_M0X}, s{S_WAVE}, 11")

def w_dma_addr_gu(a):
    t=V_T
    a(f"v_mul_u32_u24 v{t}, 43, v0"); a(f"v_lshrrev_b32 v{t}, 9, v{t}")
    a(f"v_mul_u32_u24 v{t+1}, 12, v{t}"); a(f"v_sub_u32 v{t+1}, v0, v{t+1}")
    a(f"v_cmp_le_u32 vcc, 6, v{t+1}"); a(f"v_cndmask_b32 v{t+2}, 0, 2, vcc"); a(f"v_cmp_le_u32 vcc, 10, v{t+1}"); a(f"v_cndmask_b32 v{t+2}, v{t+2}, -4, vcc")
    a(f"v_add_u32 v{t+1}, v{t+1}, v{t+2}")
    a(f"v_mul_u32_u24 v{t}, 3456, v{t}"); a(f"v_lshl_add_u32 v{t}, v{t+1}, 4, v{t}")
    a(f"s_mul_i32 s{S_T0}, s{S_WAVE}, {4*3456}"); a(f"v_add_u32 v{V_W0}, s{S_T0}, v{t}"); a(f"v_mov_b32 v{V_W1}, v{V_W0}")
    a(f"s_mul_i32 s{S_T0}, s{S_RT}, {4*3456}"); a(f"v_add_u32 v{V_C0}, s{S_T0}, v{t}"); a(f"v_mov_b32 v{V_C1}, v{V_C0}")
    a(f"s_mul_i32 s{S_M0W}, s{S_WAVE}, 784")
    a(f"s_mov_b32 s{S_EXW}, -1"); a(f"s_mov_b32 s{S_EXW+1}, 0xffff")
    a(f"s_mov_b32 s{S_WSTR}, {32*3456}")

def w_dma_addr_qkv(a):
    t=V_T
    a(f"v_cmp_le_u32 vcc, 20, v0"); a(f"v_cndmask_b32 v{t}, 0, 1, vcc")
    a(f"v_mul_u32_u24 v{t+1}, 20, v{t}"); a(f"v_sub_u32 v{t+1}, v0, v{t+1}")
    a(f"v_mul_u32_u24 v{t}, 3840, v{t}"); a(f"v_lshl_add_u32 v{t}, v{t+1}, 4, v{t}")
    a(f"s_cmp_eq_u32 s{S_TYPE}, {T_KV}"); a(f"s_cselect_b32 s{S_T0}, {1280-160}, 0")
    a(f"v_mov_b32 v{t+2}, s{S_T0}"); a(f"v_cmp_le_u32 vcc, 10, v{t+1}"); a(f"v_cndmask_b32 v{t+2}, 0, v{t+2}, vcc"); a(f"v_add_u32 v{t}, v{t}, v{t+2}")
    a(f"s_mul_i32 s{S_T0}, s{S_WAVE}, {4*3840}"); a(f"v_add_u32 v{V_W0}, s{S_T0}, v{t}"); a(f"v_add_u32 v{V_W1}, 7680, v{V_W0}")
    a(f"s_mul_i32 s{S_T0}, s{S_RT}, {4*3840}"); a(f"v_add_u32 v{V_C0}, s{S_T0}, v{t}"); a(f"v_add_u32 v{V_C1}, 7680, v{V_C0}")
    a(f"s_mul_i32 s{S_M0W}, s{S_WAVE}, 1296")
    a(f"s_mov_b32 s{S_EXW}, -1"); a(f"s_mov_b32 s{S_EXW+1}, 0xff")
    a(f"s_mov_b32 s{S_WSTR}, {32*3840}")

def srds_common(a):
    a(f"s_mul_i32 s{S_T0}, s{S_RT}, 327680"); a(f"s_add_u32 s{S_X}, s{P(0)}, s{S_T0}"); a(f"s_addc_u32 s{S_X+1}, s{P(0)+1}, 0")
    a(f"s_and_b32 s{S_X+1}, s{S_X+1}, 0xffff"); a(f"s_mov_b32 s{S_X+2}, 327680"); a(f"s_mov_b32 s{S_X+3}, 0x20000")
    srd(a, S_XALL, P(0), 2048*1280)
    srd(a, S_WS, P(10), WS_SIZE)
def srds_gu(a):
    a(f"s_mul_i32 s{S_T0}, s{S_CT}, 192")
    for d, p in ((S_W0, P(5)), (S_W1, P(6))):
        a(f"s_add_u32 s{d}, s{p}, s{S_T0}"); a(f"s_addc_u32 s{d+1}, s{p+1}, 0"); a(f"s_and_b32 s{d+1}, s{d+1}, 0xffff")
        a(f"s_sub_u32 s{d+2}, {640*3456}, s{S_T0}"); a(f"s_mov_b32 s{d+3}, 0x20000")
def srds_qkv(a):
    a(f"s_mul_i32 s{S_T0}, s{S_CT}, 320"); a(f"s_mul_i32 s{S_T1}, s{S_CT}, 160"); a(f"s_add_u32 s{S_T1}, s{S_T1}, 1280")
    a(f"s_cmp_eq_u32 s{S_TYPE}, {T_KV}"); a(f"s_cselect_b32 s{S_T0}, s{S_T1}, s{S_T0}")
    for d in (S_W0, S_W1):
        a(f"s_add_u32 s{d}, s{P(1)}, s{S_T0}"); a(f"s_addc_u32 s{d+1}, s{P(1)+1}, 0"); a(f"s_and_b32 s{d+1}, s{d+1}, 0xffff")
        a(f"s_sub_u32 s{d+2}, {640*3840}, s{S_T0}"); a(f"s_mov_b32 s{d+3}, 0x20000")
    a(f"s_mul_i32 s{S_T0}, s{S_CT}, 6400"); a(f"s_mul_i32 s{S_T1}, s{S_CT}, 3200"); a(f"s_cmp_eq_u32 s{S_TYPE}, {T_KV}"); a(f"s_cselect_b32 s{S_T0}, s{S_T1}, s{S_T0}")
    a(f"s_add_u32 s{S_PHI}, s{P(2)}, s{S_T0}"); a(f"s_addc_u32 s{S_PHI+1}, s{P(2)+1}, 0"); a(f"s_and_b32 s{S_PHI+1}, s{S_PHI+1}, 0xffff")
    a(f"s_sub_u32 s{S_PHI+2}, 25600, s{S_T0}"); a(f"s_mov_b32 s{S_PHI+3}, 0x20000")

def stats_issue(a, R):
    a(f"s_and_b32 s{S_T0}, s2, 1"); a(f"s_lshl_b32 s{S_T0}, s{S_T0}, 7"); a(f"s_bfe_u32 s{S_T1}, s2, 0x20001"); a(f"s_lshl_b32 s{S_T1}, s{S_T1}, 5")
    a(f"s_add_u32 s{S_T0}, s{S_T0}, s{S_T1}"); a(f"s_lshr_b32 s{S_T1}, s2, 3"); a(f"s_add_u32 s{S_T0}, s{S_T0}, s{S_T1}")
    a(f"s_lshl_b32 s{S_T0}, s{S_T0}, 3"); a(f"s_add_u32 s50, s{S_T0}, s{S_WAVE}")
    a(f"s_mul_i32 s{S_T0}, s50, 1280")
    a(f"v_lshlrev_b32 v{V_T}, 4, v0"); a(f"v_lshlrev_b32 v{V_T+1}, 2, v0")
    a(f"buffer_load_dwordx4 {vr(R,4)}, v{V_T}, s[{S_XALL}:{S_XALL+3}], s{S_T0} offen")
    a(f"buffer_load_dword v{R+4}, v{V_T+1}, s[{S_XALL}:{S_XALL+3}], s{S_T0} offen offset:1024")
def wave_sum(a, v, sdst):
    for sh in (1,2,4,8): a(f"v_add_f32_dpp v{v}, v{v}, v{v} row_shr:{sh} row_mask:0xf bank_mask:0xf bound_ctrl:0")
    a(f"v_add_f32_dpp v{v}, v{v}, v{v} row_bcast:15 row_mask:0xa bank_mask:0xf")
    a(f"v_add_f32_dpp v{v}, v{v}, v{v} row_bcast:31 row_mask:0xc bank_mask:0xf")
    a(f"v_readlane_b32 s{sdst}, v{v}, 63")
def stats_compute(a, R, T, flags="sc1"):
    for i in range(5):
        a(f"v_lshlrev_b32 v{T+2*i}, 16, v{R+i}"); a(f"v_and_b32 v{T+2*i+1}, 0xffff0000, v{R+i}")
    s=T+10
    a(f"v_add_f32 v{s}, v{T}, v{T+1}")
    for i in range(2,10): a(f"v_add_f32 v{s}, v{s}, v{T+i}")
    wave_sum(a, s, S_T0)
    a(f"v_mov_b32 v{s+1}, 0x3acccccd"); a(f"v_mul_f32 v{s+1}, s{S_T0}, v{s+1}")
    for i in range(10): a(f"v_sub_f32 v{T+i}, v{T+i}, v{s+1}")
    a(f"v_mul_f32 v{s}, v{T}, v{T}")
    for i in range(1,10): a(f"v_fmac_f32 v{s}, v{T+i}, v{T+i}")
    wave_sum(a, s, S_T0)
    a(f"v_mov_b32 v{s}, 0x3acccccd"); a(f"v_mul_f32 v{s}, s{S_T0}, v{s}")
    a(f"v_cvt_pk_bf16_f32 v{s}, v{s}, v{s+1}")
    a(f"v_and_b32 v{T}, 0xffff0000, v{s}"); a(f"v_lshlrev_b32 v{s}, 16, v{s}")
    a(f"v_add_f32 v{s}, 0x3727c5ac, v{s}"); a(f"v_cvt_pk_bf16_f32 v{s}, v{s}, v{s}"); a(f"v_lshlrev_b32 v{s}, 16, v{s}")
    a(f"v_sqrt_f32 v{s}, v{s}"); a(f"v_cvt_pk_bf16_f32 v{s}, v{s}, v{s}"); a(f"v_lshlrev_b32 v{T+1}, 16, v{s}")
    a(f"s_lshl_b32 s{S_T0}, s50, 3"); a(f"s_add_u32 s{S_T0}, s{S_T0}, {WS_RS}"); a(f"v_mov_b32 v{s}, 0")
    a("s_mov_b64 exec, 1")
    a(f"buffer_store_dwordx2 {vr(T,2)}, v{s}, s[{S_WS}:{S_WS+3}], s{S_T0} offen {flags}")
    a("s_mov_b64 exec, -1")

def colsum_issue(a, R, i):
    if i == 0: L=[f"s_mul_i32 s{S_CSOFF}, s{S_WAVE}, s{S_WSTR}"]
    else: L=[f"s_lshl_b32 s{S_T0}, s{S_WSTR}, 3", f"s_add_u32 s{S_CSOFF}, s{S_CSOFF}, s{S_T0}"]
    L += [f"s_mov_b64 exec, s[{S_EXW}:{S_EXW+1}]",
          f"buffer_load_dwordx4 {vr(R,4)}, v{V_C0}, s[{S_W0}:{S_W0+3}], s{S_CSOFF} offen",
          f"buffer_load_dwordx4 {vr(R+4,4)}, v{V_C1}, s[{S_W1}:{S_W1+3}], s{S_CSOFF} offen",
          "s_mov_b64 exec, -1"]
    return L
def colsum_acc(R, A, T, first):
    L=[]
    for i in range(8):
        if first:
            L += [f"v_lshlrev_b32 v{A+2*i}, 16, v{R+i}", f"v_and_b32 v{A+2*i+1}, 0xffff0000, v{R+i}"]
        else:
            L += [f"v_lshlrev_b32 v{T}, 16, v{R+i}", f"v_and_b32 v{T+1}, 0xffff0000, v{R+i}", f"v_add_f32 v{A+2*i}, v{A+2*i}, v{T}", f"v_add_f32 v{A+2*i+1}, v{A+2*i+1}, v{T+1}"]
    return L
def colsum_lds_add(a, A, T, gu):
    if gu:
        a(f"v_mul_u32_u24 v{T}, 43, v0"); a(f"v_lshrrev_b32 v{T}, 9, v{T}"); a(f"v_mul_u32_u24 v{T}, 12, v{T}"); a(f"v_sub_u32 v{T}, v0, v{T}")
    else:
        a(f"v_subrev_u32 v{T}, 20, v0"); a(f"v_min_u32 v{T}, v{T}, v0")
    a(f"v_lshlrev_b32 v{T}, 5, v{T}")
    a(f"s_mov_b64 exec, s[{S_EXW}:{S_EXW+1}]")
    a(f"v_add_u32 v{T}, {L_CS}, v{T}")
    for i in range(16):
        a(f"ds_add_f32 v{T}, v{A+i} offset:{(i&7)*4 + (384 if (gu and i>=8) else 0)}")
    a("s_mov_b64 exec, -1")
def colsum_store(a, T, flags="sc1"):
    a(f"v_lshlrev_b32 v{T}, 4, v0"); a(f"v_add_u32 v{T+1}, {L_CS}, v{T}")
    a(f"s_mov_b32 exec_lo, -1"); a(f"s_mov_b32 exec_hi, 0xffff")
    a(f"ds_read_b128 {vr(T+2,4)}, v{T+1}")
    a(f"s_lshl_b32 s{S_T0}, s{S_CTG}, 3"); a(f"s_add_u32 s{S_T0}, s{S_T0}, s{S_RT}"); a(f"s_mul_i32 s{S_T0}, s{S_T0}, 768"); a(f"s_add_u32 s{S_T0}, s{S_T0}, {WS_CS}")
    a("s_waitcnt lgkmcnt(0)")
    a(f"buffer_store_dwordx4 {vr(T+2,4)}, v{T}, s[{S_WS}:{S_WS+3}], s{S_T0} offen {flags}")
    a("s_mov_b64 exec, -1")
def colsum_gather(a, R, T, flags="sc1"):
    a(f"v_lshlrev_b32 v{T}, 4, v0"); a(f"s_mul_i32 s{S_T0}, s{S_CTG}, {8*768}"); a(f"s_add_u32 s{S_T0}, s{S_T0}, {WS_CS}")
    a(f"s_mov_b32 exec_lo, -1"); a(f"s_mov_b32 exec_hi, 0xffff")
    for i in range(8):
        a(f"buffer_load_dwordx4 {vr(R+4*i,4)}, v{T}, s[{S_WS}:{S_WS+3}], s{S_T0} offen offset:{(i%4)*768} {flags}")
        if i==3: a(f"s_add_u32 s{S_T0}, s{S_T0}, {4*768}")
    a(f"v_add_u32 v{T}, {L_CS2}, v{T}")
    a("s_waitcnt vmcnt(0)")
    for i in range(1,8):
        for e in range(4): a(f"v_add_f32 v{R+e}, v{R+e}, v{R+4*i+e}")
    a(f"ds_write_b128 v{T}, {vr(R,4)}")
    a("s_mov_b64 exec, -1")

class Loop:
    def __init__(self, gu, nslot):
        self.gu=gu; self.NS=nslot; self.NCH=20
        self.nA = 6 if gu else 5
    def dma(self, c):
        sb=(c%self.NS)*SLOT; w1 = UOFF if self.gu else 640
        return [
         [f"s_add_u32 m0, s{S_M0X}, {sb+XOFF-64*c}", f"buffer_load_dwordx4 v{V_X0}, s[{S_X}:{S_X+3}], 0 offen offset:{64*c} lds"],
         [f"s_add_u32 m0, s{S_M0X}, {sb+XOFF-64*c+1024}", f"buffer_load_dwordx4 v{V_X1}, s[{S_X}:{S_X+3}], 0 offen offset:{64*c} lds"],
         [f"s_add_u32 m0, s{S_M0W}, {sb}", f"s_mov_b64 exec, s[{S_EXW}:{S_EXW+1}]", f"buffer_load_dwordx4 v{V_W0}, s[{S_W0}:{S_W0+3}], s{S_WOFF} offen lds", "s_mov_b64 exec, -1"],
         [f"s_add_u32 m0, s{S_M0W}, {sb+w1}", f"s_mov_b64 exec, s[{S_EXW}:{S_EXW+1}]", f"buffer_load_dwordx4 v{V_W1}, s[{S_W1}:{S_W1+3}], s{S_WOFF} offen lds", "s_mov_b64 exec, -1", f"s_add_u32 s{S_WOFF}, s{S_WOFF}, s{S_WSTR}"]]
    def read_addr(self, a):
        t=V_T
        a(f"v_and_b32 v{t}, 15, v0"); a(f"v_lshlrev_b32 v{t}, 6, v{t}")
        a(f"v_bfe_u32 v{t+1}, v0, 2, 2"); a(f"v_sub_u32 v{t+1}, 0, v{t+1}"); a(f"v_lshrrev_b32 v{t+2}, 4, v0"); a(f"v_xor_b32 v{t+1}, v{t+1}, v{t+2}"); a(f"v_and_b32 v{t+1}, 3, v{t+1}")
        a(f"v_lshl_add_u32 v{t}, v{t+1}, 4, v{t}"); a(f"s_lshl_b32 s{S_T0}, s{S_TG}, 12"); a(f"s_add_u32 s{S_T0}, s{S_T0}, {XOFF}")
        a(f"v_add_u32 v{V_XR[0]}, s{S_T0}, v{t}"); a(f"v_add_u32 v{V_XR[1]}, {2*SLOT}, v{V_XR[0]}")
        gs, rs, fs, cs = (1568,192,96,8) if self.gu else (2592,320,160,40)
        a(f"v_mul_u32_u24 v{t}, {gs}, v{t+2}"); a(f"v_bfe_u32 v{t+1}, v0, 2, 2"); a(f"v_mul_u32_u24 v{t+1}, {rs}, v{t+1}"); a(f"v_add_u32 v{t}, v{t}, v{t+1}")
        a(f"v_and_b32 v{t+1}, 3, v0"); a(f"v_mul_u32_u24 v{t+1}, {cs}, v{t+1}"); a(f"v_add_u32 v{t}, v{t}, v{t+1}")
        a(f"s_mul_i32 s{S_T0}, s{S_FG}, {fs}"); a(f"v_add_u32 v{V_WR[0]}, s{S_T0}, v{t}"); a(f"v_add_u32 v{V_WR[1]}, {2*SLOT}, v{V_WR[0]}")
    def wimm(self, blk, rd):
        if self.gu: return rd*784 + (blk%3)*32 + (blk//3)*UOFF
        return rd*1296 + blk*8
    def rd_x(self, c):
        s=c%self.NS; so=(s%2)*SLOT
        return [f"ds_read_b128 {vr(XB[c%2]+4*t,4)}, v{V_XR[s//2]} offset:{so+1024*t}" for t in range(4)]
    def rd_w(self, c, half):
        s=c%self.NS; so=(s%2)*SLOT; L=[]
        for i,blk in enumerate(range(3) if half==0 else range(3,self.nA)):
            for rd in range(2):
                L.append(f"ds_read_b64_tr_b16 {vr(WB[half]+4*i+2*rd,2)}, v{V_WR[s//2]} offset:{so+self.wimm(blk,rd)}")
        return L
    def mf(self, c, half):
        L=[]
        for i,blk in enumerate(range(3) if half==0 else range(3,self.nA)):
            for t in range(4):
                ac=ACC+4*(4*blk+t)
                src = vr(ac,4) if c>0 else "0"
                L.append(f"v_mfma_f32_16x16x32_bf16 {vr(ac,4)}, {vr(WB[half]+4*i,4)}, {vr(XB[c%2]+4*t,4)}, {src}")
        return L
    def emit(self, a, extra=None, vm_extra=None):
        NS, NCH = self.NS, self.NCH
        r = self.rd_x(0); w = self.rd_w(0,0)
        a([r[0], w[0], w[1]] + r[1:] + w[2:])
        for c in range(NCH):
            a("s_waitcnt lgkmcnt(0)")
            dm = self.dma(c+NS-1) if (c>=1 and c+NS-1<NCH) else []
            rd = self.rd_w(c,1)
            fill = spread(rd, dm)
            ex = extra(c,0) if extra else []
            a(place(self.mf(c,0), fill, ex))
            if c+1<NCH:
                rem = min(NCH-1, c+NS-1)-(c+1)
                a(f"s_waitcnt vmcnt({4*rem + (vm_extra(c) if vm_extra else 0)}) lgkmcnt(0)"); a("s_barrier")
                r = self.rd_x(c+1); w = self.rd_w(c+1,0)
                rd = [r[0], w[0], w[1]] + r[1:] + w[2:]
            else:
                a("s_waitcnt lgkmcnt(0)"); rd=[]
            ex = extra(c,1) if extra else []
            a(place(self.mf(c,1), rd, ex))

def spread(x, y):
    if not y: return list(x)
    if not x: return list(y)
    return interleave(x, y)
def place(m, front, ex):
    n=len(m); lim=max(1,(2*n)//3)
    per=[0]*n
    k=len(front); i=0
    while k>0:
        per[i%lim]+=1; k-=1; i+=1
    out=[]; fi=0; ei=0
    for i,x in enumerate(m):
        out.append(x)
        for _ in range(per[i]): out.append(front[fi]); fi+=1
        tgt=(len(ex)*(i+1)+n-1)//n
        while ei<tgt: out.append(ex[ei]); ei+=1
    return out

E_RS=128
E_A=136; E_B=140
E_CS=144
E_T=168
def epi_load_rs(a, flags="sc1"):
    a(f"s_lshl_b32 s{S_T0}, s{S_RT}, 8"); a(f"s_lshl_b32 s{S_T1}, s{S_TG}, 6"); a(f"s_add_u32 s{S_T0}, s{S_T0}, s{S_T1}"); a(f"s_lshl_b32 s{S_T0}, s{S_T0}, 3"); a(f"s_add_u32 s{S_T0}, s{S_T0}, {WS_RS}")
    a(f"v_and_b32 v{V_T}, 15, v0"); a(f"v_lshlrev_b32 v{V_T}, 3, v{V_T}")
    for t in range(4): a(f"buffer_load_dwordx2 {vr(E_RS+2*t,2)}, v{V_T}, s[{S_WS}:{S_WS+3}], s{S_T0} offen offset:{128*t} {flags}")
def epi_read_cs(a, gu):
    t=V_T
    a(f"v_lshrrev_b32 v{t}, 4, v0"); a(f"v_mul_u32_u24 v{t}, {16 if gu else 80}, v{t}")
    a(f"s_mul_i32 s{S_T0}, s{S_FG}, {192 if gu else 320}"); a(f"s_add_u32 s{S_T0}, s{S_T0}, {L_CS2}"); a(f"v_add_u32 v{t}, s{S_T0}, v{t}")
    for b in range(6 if gu else 5):
        off = ((b%3)*64 + (b//3)*384) if gu else b*16
        a(f"ds_read_b128 {vr(E_CS+4*b,4)}, v{t} offset:{off}")

def epi_gu(a, flags="sc1"):
    for t in range(4):
        a(f"v_rcp_f32 v{E_A+t}, v{E_RS+2*t+1}"); a(f"v_mul_f32 v{E_B+t}, v{E_RS+2*t+1}, v{E_RS+2*t+1}")
    for t in range(4): a(f"v_mul_f32 v{E_A+t}, {LOG2E|0x80000000}, v{E_A+t}")
    vo=V_T; vm=V_T+1
    a(f"v_lshlrev_b32 v{vo}, 4, v0")
    a(f"v_lshrrev_b32 v{vm}, 5, v0"); a(f"v_mul_u32_u24 v{vm}, {54*1024-512}, v{vm}"); a(f"v_add_u32 v{vm}, v{vm}, v{vo}")
    a(f"s_lshl_b32 s{S_T0}, s{S_FG}, 9"); a(f"v_add_u32 v{vm}, s{S_T0}, v{vm}")
    a(f"s_lshl_b32 s{S_T0}, s{S_RT}, 4"); a(f"s_lshl_b32 s{S_T1}, s{S_TG}, 2"); a(f"s_add_u32 s{S_T0}, s{S_T0}, s{S_T1}"); a(f"s_mul_i32 s{S_T0}, s{S_T0}, 54")
    a(f"s_mul_i32 s{S_T1}, s{S_CT}, 3"); a(f"s_add_u32 s{S_T0}, s{S_T0}, s{S_T1}"); a(f"s_lshl_b32 s{S_T0}, s{S_T0}, 10"); a(f"s_add_u32 s{S_T0}, s{S_T0}, {WS_H}")
    a(f"s_add_u32 s{S_T1}, s{S_T0}, 1024"); a(f"s_lshl_b32 s{S_T2}, s{S_FG}, 11"); a(f"s_add_u32 s{S_T0}, s{S_T0}, s{S_T2}")
    def hblock(pts, dst):
        el=[(ACC+4*(4*p+t)+e, ACC+4*(4*(3+p)+t)+e, E_CS+4*p+e, E_CS+4*(3+p)+e, t) for (p,t) in pts for e in range(4)]
        n=len(el); X=E_T
        for g,u,cg,cu,t in el: a(f"v_fma_f32 v{g}, -v{E_RS+2*t}, v{cg}, v{g}")
        for i,(g,u,cg,cu,t) in enumerate(el): a(f"v_mul_f32 v{X+i}, v{g}, v{E_A+t}")
        for i,(g,u,cg,cu,t) in enumerate(el):
            a(f"v_exp_f32 v{X+i}, v{X+i}"); a(f"v_fma_f32 v{u}, -v{E_RS+2*t}, v{cu}, v{u}")
        for i,(g,u,cg,cu,t) in enumerate(el): a(f"v_fma_f32 v{X+i}, v{X+i}, v{E_B+t}, v{E_B+t}")
        for i,(g,u,cg,cu,t) in enumerate(el):
            a(f"v_rcp_f32 v{X+i}, v{X+i}"); a(f"v_mul_f32 v{g}, v{g}, v{u}")
        for i,(g,u,cg,cu,t) in enumerate(el): a(f"v_mul_f32 v{g}, v{g}, v{X+i}")
        for k in range(n//2): a(f"v_cvt_pk_bf16_f32 v{dst+k}, v{el[2*k][0]}, v{el[2*k+1][0]}")
    D=E_T+8
    nst=0
    for t in range(4):
        d=D+4*(nst%4); hblock([(0,t),(1,t)], d)
        a(f"buffer_store_dwordx4 {vr(d,4)}, v{vo}, s[{S_WS}:{S_WS+3}], s{S_T0} offen {flags}"); nst+=1
        if t<3: a(f"s_add_u32 s{S_T0}, s{S_T0}, {54*1024}")
        if t&1:
            d=D+4*(nst%4); hblock([(2,t-1),(2,t)], d)
            a(f"v_permlane32_swap_b32 v{d}, v{d+2}"); a(f"v_permlane32_swap_b32 v{d+1}, v{d+3}")
            a(f"buffer_store_dwordx4 {vr(d,4)}, v{vm}, s[{S_WS}:{S_WS+3}], s{S_T1} offen {flags}"); nst+=1
            if t<3: a(f"s_add_u32 s{S_T1}, s{S_T1}, {2*54*1024}")

E_PHI=184
def phi_dma(a):
    a(f"s_lshl_b32 s{S_T0}, s{S_WAVE}, 10"); a(f"s_add_u32 m0, s{S_T0}, {L_WPHI}"); a(f"v_lshlrev_b32 v{V_T}, 4, v0")
    a(f"v_add_u32 v{V_T}, s{S_T0}, v{V_T}"); a(f"v_cmp_gt_u32 vcc, 6400, v{V_T}"); a(f"s_and_b64 exec, vcc, -1")
    a(f"s_cbranch_execz PHI_SKIP")
    a(f"buffer_load_dwordx4 v{V_T}, s[{S_PHI}:{S_PHI+3}], 0 offen lds")
    a.label("PHI_SKIP")
    a("s_mov_b64 exec, -1")
def lds_zero_init(a):
    t=V_T
    a(f"s_lshl_b32 s{S_T0}, s{S_WAVE}, 6"); a(f"v_add_u32 v{t}, s{S_T0}, v0"); a(f"v_subrev_u32 v{t}, 384, v{t}")
    for i in range(4): a(f"v_mov_b32 v{t+1+i}, 0")
    a(f"v_cmp_gt_u32 vcc, 98, v{t}"); a(f"v_lshlrev_b32 v{t}, 4, v{t}"); a(f"v_add_u32 v{t}, {L_ZERO}, v{t}")
    a(f"s_and_b64 exec, vcc, -1")
    a(f"ds_write_b128 v{t}, {vr(t+1,4)}")
    a("s_mov_b64 exec, -1")
def phi_frags(a, kv):
    t=V_T
    a(f"v_lshrrev_b32 v{t}, 4, v0"); a(f"v_and_b32 v{t+1}, 3, v0"); a(f"v_cmp_eq_u32 vcc, v{t}, v{t+1}")
    a(f"v_mul_u32_u24 v{t}, 800, v{t}"); a(f"v_bfe_u32 v{t+1}, v0, 2, 2"); a(f"v_mul_u32_u24 v{t+1}, 40, v{t+1}"); a(f"v_add_u32 v{t}, v{t}, v{t+1}")
    if kv: a(f"v_add_u32 v{t}, {L_WPHI}, v{t}")
    else:
        a(f"s_mul_i32 s{S_T0}, s{S_FG}, 3200"); a(f"s_add_u32 s{S_T0}, s{S_T0}, {L_WPHI}"); a(f"v_add_u32 v{t}, s{S_T0}, v{t}")
    a(f"v_mov_b32 v{t+1}, {L_ZERO}"); a(f"v_cndmask_b32 v{t}, v{t+1}, v{t}, vcc")
    for b in range(5):
        for s in range(3):
            for rd in range(2):
                r=E_PHI+4*(3*b+s)+2*rd
                if s==2 and rd==1: a(f"v_mov_b32 v{r}, 0"); a(f"v_mov_b32 v{r+1}, 0")
                else: a(f"ds_read_b64_tr_b16 {vr(r,2)}, v{t} offset:{(8*s+4*rd)*40+b*8}")
def ln_pack(a, t, dst):
    el=[(ACC+4*(4*b+t)+e, E_CS+4*b+e) for b in range(5) for e in range(4)]
    for g,c in el: a(f"v_fma_f32 v{g}, -v{E_RS+2*t}, v{c}, v{g}")
    for g,c in el: a(f"v_mul_f32 v{g}, v{g}, v{E_A+t}")
    for k in range(10): a(f"v_cvt_pk_bf16_f32 v{dst+k}, v{el[2*k][0]}, v{el[2*k+1][0]}")
def phi_mfma(a, t, F):
    for s in range(3):
        for b in range(5):
            ac=ACC+4*(4*b+t)
            a(f"v_mfma_f32_16x16x32_bf16 {vr(ac,4)}, {vr(E_PHI+4*(3*b+s),4)}, {vr(F+4*s,4)}, {vr(ac,4) if s else 0}")
def epi_rstd(a):
    for t in range(4): a(f"v_rcp_f32 v{E_A+t}, v{E_RS+2*t+1}")
def epi_q(a, flags="sc1"):
    epi_rstd(a)
    F=[E_T, 112]
    for f in F: a(f"v_mov_b32 v{f+10}, 0"); a(f"v_mov_b32 v{f+11}, 0")
    for t in range(4):
        ln_pack(a, t, F[t&1]); phi_mfma(a, t, F[t&1])
    v16=V_T; v8=V_T+1; t_=V_T+2
    a(f"v_lshrrev_b32 v{t_}, 4, v0"); a(f"v_mul_u32_u24 v{t_}, 81920, v{t_}"); a(f"v_and_b32 v{v8}, 15, v0")
    a(f"v_lshl_add_u32 v{v16}, v{v8}, 4, v{t_}"); a(f"v_lshl_add_u32 v{v8}, v{v8}, 3, v{t_}")
    a(f"s_lshl_b32 s{S_T0}, s{S_CT}, 1"); a(f"s_add_u32 s{S_T0}, s{S_T0}, s{S_FG}"); a(f"s_mul_i32 s{S_T0}, s{S_T0}, {4*81920}"); a(f"s_add_u32 s{S_T0}, s{S_T0}, {WS_PQ}")
    a(f"s_lshl_b32 s{S_T1}, s{S_RT}, 8"); a(f"s_lshl_b32 s{S_T2}, s{S_TG}, 6"); a(f"s_add_u32 s{S_T1}, s{S_T1}, s{S_T2}")
    a(f"s_lshl_b32 s{S_T2}, s{S_T1}, 3"); a(f"s_add_u32 s{S_T2}, s{S_T2}, s{S_T0}"); a(f"s_add_u32 s{S_T2}, s{S_T2}, 65536")
    a(f"s_lshl_b32 s{S_T1}, s{S_T1}, 4"); a(f"s_add_u32 s{S_T0}, s{S_T0}, s{S_T1}"); a(f"s_add_u32 s{S_T1}, s{S_T0}, 32768")
    for t in range(4):
        D=E_PHI+12*t
        el=[ACC+4*(4*b+t)+e for b in range(5) for e in range(4)]
        for k in range(10): a(f"v_cvt_pk_bf16_f32 v{D+k}, v{el[2*k]}, v{el[2*k+1]}")
        a(f"buffer_store_dwordx4 {vr(D,4)}, v{v16}, s[{S_WS}:{S_WS+3}], s{S_T0} offen offset:{256*t} {flags}")
        a(f"buffer_store_dwordx4 {vr(D+4,4)}, v{v16}, s[{S_WS}:{S_WS+3}], s{S_T1} offen offset:{256*t} {flags}")
        a(f"buffer_store_dwordx2 {vr(D+8,2)}, v{v8}, s[{S_WS}:{S_WS+3}], s{S_T2} offen offset:{128*t} {flags}")

def softmax20(a, p, sign, T, dst):
    m=T+20; s=T+21
    op = "v_max3_f32" if sign>0 else "v_min3_f32"
    a(f"{op} v{m}, v{p[0]}, v{p[1]}, v{p[2]}")
    for i in range(3,19,2): a(f"{op} v{m}, v{m}, v{p[i]}, v{p[i+1]}")
    a(f"{'v_max_f32' if sign>0 else 'v_min_f32'} v{m}, v{m}, v{p[19]}")
    sl = "s51"
    if sign>0: a(f"v_mul_f32 v{m}, {LOG2E|0x80000000}, v{m}")
    else: a(f"v_mul_f32 v{m}, {LOG2E}, v{m}")
    for i in range(20): a(f"v_fma_f32 v{T+i}, {'' if sign>0 else '-'}v{p[i]}, {sl}, v{m}")
    for i in range(20): a(f"v_exp_f32 v{T+i}, v{T+i}")
    a(f"v_add_f32 v{s}, v{T}, v{T+1}"); a(f"v_add_f32 v{m}, v{T+2}, v{T+3}")
    for i in range(4,20,2): a(f"v_add_f32 v{s}, v{s}, v{T+i}"); a(f"v_add_f32 v{m}, v{m}, v{T+i+1}")
    a(f"v_add_f32 v{s}, v{s}, v{m}"); a(f"v_rcp_f32 v{s}, v{s}")
    for i in range(20): a(f"v_mul_f32 v{T+i}, v{T+i}, v{s}")
    for k in range(10): a(f"v_cvt_pk_bf16_f32 v{dst+k}, v{T+2*k}, v{T+2*k+1}")

def epi_kv(a, flags="sc1"):
    epi_rstd(a)
    vw=V_T
    a(f"v_and_b32 v{vw}, 15, v0"); a(f"v_mul_u32_u24 v{vw}, {KVROW}, v{vw}"); a(f"v_lshrrev_b32 v{vw+1}, 4, v0"); a(f"v_lshl_add_u32 v{vw}, v{vw+1}, 7, v{vw}")
    a(f"s_mul_i32 s{S_T0}, s{S_TG}, {64*KVROW}"); a(f"v_add_u32 v{vw}, s{S_T0}, v{vw}")
    a(f"s_cmp_eq_u32 s{S_FG}, 0"); a("s_cbranch_scc1 KV_KWAVE")
    for t in range(4):
        F=E_PHI+12*t
        ln_pack(a, t, F); a(f"v_mov_b32 v{F+10}, 0x3f803f80"); a(f"v_mov_b32 v{F+11}, 0x3f803f80")
        for i in range(3): a(f"ds_write_b128 v{vw}, {vr(F+4*i,4)} offset:{t*16*KVROW+80+16*i}")
    a("s_branch KV_JOIN")
    a.label("KV_KWAVE")
    a(f"s_mov_b32 s51, {LOG2E}")
    F=[E_T, 112]
    for f in F: a(f"v_mov_b32 v{f+10}, 0"); a(f"v_mov_b32 v{f+11}, 0")
    for t in range(4):
        ln_pack(a, t, F[t&1]); phi_mfma(a, t, F[t&1])
    T=E_CS
    for t in range(4):
        D=E_PHI+20*(t&1)
        p=[ACC+4*(4*b+t)+e for b in range(5) for e in range(4)]
        softmax20(a, p, +1, T, D); softmax20(a, p, -1, T, D+10)
        for i in range(5): a(f"ds_write_b128 v{vw}, {vr(D+4*i,4)} offset:{t*16*KVROW+16*i}")
    a.label("KV_JOIN")
    a("s_waitcnt lgkmcnt(0)"); a("s_barrier")
    t=V_T
    a(f"v_bfe_u32 v{t}, v0, 2, 3"); a(f"v_lshrrev_b32 v{t+1}, 5, v0"); a(f"v_lshl_add_u32 v{t}, v{t+1}, 3, v{t}"); a(f"v_mul_u32_u24 v{t}, {2*KVROW}, v{t}")
    a(f"v_and_b32 v{t+1}, 3, v0"); a(f"v_lshl_add_u32 v{t}, v{t+1}, 3, v{t}")
    a(f"s_lshr_b32 s{S_T0}, s{S_WAVE}, 1"); a(f"s_lshl_b32 s{S_T0}, s{S_T0}, 7"); a(f"v_add_u32 v{t}, s{S_T0}, v{t}")
    a(f"s_and_b32 s{S_T1}, s{S_WAVE}, 1"); a(f"s_lshl_b32 s{S_T1}, s{S_T1}, 5"); a(f"s_add_u32 s{S_T1}, s{S_T1}, 80"); a(f"v_add_u32 v{t+1}, s{S_T1}, v{t}")
    a(f"v_add_u32 v{t+2}, {128*KVROW}, v{t}"); a(f"v_add_u32 v{t+3}, {128*KVROW}, v{t+1}")
    FR=128
    for st in range(8):
        va=t+(2 if st>=4 else 0); o=(st%4)*32*KVROW
        for rd in range(2): a(f"ds_read_b64_tr_b16 {vr(FR+16*st+12+2*rd,2)}, v{va+1} offset:{o+rd*KVROW}")
        for fb in range(3):
            for rd in range(2): a(f"ds_read_b64_tr_b16 {vr(FR+16*st+4*fb+2*rd,2)}, v{va} offset:{o+rd*KVROW+32*fb}")
        if st>=1:
            a("s_waitcnt lgkmcnt(8)")
            for fb in range(3): a(f"v_mfma_f32_16x16x32_bf16 {vr(ACC+4*fb,4)}, {vr(FR+16*(st-1)+4*fb,4)}, {vr(FR+16*(st-1)+12,4)}, {vr(ACC+4*fb,4) if st>1 else 0}")
    a("s_waitcnt lgkmcnt(0)")
    for fb in range(3): a(f"v_mfma_f32_16x16x32_bf16 {vr(ACC+4*fb,4)}, {vr(FR+16*7+4*fb,4)}, {vr(FR+16*7+12,4)}, {vr(ACC+4*fb,4)}")
    a(f"v_and_b32 v{t}, 15, v0"); a(f"s_and_b32 s{S_T1}, s{S_WAVE}, 1"); a(f"s_lshl_b32 s{S_T1}, s{S_T1}, 4"); a(f"v_add_u32 v{t}, s{S_T1}, v{t}")
    a(f"v_cmp_gt_u32 vcc, 21, v{t}"); a(f"v_lshrrev_b32 v{t+1}, 4, v0"); a(f"v_mul_u32_u24 v{t+1}, 21, v{t+1}"); a(f"v_add_u32 v{t}, v{t}, v{t+1}"); a(f"v_lshlrev_b32 v{t}, 4, v{t}")
    a(f"s_lshl_b32 s{S_T0}, s{S_RT}, 5"); a(f"s_lshl_b32 s{S_T1}, s{S_CT}, 2"); a(f"s_add_u32 s{S_T0}, s{S_T0}, s{S_T1}"); a(f"s_lshr_b32 s{S_T1}, s{S_WAVE}, 1"); a(f"s_add_u32 s{S_T0}, s{S_T0}, s{S_T1}")
    a(f"s_mul_i32 s{S_T0}, s{S_T0}, 3360"); a(f"s_add_u32 s{S_T0}, s{S_T0}, {WS_KVP}")
    a(f"s_mov_b64 exec, vcc")
    for fb in range(3):
        if fb==2: a("s_mov_b32 exec_hi, 0")
        a(f"buffer_store_dwordx4 {vr(ACC+4*fb,4)}, v{t}, s[{S_WS}:{S_WS+3}], s{S_T0} offen offset:{fb*4*21*16} {flags}")
    a("s_mov_b64 exec, -1")
```

```python
from asmlib import *
from k1 import *

def o_issue(a, RP, RQ, flags="sc1"):
    t=V_T
    a(f"s_lshr_b32 s{S_T0}, s2, 3")
    a(f"s_mul_i32 s{S_T1}, s{S_T0}, 81920"); a(f"s_add_u32 s{S_T1}, s{S_T1}, {WS_PQ}")
    a(f"s_and_b32 s{S_T2}, s2, 7"); a(f"s_lshl_b32 s{S_T2}, s{S_T2}, 3"); a(f"s_add_u32 s{S_T2}, s{S_T2}, s{S_WAVE}"); a(f"s_lshl_b32 s{S_T2}, s{S_T2}, 8")
    a(f"s_add_u32 s{S_T3}, s{S_T1}, s{S_T2}"); a(f"s_add_u32 s{S_T3}, s{S_T3}, 65536")
    a(f"s_lshl_b32 s{S_T2}, s{S_T2}, 1"); a(f"s_add_u32 s{S_T1}, s{S_T1}, s{S_T2}"); a(f"s_add_u32 s{S_T2}, s{S_T1}, 32768")
    a(f"v_and_b32 v{t}, 31, v0"); a(f"v_lshlrev_b32 v{t+1}, 3, v{t}"); a(f"v_lshlrev_b32 v{t}, 4, v{t}")
    a(f"buffer_load_dwordx4 {vr(RQ,4)}, v{t}, s[{S_WS}:{S_WS+3}], s{S_T1} offen {flags}")
    a(f"buffer_load_dwordx4 {vr(RQ+4,4)}, v{t}, s[{S_WS}:{S_WS+3}], s{S_T2} offen {flags}")
    a(f"buffer_load_dwordx2 {vr(RQ+8,2)}, v{t+1}, s[{S_WS}:{S_WS+3}], s{S_T3} offen {flags}")
    a(f"s_lshl_b32 s{S_T1}, s{S_WAVE}, 6"); a(f"v_add_u32 v{t}, s{S_T1}, v0"); a(f"v_cmp_gt_u32 vcc, 210, v{t}"); a(f"v_lshlrev_b32 v{t}, 4, v{t}")
    a(f"s_mul_i32 s{S_T0}, s{S_T0}, 3360"); a(f"s_add_u32 s{S_T0}, s{S_T0}, {WS_KVP}")
    a(f"s_cmp_lt_u32 s{S_WAVE}, 4"); a("s_cbranch_scc0 O_NOP")
    a(f"s_mov_b64 exec, vcc")
    for r in range(8):
        a(f"buffer_load_dwordx4 {vr(RP+4*r,4)}, v{t}, s[{S_WS}:{S_WS+3}], s{S_T0} offen {flags}")
        if r<7: a(f"s_add_u32 s{S_T0}, s{S_T0}, {32*3360}")
    a("s_mov_b64 exec, -1")
    a.label("O_NOP")
def o_kvz(a, RP, LB):
    t=V_T
    a(f"s_cmp_lt_u32 s{S_WAVE}, 4"); a("s_cbranch_scc0 O_NOK")
    for r in range(1,8):
        for e in range(4): a(f"v_add_f32 v{RP+e}, v{RP+e}, v{RP+4*r+e}")
    a(f"v_cvt_pk_bf16_f32 v{RP+4}, v{RP}, v{RP+1}"); a(f"v_cvt_pk_bf16_f32 v{RP+5}, v{RP+2}, v{RP+3}")
    a(f"v_mov_b32 v{RP+6}, 0"); a(f"v_mov_b32 v{RP+7}, 0")
    a(f"s_lshl_b32 s{S_T1}, s{S_WAVE}, 6"); a(f"v_add_u32 v{t}, s{S_T1}, v0")
    a(f"v_mul_u32_u24 v{t+1}, 3121, v{t}"); a(f"v_lshrrev_b32 v{t+1}, 16, v{t+1}")
    a(f"v_mul_u32_u24 v{t+2}, 21, v{t+1}"); a(f"v_sub_u32 v{t+2}, v{t}, v{t+2}")
    a(f"v_cmp_le_u32 vcc, 5, v{t+1}"); a(f"v_cndmask_b32 v{t+3}, 0, 1, vcc")
    a(f"v_mul_u32_u24 v{t+4}, 5, v{t+3}"); a(f"v_sub_u32 v{t+1}, v{t+1}, v{t+4}")
    a(f"v_lshl_add_u32 v{t+3}, v{t+3}, 5, v{t+2}"); a(f"v_lshlrev_b32 v{t+3}, 4, v{t+3}")
    a(f"v_lshrrev_b32 v{t+4}, 1, v{t+1}"); a(f"v_lshl_add_u32 v{t+3}, v{t+4}, 10, v{t+3}")
    a(f"v_and_b32 v{t+4}, 1, v{t+1}"); a(f"v_lshl_add_u32 v{t+3}, v{t+4}, 3, v{t+3}"); a(f"v_add_u32 v{t+3}, {LB}, v{t+3}")
    a(f"v_cmp_gt_u32 vcc, 210, v{t}"); a(f"s_mov_b64 s[74:75], vcc"); a(f"s_mov_b64 exec, vcc")
    a(f"ds_write_b64 v{t+3}, {vr(RP+4,2)}")
    a(f"v_cmp_eq_u32 vcc, 4, v{t+1}"); a(f"s_and_b64 exec, vcc, s[74:75]")
    a(f"ds_write_b64 v{t+3}, {vr(RP+6,2)} offset:8")
    a(f"s_mov_b64 exec, s[74:75]"); a(f"v_cmp_eq_u32 vcc, 20, v{t+2}"); a(f"s_and_b64 exec, vcc, s[74:75]"); a(f"s_mov_b64 s[74:75], exec")
    a(f"ds_write_b64 v{t+3}, {vr(RP+4,2)} offset:64")
    a(f"v_cmp_eq_u32 vcc, 4, v{t+1}"); a(f"s_and_b64 exec, vcc, s[74:75]")
    a(f"ds_write_b64 v{t+3}, {vr(RP+6,2)} offset:72")
    a("s_mov_b64 exec, -1")
    a.label("O_NOK")
def o_softmax(a, RQ, T, F):
    t=V_T
    a(f"v_lshrrev_b32 v{t}, 5, v0"); a(f"v_mul_u32_u24 v{t}, 0x8000, v{t}"); a(f"v_lshl_add_u32 v{t}, v{t}, 16, v{t}")
    a(f"s_mov_b32 s51, {LOG2E}")
    for k in range(10): a(f"v_xor_b32 v{RQ+k}, v{RQ+k}, v{t}")
    for k in range(10): a(f"v_lshlrev_b32 v{T+2*k}, 16, v{RQ+k}"); a(f"v_and_b32 v{T+2*k+1}, 0xffff0000, v{RQ+k}")
    softmax20(a, [T+i for i in range(20)], +1, T+20, F)
    a(f"v_mov_b32 v{F+10}, 0"); a(f"v_mov_b32 v{F+11}, 0")
def o_finish(a, LB, AF, F, D, flags="sc1"):
    t=V_T
    a(f"v_lshlrev_b32 v{t}, 4, v0"); a(f"v_add_u32 v{t}, {LB}, v{t}")
    for s in range(3): a(f"ds_read_b128 {vr(AF+4*s,4)}, v{t} offset:{1024*s}")
    a(f"s_lshr_b32 s{S_T0}, s2, 3")
    a(f"s_and_b32 s{S_T1}, s2, 7"); a(f"s_lshl_b32 s{S_T1}, s{S_T1}, 3"); a(f"s_add_u32 s{S_T1}, s{S_T1}, s{S_WAVE}"); a(f"s_mul_i32 s{S_T1}, s{S_T1}, 40")
    a(f"s_lshr_b32 s{S_T2}, s{S_T0}, 3"); a(f"s_mul_i32 s{S_T2}, s{S_T2}, 5"); a(f"s_add_u32 s{S_T1}, s{S_T1}, s{S_T2}")
    a(f"s_lshl_b32 s{S_T1}, s{S_T1}, 10"); a(f"s_add_u32 s{S_T1}, s{S_T1}, {WS_O}")
    a(f"s_and_b32 s{S_T0}, s{S_T0}, 7")
    a(f"s_lshl_b32 s{S_T2}, s{S_T0}, 9"); a(f"s_add_u32 s{S_T2}, s{S_T2}, s{S_T1}")
    a(f"s_lshr_b32 s{S_T3}, s{S_T0}, 1"); a(f"s_xor_b32 s{S_T0}, s{S_T0}, s{S_T3}"); a(f"s_and_b32 s{S_T0}, s{S_T0}, 1"); a(f"s_lshl_b32 s{S_T0}, s{S_T0}, 3")
    a(f"s_lshl_b32 s{S_T3}, s{S_T3}, 8"); a(f"s_add_u32 s{S_T0}, s{S_T0}, s{S_T3}"); a(f"s_add_u32 s{S_T0}, s{S_T0}, s{S_T1}"); a(f"s_add_u32 s{S_T0}, s{S_T0}, 4096")
    a(f"v_bfe_u32 v{t}, v0, 4, 1"); a(f"v_mul_u32_u24 v{t}, 20480, v{t}"); a(f"v_and_b32 v{t+1}, 15, v0"); a(f"v_lshl_add_u32 v{t}, v{t+1}, 4, v{t}")
    a(f"v_lshrrev_b32 v{t+1}, 5, v0"); a(f"v_lshl_add_u32 v{t+1}, v{t+1}, 8, v{t}")
    a(f"v_cmp_gt_u32 vcc, 32, v0")
    a("s_waitcnt lgkmcnt(0)")
    for s in range(3): a(f"v_mfma_f32_32x32x16_bf16 {vr(D,16)}, {vr(AF+4*s,4)}, {vr(F+4*s,4)}, {vr(D,16) if s else 0}")
    a(f"v_cndmask_b32 v{D+13}, v{D+8}, v{D+12}, vcc"); a(f"v_add_f32 v{D+13}, 0x358637bd, v{D+13}"); a(f"v_rcp_f32 v{D+13}, v{D+13}")
    for i in range(12): a(f"v_mul_f32 v{D+i}, v{D+i}, v{D+13}")
    for k in range(6): a(f"v_cvt_pk_bf16_f32 v{AF+k}, v{D+2*k}, v{D+2*k+1}")
    a(f"buffer_store_dwordx4 {vr(AF,4)}, v{t+1}, s[{S_WS}:{S_WS+3}], s{S_T2} offen {flags}")
    a("s_mov_b32 exec_hi, 0")
    a(f"buffer_store_dwordx2 {vr(AF+4,2)}, v{t}, s[{S_WS}:{S_WS+3}], s{S_T0} offen {flags}")
    a("s_mov_b64 exec, -1")

S_B=12
S_OUT=16
S_BO=39; S_AO=40; S_LB=41
G_P0=1; G_P1=6
G_A=24
G_R=28
G_X=29
def g2_addr(a, wo):
    t=V_T
    for i in range(5):
        a(f"v_add_u32 v{t}, {64*i}, v0"); a(f"v_mul_u32_u24 v{t+1}, 205, v{t}"); a(f"v_lshrrev_b32 v{t+1}, 11, v{t+1}")
        a(f"v_mul_u32_u24 v{t+2}, 10, v{t+1}"); a(f"v_sub_u32 v{t}, v{t}, v{t+2}"); a(f"v_lshlrev_b32 v{t}, 4, v{t}")
        a(f"v_and_b32 v{t+2}, 3, v{t+1}"); a(f"v_bfe_u32 v{t+3}, v{t+1}, 2, 1"); a(f"v_bfe_u32 v{t+4}, v{t+1}, 3, 1"); a(f"v_lshrrev_b32 v{t+5}, 4, v{t+1}")
        a(f"v_lshl_add_u32 v{t+6}, v{t+3}, 2, v{t+2}"); a(f"v_lshl_add_u32 v{t+6}, v{t+5}, 3, v{t+6}")
        if not wo:
            a(f"v_mul_u32_u24 v{G_P0+i}, 1280, v{t+1}"); a(f"v_add_u32 v{G_P0+i}, v{G_P0+i}, v{t}")
            a(f"v_lshl_add_u32 v{t+6}, v{t+4}, 4, v{t+6}"); a(f"v_mul_u32_u24 v{G_P1+i}, 1280, v{t+6}"); a(f"v_add_u32 v{G_P1+i}, v{G_P1+i}, v{t}")
        else:
            a(f"v_mul_u32_u24 v{t+7}, 20, v{t+4}"); a(f"v_add_u32 v{t+6}, v{t+6}, v{t+7}"); a(f"v_mul_u32_u24 v{G_P0+i}, 1280, v{t+6}"); a(f"v_add_u32 v{G_P0+i}, v{G_P0+i}, v{t}")
            a(f"v_bfe_u32 v{t+6}, v{t+1}, 2, 2"); a(f"v_mul_u32_u24 v{t+6}, 40, v{t+6}"); a(f"v_xor_b32 v{t+3}, v{t+3}, v{t+5}"); a(f"v_mul_u32_u24 v{t+3}, 20, v{t+3}")
            a(f"v_add3_u32 v{t+6}, v{t+6}, v{t+3}, v{t+2}"); a(f"v_add_u32 v{t+6}, 16, v{t+6}"); a(f"v_mul_u32_u24 v{G_P1+i}, 1280, v{t+6}"); a(f"v_add_u32 v{G_P1+i}, v{G_P1+i}, v{t}")
    nk = 20 if wo else 54
    a(f"v_lshlrev_b32 v{G_A}, 4, v0")
    for i in range(1,4): a(f"v_add_u32 v{G_A+i}, {nk*1024*i}, v{G_A}")
    a(f"v_lshrrev_b32 v{t}, 2, v0"); a(f"v_mul_u32_u24 v{t}, 160, v{t}"); a(f"v_and_b32 v{t+1}, 3, v0"); a(f"v_lshl_add_u32 v{t}, v{t+1}, 3, v{t}")
    a(f"s_mul_i32 s{S_LB}, s{S_WAVE}, 20480"); a(f"v_add_u32 v{G_R}, s{S_LB}, v{t}")
    a(f"s_and_b32 s{S_T0}, s2, 7"); a(f"s_lshl_b32 s{S_T0}, s{S_T0}, 4"); a(f"s_lshr_b32 s{S_T1}, s2, 6"); a(f"s_lshl_b32 s{S_T1}, s{S_T1}, 2"); a(f"s_add_u32 s{S_T0}, s{S_T0}, s{S_T1}")
    a(f"s_mul_i32 s{S_AO}, s{S_T0}, {nk}")
    if wo:
        a(f"s_sub_u32 s{S_T1}, s{S_WAVE}, 6"); a(f"s_mul_i32 s{S_BO}, s{S_T1}, {320*1280}"); a(f"s_mul_i32 s{S_T1}, s{S_T1}, 10")
    else:
        a(f"s_mul_i32 s{S_BO}, s{S_WAVE}, {288*1280}"); a(f"s_mul_i32 s{S_T1}, s{S_WAVE}, 9")
    a(f"s_add_u32 s{S_AO}, s{S_AO}, s{S_T1}"); a(f"s_lshl_b32 s{S_AO}, s{S_AO}, 10"); a(f"s_add_u32 s{S_AO}, s{S_AO}, {WS_O if wo else WS_H}")
def g2_srd(a, wo):
    p = P(3) if wo else P(7)
    a(f"s_bfe_u32 s{S_T0}, s2, 0x30003"); a(f"s_mul_i32 s{S_T0}, s{S_T0}, 160")
    a(f"s_add_u32 s{S_B}, s{p}, s{S_T0}"); a(f"s_addc_u32 s{S_B+1}, s{p+1}, 0"); a(f"s_and_b32 s{S_B+1}, s{S_B+1}, 0xffff")
    a(f"s_sub_u32 s{S_B+2}, {(640 if wo else 1728)*1280}, s{S_T0}"); a(f"s_mov_b32 s{S_B+3}, 0x20000")
def g2_step_rows(wo, s):
    if wo: return (s//5)*160 + ((s%5)*40 if s%5<4 else 0), (s%5==4)
    return 32*s, (s%3==1)
def g2_dma(wo, s, slot):
    row, pat = g2_step_rows(wo, s); Pv = G_P1 if pat else G_P0
    L=[]
    for i in range(5):
        it=[f"s_add_u32 m0, s{S_LB}, {slot*5120+i*1024}"]
        if i==0: it.insert(0, f"s_add_u32 s{S_T3}, s{S_BO}, {row*1280}")
        it.append(f"buffer_load_dwordx4 v{Pv+i}, s[{S_B}:{S_B+3}], s{S_T3} offen lds")
        L.append(it)
    return L
def g2_aload(s, R, flags="sc1"):
    L=[]
    for t in range(4):
        it=[]
        if t==0: it.append(f"s_add_u32 s{S_T2}, s{S_AO}, {s*1024}")
        it.append(f"buffer_load_dwordx4 {vr(R+4*t,4)}, v{G_A+t}, s[{S_WS}:{S_WS+3}], s{S_T2} offen {flags}")
        L.append(it)
    return L
def g2_reads(slot, R):
    return [f"ds_read_b64_tr_b16 {vr(R+4*nb+2*rd,2)}, v{G_R} offset:{slot*5120+rd*2560+nb*32}" for nb in range(5) for rd in range(2)]
def g2_mfma(Wf, Af, first):
    return [f"v_mfma_f32_16x16x32_bf16 {vr(ACC+4*(4*nb+t),4)}, {vr(Wf+4*nb,4)}, {vr(Af+4*t,4)}, {0 if first else vr(ACC+4*(4*nb+t),4)}" for nb in range(5) for t in range(4)]
def g2_x_issue(a, R):
    t=V_T
    a(f"s_and_b32 s{S_T0}, s2, 7"); a(f"s_lshl_b32 s{S_T0}, s{S_T0}, 8"); a(f"s_lshr_b32 s{S_T1}, s2, 6"); a(f"s_lshl_b32 s{S_T1}, s{S_T1}, 6"); a(f"s_add_u32 s{S_T0}, s{S_T0}, s{S_T1}")
    a(f"s_lshl_b32 s{S_T1}, s{S_WAVE}, 3"); a(f"s_add_u32 s{S_T0}, s{S_T0}, s{S_T1}"); a(f"s_mul_i32 s{S_T0}, s{S_T0}, 1280")
    a(f"s_bfe_u32 s{S_T1}, s2, 0x30003"); a(f"s_mul_i32 s{S_T1}, s{S_T1}, 160"); a(f"s_add_u32 s{S_T0}, s{S_T0}, s{S_T1}")
    for r in range(3):
        a(f"v_add_u32 v{t}, {64*r}, v0"); a(f"v_mul_u32_u24 v{t+1}, 205, v{t}"); a(f"v_lshrrev_b32 v{t+1}, 12, v{t+1}")
        a(f"v_mul_u32_u24 v{t+2}, {1280-160}, v{t+1}"); a(f"v_lshl_add_u32 v{t+2}, v{t}, 3, v{t+2}"); a(f"v_add_u32 v{G_X+r}, s{S_T0}, v{t+2}")
        if r==2:
            a(f"v_cmp_gt_u32 vcc, 32, v0"); a(f"v_mov_b32 v{t}, 0x7ffffff0"); a(f"v_cndmask_b32 v{G_X+r}, v{t}, v{G_X+r}, vcc")
        a(f"buffer_load_dwordx2 {vr(R+2*r,2)}, v{G_X+r}, s[{S_XALL}:{S_XALL+3}], 0 offen")
def g2_reduce_final(a, RX):
    t=V_T
    a(f"v_and_b32 v{t}, 15, v0"); a(f"v_mul_u32_u24 v{t}, 320, v{t}"); a(f"v_lshrrev_b32 v{t+1}, 4, v0"); a(f"v_lshrrev_b32 v{t+2}, 1, v0"); a(f"v_xor_b32 v{t+1}, v{t+1}, v{t+2}")
    a(f"v_and_b32 v{t+1}, 3, v{t+1}"); a(f"v_lshl_add_u32 v{t}, v{t+1}, 4, v{t}"); a(f"v_add_u32 v{t}, s{S_LB}, v{t}")
    for nb in range(5):
        for tb in range(4): a(f"ds_write_b128 v{t}, {vr(ACC+4*(4*nb+tb),4)} offset:{tb*5120+nb*64}")
    RA=t+1
    for r in range(3):
        a(f"v_add_u32 v{t+4}, {64*r}, v0"); a(f"v_mul_u32_u24 v{t+5}, 205, v{t+4}"); a(f"v_lshrrev_b32 v{t+5}, 12, v{t+5}")
        a(f"v_lshrrev_b32 v{t+5}, 1, v{t+5}"); a(f"v_and_b32 v{t+5}, 3, v{t+5}"); a(f"v_xor_b32 v{t+4}, v{t+4}, v{t+5}")
        a(f"v_lshlrev_b32 v{RA+r}, 4, v{t+4}")
    a(f"s_mul_i32 s{S_T0}, s{S_WAVE}, 2560")
    for r in range(3): a(f"v_add_u32 v{RA+r}, s{S_T0}, v{RA+r}")
    V2=t+4
    for r in range(3): a(f"v_add_u32 v{V2+r}, 81920, v{RA+r}")
    a(f"v_cmp_gt_u32 vcc, 32, v0"); a(f"v_cndmask_b32 v{V2+2}, 0, v{V2+2}, vcc")
    a("s_waitcnt lgkmcnt(0)"); a("s_barrier")
    B=128
    for r in range(3):
        for w in range(8): a(f"ds_read_b128 {vr(B+32*r+4*w,4)}, v{(RA if w<4 else V2)+r} offset:{(w%4)*20480}")
    a(f"s_mov_b32 s51, {LOG2E|0x80000000}")
    for r in range(3):
        a(f"s_waitcnt lgkmcnt({min(15,8*(2-r))})" + (" vmcnt(0)" if r==0 else ""))
        b=B+32*r
        for w in (1,2):
            for e in range(4): a(f"v_add_f32 v{b+e}, v{b+e}, v{b+4*w+e}"); a(f"v_add_f32 v{b+12+e}, v{b+12+e}, v{b+12+4*w+e}")
        for e in range(4): a(f"v_add_f32 v{b+e}, v{b+e}, v{b+12+e}"); a(f"v_add_f32 v{b+24+e}, v{b+24+e}, v{b+28+e}")
        for e in range(4): a(f"v_mul_f32 v{b+4+e}, s51, v{b+e}")
        for e in range(4): a(f"v_exp_f32 v{b+4+e}, v{b+4+e}"); a(f"v_mul_f32 v{b+e}, v{b+e}, v{b+24+e}")
        for e in range(4): a(f"v_add_f32 v{b+4+e}, 1.0, v{b+4+e}")
        for e in range(4): a(f"v_rcp_f32 v{b+4+e}, v{b+4+e}")
        for e in range(2): a(f"v_lshlrev_b32 v{b+8+2*e}, 16, v{RX+2*r+e}"); a(f"v_and_b32 v{b+9+2*e}, 0xffff0000, v{RX+2*r+e}")
        for e in range(4): a(f"v_fmac_f32 v{b+8+e}, v{b+e}, v{b+4+e}")
        a(f"v_cvt_pk_bf16_f32 v{b}, v{b+8}, v{b+9}"); a(f"v_cvt_pk_bf16_f32 v{b+1}, v{b+10}, v{b+11}")
        a(f"buffer_store_dwordx2 {vr(b,2)}, v{G_X+r}, s[{S_OUT}:{S_OUT+3}], 0 offen")
```

```python
import sys
from asmlib import *
from k1 import *
import hazard
NS=3
def stamp(a, i):
    a(f"s_memtime s[{76+2*i}:{77+2*i}]")
def k0():
    a=Asm(); n="k0_kernel"; a.raw(kernel_header(n))
    a("s_cmp_ge_u32 s2, 256"); a("s_cbranch_scc1 K0_END")
    load_ptrs(a); decode_ids(a)
    a("s_waitcnt lgkmcnt(0)"); srds_common(a)
    stats_issue(a, 32)
    lds_zero_init(a)
    a("s_waitcnt vmcnt(0)"); stats_compute(a, 32, 40)
    a(f"s_cmp_eq_u32 s{S_TYPE}, {T_SP}"); a("s_cbranch_scc1 K0_END")
    for gu in (1,0):
        if gu:
            a(f"s_cmp_eq_u32 s{S_TYPE}, {T_GU}"); a("s_cbranch_scc0 K0_QKV"); w_dma_addr_gu(a); srds_gu(a)
        else:
            a.label("K0_QKV"); w_dma_addr_qkv(a); srds_qkv(a)
        for i in range(3):
            a(colsum_issue(a, 64, i)); a("s_waitcnt vmcnt(0)"); a(colsum_acc(64, 80, 100, i==0))
        a("s_waitcnt lgkmcnt(0)"); a("s_barrier")
        colsum_lds_add(a, 80, 100, gu)
        a("s_waitcnt lgkmcnt(0)"); a("s_barrier")
        a(f"s_cmp_eq_u32 s{S_WAVE}, 0"); a("s_cbranch_scc0 K0_END")
        colsum_store(a, 100)
        if gu: a("s_branch K0_END")
    a.label("K0_END"); a("s_endpgm")
    return a.text()
def k1(timing=False):
    a=Asm(); n="k1_kernel"; a.raw(kernel_header(n))
    a("s_cmp_ge_u32 s2, 256"); a("s_cbranch_scc1 K1_END")
    if timing: stamp(a,0); a("s_memrealtime s[90:91]")
    load_ptrs(a); decode_ids(a); x_dma_addr(a)
    a(f"s_mov_b32 s{S_WOFF}, 0")
    a(f"s_cmp_eq_u32 s{S_TYPE}, {T_SP}"); a("s_cbranch_scc1 K1_END")
    for gu in (1,0):
        lp=Loop(gu, NS)
        if gu:
            a(f"s_cmp_eq_u32 s{S_TYPE}, {T_GU}"); a("s_cbranch_scc0 K1_QKV"); w_dma_addr_gu(a)
            a("s_waitcnt lgkmcnt(0)"); srds_common(a); srds_gu(a)
        else:
            a.label("K1_QKV"); w_dma_addr_qkv(a)
            a("s_waitcnt lgkmcnt(0)"); srds_common(a); srds_qkv(a); phi_dma(a)
        for c in range(2): a(lp.dma(c))
        lp.read_addr(a)
        if not gu: lds_zero_init(a)
        for c in range(2,NS): a(lp.dma(c))
        a(f"s_waitcnt vmcnt({4*(NS-1)}) lgkmcnt(0)"); a("s_barrier")
        if timing: stamp(a,1)
        lp.emit(a)
        if timing: stamp(a,2)
        tag = "GU" if gu else "QKV"
        epi_load_rs(a)
        a(f"s_cmp_eq_u32 s{S_WAVE}, 0"); a(f"s_cbranch_scc0 K1_{tag}_NG")
        colsum_gather(a, 200, V_T+2)
        a.label(f"K1_{tag}_NG")
        if not gu:
            a(f"s_cmp_eq_u32 s{S_TYPE}, {T_KV}"); a("s_cbranch_scc1 K1_PHIKV")
            phi_frags(a, False); a("s_branch K1_PHID")
            a.label("K1_PHIKV"); phi_frags(a, True); a.label("K1_PHID")
        a("s_waitcnt lgkmcnt(0)"); a("s_barrier")
        epi_read_cs(a, gu)
        a("s_waitcnt vmcnt(0) lgkmcnt(0)")
        if gu:
            epi_gu(a); a("s_branch K1_FIN")
        else:
            a(f"s_cmp_eq_u32 s{S_TYPE}, {T_KV}"); a("s_cbranch_scc1 K1_EKV")
            epi_q(a); a("s_branch K1_FIN")
            a.label("K1_EKV"); epi_kv(a)
    a.label("K1_FIN")
    if timing:
        stamp(a,3); a("s_waitcnt vmcnt(0)"); stamp(a,4); a("s_memrealtime s[92:93]"); a("s_waitcnt lgkmcnt(0)")
        for i in range(1,5): a(f"s_sub_u32 s{76+2*i}, s{76+2*i}, s76"); a(f"v_mov_b32 v{3+i}, s{76+2*i}")
        a("v_mov_b32 v8, s90"); a("v_mov_b32 v9, s92"); a(f"v_mov_b32 v10, s{S_TYPE}"); a("v_mov_b32 v11, 0")
        a(f"s_lshl_b32 s{S_T0}, s2, 3"); a(f"s_add_u32 s{S_T0}, s{S_T0}, s{S_WAVE}"); a(f"s_lshl_b32 s{S_T0}, s{S_T0}, 5"); a(f"s_add_u32 s{S_T0}, s{S_T0}, {WS_DBG}")
        a("v_mov_b32 v3, 0"); a("s_mov_b64 exec, 1")
        a(f"buffer_store_dwordx4 v[4:7], v3, s[{S_WS}:{S_WS+3}], s{S_T0} offen")
        a(f"buffer_store_dwordx4 v[8:11], v3, s[{S_WS}:{S_WS+3}], s{S_T0} offen offset:16")
    a.label("K1_END"); a("s_endpgm")
    return a.text()
from k2 import *
def k2a():
    a=Asm(); n="k2a_kernel"; a.raw(kernel_header(n))
    a("s_cmp_ge_u32 s2, 256"); a("s_cbranch_scc1 K2A_END")
    load_ptrs(a); decode_ids(a)
    a("s_waitcnt lgkmcnt(0)"); srds_common(a)
    o_issue(a, 32, 64)
    a("s_waitcnt vmcnt(0)")
    o_kvz(a, 32, 0)
    o_softmax(a, 64, 80, 124)
    a("s_waitcnt lgkmcnt(0)"); a("s_barrier")
    o_finish(a, 0, 136, 124, 148)
    a.label("K2A_END"); a("s_endpgm")
    return a.text()
def k2b(timing=False):
    a=Asm(); n="k2b_kernel"; a.raw(kernel_header(n))
    a("s_cmp_ge_u32 s2, 256"); a("s_cbranch_scc1 K2B_END")
    load_ptrs(a); decode_ids(a)
    AB=[112,128,144]; WF=[160,180]; RX=232
    for wo in (0,1):
        if not wo:
            a(f"s_cmp_ge_u32 s{S_WAVE}, 6"); a("s_cbranch_scc1 K2B_WO")
        else: a.label("K2B_WO")
        g2_addr(a, wo)
        a("s_waitcnt lgkmcnt(0)"); srds_common(a); g2_srd(a, wo); srd(a, S_OUT, P(8), 2048*1280)
        g2_x_issue(a, RX)
        n_s = 10 if wo else 9
        for s in range(3): a(g2_dma(wo, s, s%4)); a(g2_aload(s, AB[s%3]))
        for s in range(n_s):
            rem = min(n_s-1, s+2) - s
            a(f"s_waitcnt vmcnt({9*rem})")
            a(g2_reads(s%4, WF[s&1]))
            if s+3 < n_s: a(g2_dma(wo, s+3, (s+3)%4))
            a("s_waitcnt lgkmcnt(0)")
            a(g2_mfma(WF[s&1], AB[s%3], s==0))
            if s+3 < n_s: a(g2_aload(s+3, AB[s%3]))
        if not wo: a("s_branch K2B_RED")
    a.label("K2B_RED")
    a("s_nop 7")
    a("s_barrier")
    g2_reduce_final(a, RX)
    a.label("K2B_END"); a("s_endpgm")
    return a.text()
HDR = open("recurrent_scan__linear_kernel_hedgehog__swiglu_ffn__prompt.s.ref").read().split("; Override launch")[0]
def write(path, ks):
    out=HDR
    for n,_,_,l in ks: out+=f"; @launch kernel={n} grid=(256,1,1) block=(512,1,1) lds={l}\n"
    out+='.amdgcn_target "amdgcn-amd-amdhsa--gfx950"\n.text\n'
    for n,t,_,_ in ks: out+=hazard.fix(t, True)+"\n"
    out+='.section .rodata,"a"\n'
    for n,_,v,_ in ks: out+=kernel_desc(n, v)
    open(path,"w").write(out)
if __name__=="__main__":
    write("v1t.s", [("k0_kernel", k0(), 256, LDS_P1), ("k1_kernel", k1(True), 256, LDS_P1), ("k2a_kernel", k2a(), 256, 4096), ("k2b_kernel", k2b(), 256, 163840)])
    write("v1.s", [("k0_kernel", k0(), 256, LDS_P1), ("k1_kernel", k1(False), 256, LDS_P1), ("k2a_kernel", k2a(), 256, 4096), ("k2b_kernel", k2b(), 256, 163840)])
```

```python
from gen_v1 import *
def empty(n):
    a=Asm(); a.raw(kernel_header(n)); a("s_endpgm"); return a.text()
def chain(n, ptr_off, nld, stride, base=0):
    a=Asm(); a.raw(kernel_header(n))
    a("s_cmp_ge_u32 s2, 1"); a(f"s_cbranch_scc1 {n}_END")
    a(f"s_load_dwordx2 s[4:5], s[0:1], {ptr_off}"); a("s_waitcnt lgkmcnt(0)")
    srd(a, 8, 4, base+nld*stride+64)
    a(f"v_mov_b32 v1, {base}"); a("s_mov_b64 exec, 1"); a(f"s_mov_b32 s12, {nld}")
    a.label(f"{n}_L")
    a("buffer_load_dword v2, v1, s[8:11], 0 offen"); a("s_waitcnt vmcnt(0)")
    a("v_and_b32 v2, 0, v2"); a(f"v_add_u32 v1, {stride}, v1"); a("v_add_u32 v1, v1, v2")
    a("s_sub_u32 s12, s12, 1"); a("s_cmp_lg_u32 s12, 0"); a(f"s_cbranch_scc1 {n}_L")
    a.label(f"{n}_END"); a("s_endpgm"); return a.text()
base=[("k0_kernel", k0(), 256, LDS_P1), ("k1_kernel", k1(False), 256, LDS_P1), ("k2a_kernel", k2a(), 256, 4096), ("k2b_kernel", k2b(), 256, 163840)]
write("pA.s", base)
write("pB.s", base+[("e1_kernel", empty("e1_kernel"), 32, 0), ("e2_kernel", empty("e2_kernel"), 32, 0)])
write("pC.s", [("c1_kernel", chain("c1_kernel", 32, 100, 4224*5), 32, 0)]+base)
write("pD.s", [("c1_kernel", chain("c1_kernel", 80, 100, 4224*5, 0x8000000), 32, 0)]+base)
write("pE.s", [("c1_kernel", chain("c1_kernel", 32, 1, 4224*5), 32, 0)]+base)
write("pF.s", [("c1_kernel", chain("c1_kernel", 64, 100, 4224*5), 32, 0)]+base)
```

```python
import re
TRANS = ("v_exp_f32","v_log_f32","v_rcp_f32","v_rsq_f32","v_sqrt_f32","v_sin_f32","v_cos_f32","v_rcp_iflag_f32")
def regs(tok):
    tok = tok.strip()
    neg = tok.lstrip("-|").rstrip("|")
    m = re.fullmatch(r"abs\((.*)\)", neg)
    if m: neg = m.group(1)
    m = re.fullmatch(r"([vsa])(\d+)", neg)
    if m: return [(m.group(1), int(m.group(2)))]
    m = re.fullmatch(r"([vsa])\[(\d+):(\d+)\]", neg)
    if m: return [(m.group(1), i) for i in range(int(m.group(2)), int(m.group(3))+1)]
    if neg == "vcc": return [("s","vcc")]
    if neg in ("vcc_lo","vcc_hi"): return [("s","vcc")]
    if neg == "exec" or neg in ("exec_lo","exec_hi"): return [("s","exec")]
    if neg == "m0": return [("s","m0")]
    return []
def parse(line):
    s = line.split(";")[0].strip()
    if not s or s.endswith(":") or s.startswith("."): return None
    parts = s.split(None, 1)
    op = parts[0]; rest = parts[1] if len(parts) > 1 else ""
    ops=[]; depth=0; cur=""
    for ch in rest:
        if ch=="[": depth+=1
        if ch=="]": depth-=1
        if ch=="," and depth==0: ops.append(cur.strip()); cur=""
        else: cur+=ch
    if cur.strip(): ops.append(cur.strip())
    if ops:
        last = ops[-1].split()
        ops[-1] = last[0] if last else ""
        mods = " ".join(last[1:])
    else: mods = ""
    return op, ops, mods
def classify(op, ops, mods):
    d, s = [], []
    R = lambda i: regs(ops[i]) if i < len(ops) else []
    allr = lambda a: sum((regs(x) for x in ops[a:]), [])
    kind = "other"
    if op.startswith("v_mfma"):
        kind = "mfma"; d = R(0); s = allr(1)
    elif op.startswith("v_cmp"):
        kind = "valu"; d = R(0); s = allr(1)
        if op.startswith("v_cmpx"): d = d + [("s","exec")]
    elif op in ("v_readfirstlane_b32","v_readlane_b32"):
        kind = "valu"; d = R(0); s = allr(1)
    elif op.startswith("v_permlane") and "swap" in op:
        kind = "valu"; d = R(0)+R(1); s = R(0)+R(1)
    elif op.startswith("v_add_co") or op.startswith("v_sub_co") or op.startswith("v_addc_co") or op.startswith("v_subb_co"):
        kind = "valu"; d = R(0)+R(1); s = allr(2)
    elif op.startswith("v_"):
        kind = "valu"; d = R(0); s = allr(1)
        if op.startswith(("v_fmac","v_dot2c","v_writelane","v_mac")): s = s + R(0)
        if op.startswith("v_cndmask") and len(ops) == 3: s = s + [("s","vcc")]
    elif op.startswith("buffer_") or op.startswith("global_"):
        kind = "vmem"
        if "lds" in mods.split() or "_lds_" in op: s = allr(0) + [("s","m0")]
        elif "store" in op or ("atomic" in op and "sc0" not in mods.split()): s = allr(0)
        elif op in ("buffer_wbl2","buffer_inv"): pass
        else: d = R(0); s = allr(1)
    elif op.startswith("ds_"):
        kind = "ds"
        if "write" in op or op.startswith("ds_add") : s = allr(0)
        else: d = R(0); s = allr(1)
    elif op.startswith("s_"):
        kind = "salu"
        if op.startswith(("s_cmp","s_cbranch","s_branch","s_waitcnt","s_barrier","s_nop","s_endpgm","s_sleep","s_setprio")): s = allr(0)
        else: d = R(0); s = allr(1)
        if "saveexec" in op: d = d + [("s","exec")]
    return kind, d, s
def passes(op):
    if "32x32x16" in op or "32x32x8" in op: return 8
    if "16x16x32" in op or "16x16x16" in op: return 4
    raise ValueError(op)
def fix(text, verbose=False):
    out = []
    hist = []
    pos = 0
    ninserted = 0
    for line in text.split("\n"):
        p = parse(line)
        if p is None:
            out.append(line); continue
        op, ops, mods = p
        kind, d, s = classify(op, ops, mods)
        need = 0
        isdpp = "_dpp" in op or "row_" in mods or "quad_perm" in mods
        for (hp, hk, hop, hd, hs, hops) in hist:
            dist = pos - hp - 1
            req = 0
            hds = set(hd)
            if hk == "mfma":
                n = passes(hop)
                if kind == "mfma":
                    C = regs(ops[3]); AB = regs(ops[1]) + regs(ops[2])
                    if hds & set(AB): req = max(req, {4:8, 8:12}[n])
                    if hds & set(C):
                        if not (regs(ops[3]) == hd and passes(op) == n): req = max(req, {4:6, 8:10}[n])
                    elif hds & set(d): req = max(req, {4:8, 8:12}[n])
                elif kind in ("valu","vmem","ds"):
                    if hds & (set(s) | set(d)): req = max(req, {4:8, 8:12}[n])
                    if kind == "valu":
                        hC = set(regs(hops[3]))
                        if hC & set(d): req = max(req, {4:3, 8:7}[n])
            elif hk == "valu":
                hv = {r for r in hds if r[0] in "va"}; hsg = {r for r in hds if r[0] == "s"}
                if kind == "mfma" and hv & set(s): req = max(req, 2)
                if kind == "mfma" and ("s","exec") in hsg: req = max(req, 4)
                if kind == "valu":
                    if hop.startswith(TRANS) and not op.startswith(TRANS) and hv & set(s): req = max(req, 1)
                    if op.startswith("v_permlane") and hv & set(s): req = max(req, 2)
                    if isdpp and hv & set(s): req = max(req, 2)
                    if op in ("v_readfirstlane_b32","v_readlane_b32") and hv & set(s): req = max(req, 1)
                    if hsg & set(s):
                        req = max(req, 4 if op in ("v_readlane_b32","v_writelane_b32") else 2)
                    if "sdwa" in hop and hv & set(s): req = max(req, 1)
                    if isdpp and ("s","exec") in hsg: req = max(req, 5)
                if kind == "vmem" and hsg & set(s): req = max(req, 5)
                if kind == "salu" and hsg & set(s): req = max(req, 1)
            elif hk == "salu":
                if ("s","m0") in hds and kind in ("vmem","ds") and ("s","m0") in s: req = max(req, 1)
            elif hk == "vmem":
                if ("store" in hop or "atomic" in hop) and ("x4" in hop or "x3" in hop):
                    data = set(regs(hops[0])) if hop.startswith("buffer") else set(regs(hops[1]))
                    if data & set(d): req = max(req, 2 if kind == "valu" else 1)
            if req - dist > need: need = req - dist
        while need > 0:
            k = min(need, 16)
            out.append(f"    s_nop {k-1}"); pos += k; need -= k; ninserted += 1
        out.append(line)
        if op == "s_nop": pos += int(ops[0]) + 1
        else:
            hist.append((pos, kind, op, d, s, ops)); pos += 1
        hist = [h for h in hist if pos - h[0] <= 22]
    if verbose: print("hazard: inserted", ninserted, "s_nop")
    return "\n".join(out)
```

```python
from asmlib import *

WS_FLAG = 0x0
WS_RS   = 0x8000
WS_CS   = 0x10000
WS_PQ   = 0x100000
WS_KVP  = 0x400000
WS_O    = 0x600000
WS_WT   = 0xA00000
WS_H    = 0x1000000
WS_DBG  = 0x2000000
WS_SIZE = 0x10000000

WSLOT = 24576; XBASE = 49152; XSLOT = 32768
L_WPHI = 147456
L_ZERO = L_WPHI + 6400
L_CS2  = L_ZERO + 800
L_CSW  = L_CS2 + 768
LDS_P1 = L_CSW + 8*768
KVROW = 528
assert LDS_P1 <= 163840

S_X=8; S_W0=12; S_W1=16; S_WS=20; S_XALL=24; S_PHI=28
S_WAVE=32; S_RT=33; S_CT=34; S_TYPE=35; S_CTG=36; S_TG=37; S_FG=38
S_M0X=39; S_M0W=40; S_WOFF=41; S_EXC=42
S_CSOFF=44; S_T0=45; S_T1=46; S_T2=47; S_T3=48
S_WSTR=49
S_ROW=50; S_L2E=51
S_PTR=52
S_SAVE=74
S_WD=76
S_SLOT=80; S_TAG=82
P = lambda i: S_PTR + 2*i
T_Q, T_KV, T_GU, T_SP = 0, 1, 2, 3

V_X=1
V_W=5
V_C=8
V_XR=10
V_WR=14
V_T=16
ACC=32; XB=[128,144]; WB=[160,172]; FREE=184
LOG2E = 0x3fb8aa3b

class VM:
    def __init__(self): self.ops=[]
    def add(self, tag, sure=True): self.ops.append((tag, sure))
    def n_after(self, tags):
        last=max(i for i,(t,_) in enumerate(self.ops) if t in tags)
        return min(63, sum(1 for t,s in self.ops[last+1:] if s))

def load_ptrs(a):
    a(f"s_load_dwordx16 s[{S_PTR}:{S_PTR+15}], s[0:1], 0")
    a(f"s_load_dwordx4 s[{S_PTR+16}:{S_PTR+19}], s[0:1], 64")
    a(f"s_load_dwordx2 s[{S_PTR+20}:{S_PTR+21}], s[0:1], 80")

def decode_ids(a):
    a(f"v_lshrrev_b32 v{V_T}, 6, v0"); a(f"v_and_b32 v0, 63, v0")
    a(f"s_and_b32 s{S_T0}, s2, 7"); a(f"s_lshr_b32 s{S_T1}, s2, 3")
    a(f"v_readfirstlane_b32 s{S_WAVE}, v{V_T}")
    a(f"s_and_b32 s{S_RT}, s{S_T0}, 1"); a(f"s_lshl_b32 s{S_RT}, s{S_RT}, 2"); a(f"s_and_b32 s{S_T2}, s{S_T1}, 3"); a(f"s_add_u32 s{S_RT}, s{S_RT}, s{S_T2}")
    a(f"s_lshr_b32 s{S_T0}, s{S_T0}, 1")
    a(f"s_lshr_b32 s{S_SLOT}, s{S_T1}, 2")
    a(f"s_mul_i32 s{S_CT}, s{S_T0}, 5"); a(f"s_cmp_eq_u32 s{S_T0}, 3"); a(f"s_cselect_b32 s{S_T2}, 4, 3")
    a(f"s_add_u32 s{S_CT}, s{S_CT}, s{S_SLOT}"); a(f"s_sub_u32 s{S_CT}, s{S_CT}, s{S_T2}")
    a(f"s_add_u32 s{S_CTG}, s{S_CT}, 12"); a(f"s_mov_b32 s{S_TYPE}, {T_GU}")
    a(f"s_lshl_b32 s{S_T2}, s{S_SLOT}, 2"); a(f"s_add_u32 s{S_T2}, s{S_T2}, s{S_T0}"); a(f"s_cmp_ge_u32 s{S_T2}, 30"); a(f"s_cselect_b32 s{S_TYPE}, {T_SP}, s{S_TYPE}")
    a(f"s_lshl_b32 s{S_T2}, s{S_T0}, 1"); a(f"s_add_u32 s{S_T2}, s{S_T2}, s{S_SLOT}"); a(f"s_sub_u32 s{S_T2}, s{S_T2}, 1")
    a(f"s_add_u32 s{S_T3}, s{S_T2}, 4")
    a(f"s_cmp_lt_u32 s{S_SLOT}, 3"); a(f"s_cselect_b32 s{S_CT}, s{S_T2}, s{S_CT}"); a(f"s_cselect_b32 s{S_CTG}, s{S_T3}, s{S_CTG}"); a(f"s_cselect_b32 s{S_TYPE}, {T_KV}, s{S_TYPE}")
    a(f"s_cmp_eq_u32 s{S_SLOT}, 0"); a(f"s_cselect_b32 s{S_CT}, s{S_T0}, s{S_CT}"); a(f"s_cselect_b32 s{S_CTG}, s{S_T0}, s{S_CTG}"); a(f"s_cselect_b32 s{S_TYPE}, {T_Q}, s{S_TYPE}")
    a(f"s_and_b32 s{S_TG}, s{S_WAVE}, 3"); a(f"s_lshr_b32 s{S_FG}, s{S_WAVE}, 2")

def x_dma_addr(a):
    t=V_T
    a(f"v_lshrrev_b32 v{t}, 3, v0"); a(f"s_lshl_b32 s{S_T0}, s{S_WAVE}, 5"); a(f"v_add_u32 v{t}, s{S_T0}, v{t}"); a(f"v_mul_u32_u24 v{t}, 1280, v{t}")
    a(f"v_lshrrev_b32 v{t+1}, 4, v0"); a(f"v_xor_b32 v{t+1}, v{t+1}, v0"); a(f"v_and_b32 v{t+1}, 7, v{t+1}"); a(f"v_lshlrev_b32 v{t+1}, 4, v{t+1}")
    a(f"v_add_u32 v{V_X}, v{t}, v{t+1}"); a(f"v_xor_b32 v{t+1}, 64, v{t+1}"); a(f"v_add_u32 v{V_X+1}, v{t}, v{t+1}"); a(f"v_add_u32 v{V_X+1}, 10240, v{V_X+1}")
    a(f"v_add_u32 v{V_X+2}, 20480, v{V_X}"); a(f"v_add_u32 v{V_X+3}, 20480, v{V_X+1}")
    a(f"s_lshl_b32 s{S_M0X}, s{S_WAVE}, 12")
def gu_colperm(a, ch, tmp):
    a(f"v_cmp_le_u32 vcc, 6, v{ch}"); a(f"v_cndmask_b32 v{tmp}, 0, 2, vcc"); a(f"v_cmp_le_u32 vcc, 10, v{ch}"); a(f"v_cndmask_b32 v{tmp}, v{tmp}, -4, vcc")
    a(f"v_add_u32 v{ch}, v{ch}, v{tmp}")
def w_dma_addr_gu(a):
    t=V_T
    a(f"s_mul_i32 s{S_T0}, s{S_TG}, {16*3456}")
    for i in range(3):
        a(f"v_add_u32 v{t+3}, {64*i}, v0"); a(f"v_mul_u32_u24 v{t}, 171, v{t+3}"); a(f"v_lshrrev_b32 v{t}, 11, v{t}")
        a(f"v_mul_u32_u24 v{t+1}, 12, v{t}"); a(f"v_sub_u32 v{t+1}, v{t+3}, v{t+1}")
        a(f"v_lshrrev_b32 v{t+2}, 2, v{t}"); a(f"v_and_b32 v{t+2}, 2, v{t+2}"); a(f"v_xor_b32 v{t+1}, v{t+1}, v{t+2}")
        gu_colperm(a, t+1, t+2)
        a(f"v_mul_u32_u24 v{t}, 3456, v{t}"); a(f"v_lshl_add_u32 v{t}, v{t+1}, 4, v{t}"); a(f"v_add_u32 v{V_W+i}, s{S_T0}, v{t}")
    a(f"s_mul_i32 s{S_M0W}, s{S_WAVE}, 3072")
    a(f"s_mov_b32 s{S_WSTR}, {64*3456}")
def cs_addr_gu(a):
    t=V_T
    a(f"v_and_b32 v{t+1}, 15, v0"); gu_colperm(a, t+1, t+2)
    a(f"v_lshrrev_b32 v{t}, 4, v0"); a(f"v_mul_u32_u24 v{t}, 3456, v{t}"); a(f"v_lshl_add_u32 v{t}, v{t+1}, 4, v{t}")
    a(f"s_and_b32 s{S_T0}, s{S_RT}, 3"); a(f"s_mul_i32 s{S_T0}, s{S_T0}, {8*3456}"); a(f"v_add_u32 v{V_C}, s{S_T0}, v{t}"); a(f"v_mov_b32 v{V_C+1}, v{V_C}")
    a(f"s_mov_b32 s{S_EXC}, 0x0fff0fff"); a(f"s_mov_b32 s{S_EXC+1}, 0x0fff0fff")
    a(f"s_lshr_b32 s{S_T0}, s{S_WAVE}, 1"); a(f"s_mul_i32 s{S_CSOFF}, s{S_T0}, {32*3456}"); a(f"s_and_b32 s{S_T0}, s{S_WAVE}, 1"); a(f"s_mul_i32 s{S_T0}, s{S_T0}, {4*3456}"); a(f"s_add_u32 s{S_CSOFF}, s{S_CSOFF}, s{S_T0}")
def kv_coladj(a, ch, dst, tmp):
    a(f"s_cmp_eq_u32 s{S_TYPE}, {T_KV}"); a(f"s_cselect_b32 s{S_T1}, {1280-160}, 0")
    a(f"v_mov_b32 v{tmp}, s{S_T1}"); a(f"v_cmp_le_u32 vcc, 10, v{ch}"); a(f"v_cndmask_b32 v{tmp}, 0, v{tmp}, vcc"); a(f"v_add_u32 v{dst}, v{dst}, v{tmp}")
def w_dma_addr_qkv(a):
    t=V_T
    a(f"s_mul_i32 s{S_T0}, s{S_WAVE}, {8*3840}")
    for i in range(3):
        a(f"v_add_u32 v{t+3}, {64*i}, v0"); a(f"v_mul_u32_u24 v{t}, 205, v{t+3}"); a(f"v_lshrrev_b32 v{t}, 12, v{t}")
        a(f"v_mul_u32_u24 v{t+1}, 20, v{t}"); a(f"v_sub_u32 v{t+1}, v{t+3}, v{t+1}")
        a(f"v_mul_u32_u24 v{t}, 3840, v{t}"); a(f"v_lshl_add_u32 v{t}, v{t+1}, 4, v{t}")
        kv_coladj(a, t+1, t, t+2)
        a(f"v_add_u32 v{V_W+i}, s{S_T0}, v{t}")
    a(f"s_mul_i32 s{S_M0W}, s{S_WAVE}, 2592")
    a(f"s_mov_b32 s{S_WSTR}, {64*3840}")
def cs_addr_qkv(a):
    t=V_T
    a(f"v_and_b32 v{t+1}, 31, v0"); a(f"v_lshrrev_b32 v{t}, 5, v0"); a(f"v_mul_u32_u24 v{t}, 3840, v{t}"); a(f"v_lshl_add_u32 v{t}, v{t+1}, 4, v{t}")
    kv_coladj(a, t+1, t, t+2)
    a(f"s_and_b32 s{S_T0}, s{S_RT}, 3"); a(f"s_mul_i32 s{S_T0}, s{S_T0}, {8*3840}"); a(f"v_add_u32 v{V_C}, s{S_T0}, v{t}"); a(f"v_add_u32 v{V_C+1}, 7680, v{V_C}")
    a(f"s_mov_b32 s{S_EXC}, 0xfffff"); a(f"s_mov_b32 s{S_EXC+1}, 0xfffff")
    a(f"s_lshr_b32 s{S_T0}, s{S_WAVE}, 1"); a(f"s_mul_i32 s{S_CSOFF}, s{S_T0}, {32*3840}"); a(f"s_and_b32 s{S_T0}, s{S_WAVE}, 1"); a(f"s_mul_i32 s{S_T0}, s{S_T0}, {4*3840}"); a(f"s_add_u32 s{S_CSOFF}, s{S_CSOFF}, s{S_T0}")

def srds_common(a):
    a(f"s_mul_i32 s{S_T0}, s{S_RT}, 327680"); a(f"s_add_u32 s{S_X}, s{P(0)}, s{S_T0}"); a(f"s_addc_u32 s{S_X+1}, s{P(0)+1}, 0")
    a(f"s_and_b32 s{S_X+1}, s{S_X+1}, 0xffff"); a(f"s_mov_b32 s{S_X+2}, 327680"); a(f"s_mov_b32 s{S_X+3}, 0x20000")
    srd(a, S_XALL, P(0), 2048*1280)
    srd(a, S_WS, P(10), WS_SIZE)
def srds_gu(a):
    a(f"s_mul_i32 s{S_T0}, s{S_CT}, 192")
    for d, p in ((S_W0, P(5)), (S_W1, P(6))):
        a(f"s_add_u32 s{d}, s{p}, s{S_T0}"); a(f"s_addc_u32 s{d+1}, s{p+1}, 0"); a(f"s_and_b32 s{d+1}, s{d+1}, 0xffff")
        a(f"s_sub_u32 s{d+2}, {640*3456}, s{S_T0}"); a(f"s_mov_b32 s{d+3}, 0x20000")
    a(f"s_cmp_eq_u32 s{S_FG}, 0"); a(f"s_cselect_b32 s{S_WD}, s{S_W0}, s{S_W1}"); a(f"s_cselect_b32 s{S_WD+1}, s{S_W0+1}, s{S_W1+1}")
    a(f"s_mov_b32 s{S_WD+2}, s{S_W0+2}"); a(f"s_mov_b32 s{S_WD+3}, 0x20000")
def srds_qkv(a):
    a(f"s_mul_i32 s{S_T0}, s{S_CT}, 320"); a(f"s_mul_i32 s{S_T1}, s{S_CT}, 160"); a(f"s_add_u32 s{S_T1}, s{S_T1}, 1280")
    a(f"s_cmp_eq_u32 s{S_TYPE}, {T_KV}"); a(f"s_cselect_b32 s{S_T0}, s{S_T1}, s{S_T0}")
    for d in (S_W0, S_W1, S_WD):
        a(f"s_add_u32 s{d}, s{P(1)}, s{S_T0}"); a(f"s_addc_u32 s{d+1}, s{P(1)+1}, 0"); a(f"s_and_b32 s{d+1}, s{d+1}, 0xffff")
        a(f"s_sub_u32 s{d+2}, {640*3840}, s{S_T0}"); a(f"s_mov_b32 s{d+3}, 0x20000")
    a(f"s_mul_i32 s{S_T0}, s{S_CT}, 6400"); a(f"s_mul_i32 s{S_T1}, s{S_CT}, 3200"); a(f"s_cmp_eq_u32 s{S_TYPE}, {T_KV}"); a(f"s_cselect_b32 s{S_T0}, s{S_T1}, s{S_T0}")
    a(f"s_add_u32 s{S_PHI}, s{P(2)}, s{S_T0}"); a(f"s_addc_u32 s{S_PHI+1}, s{P(2)+1}, 0"); a(f"s_and_b32 s{S_PHI+1}, s{S_PHI+1}, 0xffff")
    a(f"s_sub_u32 s{S_PHI+2}, 25600, s{S_T0}"); a(f"s_mov_b32 s{S_PHI+3}, 0x20000")

def stats_issue(a, R, vm=None):
    a(f"s_and_b32 s{S_T0}, s2, 1"); a(f"s_lshl_b32 s{S_T0}, s{S_T0}, 7"); a(f"s_bfe_u32 s{S_T1}, s2, 0x20001"); a(f"s_lshl_b32 s{S_T1}, s{S_T1}, 5")
    a(f"s_add_u32 s{S_T0}, s{S_T0}, s{S_T1}"); a(f"s_lshr_b32 s{S_T1}, s2, 3"); a(f"s_add_u32 s{S_T0}, s{S_T0}, s{S_T1}")
    a(f"s_lshl_b32 s{S_T0}, s{S_T0}, 3"); a(f"s_add_u32 s{S_ROW}, s{S_T0}, s{S_WAVE}")
    a(f"s_mul_i32 s{S_T0}, s{S_ROW}, 1280")
    a(f"v_lshlrev_b32 v{V_T}, 4, v0"); a(f"v_lshlrev_b32 v{V_T+1}, 2, v0")
    a(f"buffer_load_dwordx4 {vr(R,4)}, v{V_T}, s[{S_XALL}:{S_XALL+3}], s{S_T0} offen")
    a(f"buffer_load_dword v{R+4}, v{V_T+1}, s[{S_XALL}:{S_XALL+3}], s{S_T0} offen offset:1024")
    if vm: vm.add("stats"); vm.add("stats")
def wave_sum(a, v, sdst):
    for sh in (1,2,4,8): a(f"v_add_f32_dpp v{v}, v{v}, v{v} row_shr:{sh} row_mask:0xf bank_mask:0xf bound_ctrl:0")
    a(f"v_add_f32_dpp v{v}, v{v}, v{v} row_bcast:15 row_mask:0xa bank_mask:0xf")
    a(f"v_add_f32_dpp v{v}, v{v}, v{v} row_bcast:31 row_mask:0xc bank_mask:0xf")
    a(f"v_readlane_b32 s{sdst}, v{v}, 63")
def stats_compute(a, R, T, vm=None, flags="sc1"):
    for i in range(5):
        a(f"v_lshlrev_b32 v{T+2*i}, 16, v{R+i}"); a(f"v_and_b32 v{T+2*i+1}, 0xffff0000, v{R+i}")
    s=T+10
    a(f"v_add_f32 v{s}, v{T}, v{T+1}")
    for i in range(2,10): a(f"v_add_f32 v{s}, v{s}, v{T+i}")
    wave_sum(a, s, S_T0)
    a(f"v_mov_b32 v{s+1}, 0x3acccccd"); a(f"v_mul_f32 v{s+1}, s{S_T0}, v{s+1}")
    for i in range(10): a(f"v_sub_f32 v{T+i}, v{T+i}, v{s+1}")
    a(f"v_mul_f32 v{s}, v{T}, v{T}")
    for i in range(1,10): a(f"v_fmac_f32 v{s}, v{T+i}, v{T+i}")
    wave_sum(a, s, S_T0)
    a(f"v_mov_b32 v{s}, 0x3acccccd"); a(f"v_mul_f32 v{s}, s{S_T0}, v{s}")
    a(f"v_cvt_pk_bf16_f32 v{s}, v{s}, v{s+1}")
    a(f"v_and_b32 v{T}, 0xffff0000, v{s}"); a(f"v_lshlrev_b32 v{s}, 16, v{s}")
    a(f"v_add_f32 v{s}, 0x3727c5ac, v{s}"); a(f"v_cvt_pk_bf16_f32 v{s}, v{s}, v{s}"); a(f"v_lshlrev_b32 v{s}, 16, v{s}")
    a(f"v_sqrt_f32 v{s}, v{s}"); a(f"v_cvt_pk_bf16_f32 v{s}, v{s}, v{s}"); a(f"v_lshlrev_b32 v{T+1}, 16, v{s}")
    a(f"s_lshl_b32 s{S_T0}, s{S_ROW}, 3"); a(f"s_add_u32 s{S_T0}, s{S_T0}, {WS_RS}"); a(f"v_mov_b32 v{s}, 0")
    a("s_mov_b64 exec, 1")
    a(f"buffer_store_dwordx2 {vr(T,2)}, v{s}, s[{S_WS}:{S_WS+3}], s{S_T0} offen {flags}")
    a("s_mov_b64 exec, -1")
    if vm: vm.add("statst")

def colsum_issue(R, i):
    L=[]
    if i: L += [f"s_lshl_b32 s{S_T0}, s{S_WSTR}, 1", f"s_add_u32 s{S_CSOFF}, s{S_CSOFF}, s{S_T0}"]
    L += [f"s_mov_b64 exec, s[{S_EXC}:{S_EXC+1}]",
          f"buffer_load_dwordx4 {vr(R,4)}, v{V_C}, s[{S_W0}:{S_W0+3}], s{S_CSOFF} offen",
          f"buffer_load_dwordx4 {vr(R+4,4)}, v{V_C+1}, s[{S_W1}:{S_W1+3}], s{S_CSOFF} offen",
          "s_mov_b64 exec, -1"]
    return L
def colsum_acc(R, A, T, first, gu):
    L=[]
    for i in range(8):
        k = i if gu else (i&3)
        if first and (gu or i<4):
            L += [f"v_lshlrev_b32 v{A+2*k}, 16, v{R+i}", f"v_and_b32 v{A+2*k+1}, 0xffff0000, v{R+i}"]
        else:
            L += [f"v_lshlrev_b32 v{T}, 16, v{R+i}", f"v_and_b32 v{T+1}, 0xffff0000, v{R+i}", f"v_add_f32 v{A+2*k}, v{A+2*k}, v{T}", f"v_add_f32 v{A+2*k+1}, v{A+2*k+1}, v{T+1}"]
    return L
def colsum_fold(A, T, gu):
    L=[]
    if gu:
        for i in range(8): L += [f"v_permlane32_swap_b32 v{A+i}, v{A+8+i}"]
        for i in range(8): L += [f"v_add_f32 v{A+i}, v{A+i}, v{A+8+i}"]
        for i in range(4): L += [f"v_permlane16_swap_b32 v{A+i}, v{A+4+i}"]
        for i in range(4): L += [f"v_add_f32 v{A+i}, v{A+i}, v{A+4+i}"]
        L += [f"v_and_b32 v{T}, 15, v0", f"v_lshlrev_b32 v{T}, 5, v{T}", f"v_bfe_u32 v{T+1}, v0, 4, 1", f"v_lshl_add_u32 v{T}, v{T+1}, 4, v{T}",
              f"v_lshrrev_b32 v{T+1}, 5, v0", f"v_mul_u32_u24 v{T+1}, 384, v{T+1}", f"v_add_u32 v{T}, v{T}, v{T+1}"]
    else:
        for i in range(4): L += [f"v_permlane32_swap_b32 v{A+i}, v{A+4+i}"]
        for i in range(4): L += [f"v_add_f32 v{A+i}, v{A+i}, v{A+4+i}"]
        L += [f"v_and_b32 v{T}, 31, v0", f"v_lshlrev_b32 v{T}, 5, v{T}", f"v_lshrrev_b32 v{T+1}, 5, v0", f"v_lshl_add_u32 v{T}, v{T+1}, 4, v{T}"]
    L += [f"s_mul_i32 s{S_T0}, s{S_WAVE}, 768", f"s_add_u32 s{S_T0}, s{S_T0}, {L_CSW}", f"v_add_u32 v{T}, s{S_T0}, v{T}",
          [f"s_mov_b64 exec, s[{S_EXC}:{S_EXC+1}]", f"ds_write_b128 v{T}, {vr(A,4)}", "s_mov_b64 exec, -1"]]
    return L
def colsum_store(a, R, T, flags="sc1"):
    a(f"v_lshlrev_b32 v{T}, 4, v0"); a(f"v_add_u32 v{T+1}, {L_CSW}, v{T}")
    a(f"s_mov_b32 exec_hi, 0xffff")
    for w in range(8): a(f"ds_read_b128 {vr(R+4*w,4)}, v{T+1} offset:{768*w}")
    a(f"s_lshl_b32 s{S_T0}, s{S_CTG}, 3"); a(f"s_add_u32 s{S_T0}, s{S_T0}, s{S_RT}"); a(f"s_mul_i32 s{S_T0}, s{S_T0}, 768"); a(f"s_add_u32 s{S_T0}, s{S_T0}, {WS_CS}")
    a("s_waitcnt lgkmcnt(0)")
    for w in range(1,8):
        for e in range(4): a(f"v_add_f32 v{R+e}, v{R+e}, v{R+4*w+e}")
    a(f"buffer_store_dwordx4 {vr(R,4)}, v{T}, s[{S_WS}:{S_WS+3}], s{S_T0} offen {flags}")
    a("s_mov_b64 exec, -1")
def colsum_gather_issue(a, R, T, flags="sc1"):
    a(f"v_lshlrev_b32 v{T}, 4, v0"); a(f"s_lshl_b32 s{S_T0}, s{S_CTG}, 3"); a(f"s_and_b32 s{S_T1}, s{S_RT}, 4"); a(f"s_add_u32 s{S_T0}, s{S_T0}, s{S_T1}")
    a(f"s_mul_i32 s{S_T0}, s{S_T0}, 768"); a(f"s_add_u32 s{S_T0}, s{S_T0}, {WS_CS}")
    a(f"s_mov_b32 exec_hi, 0xffff")
    for i in range(4): a(f"buffer_load_dwordx4 {vr(R+4*i,4)}, v{T}, s[{S_WS}:{S_WS+3}], s{S_T0} offen offset:{i*768} {flags}")
    a("s_mov_b64 exec, -1")
def colsum_gather_sum(a, R, T):
    a(f"v_lshlrev_b32 v{T}, 4, v0"); a(f"v_add_u32 v{T}, {L_CS2}, v{T}")
    for i in range(1,4):
        for e in range(4): a(f"v_add_f32 v{R+e}, v{R+e}, v{R+4*i+e}")
    a(f"s_mov_b32 exec_hi, 0xffff")
    a(f"ds_write_b128 v{T}, {vr(R,4)}")
    a("s_mov_b64 exec, -1")
def xpf_item(T, D, l0, nl):
    sh = 2
    return [f"v_and_b32 v{T}, 3, v0", f"s_lshl_b32 s{S_T0}, s{S_WAVE}, 2", f"v_add_u32 v{T}, s{S_T0}, v{T}", f"v_lshlrev_b32 v{T}, 3, v{T}", f"v_add_u32 v{T}, s{S_SLOT}, v{T}",
            f"v_mul_u32_u24 v{T}, 1280, v{T}", f"v_lshrrev_b32 v{D}, 2, v0", f"v_lshl_add_u32 v{T}, v{D}, 7, v{T}",
            f"s_mov_b64 exec, {(1<<(4*nl))-1}", f"buffer_load_dword v{D}, v{T}, s[{S_X}:{S_X+3}], 0 offen offset:{128*l0}", "s_mov_b64 exec, -1"]

class Loop:
    def __init__(self, gu, vm, o=None):
        self.gu=gu; self.nA = 6 if gu else 5; self.vm=vm; self.o=o or {}
    def dma_w(self, S):
        sb=(S%2)*WSLOT; L=[]
        for i in range(3):
            it=[f"s_add_u32 m0, s{S_M0W}, {sb+1024*i}"]
            if i==2 and not self.gu: it+=["s_mov_b32 exec_hi, 0"]
            it+=[f"buffer_load_dwordx4 v{V_W+i}, s[{S_WD}:{S_WD+3}], s{S_WOFF} offen lds"]
            if i==2:
                if not self.gu: it+=["s_mov_b32 exec_hi, -1"]
                it+=[f"s_add_u32 s{S_WOFF}, s{S_WOFF}, s{S_WSTR}"]
            L.append(("vm", f"W{S}", it))
        return L
    def dma_x(self, S):
        sb=XBASE+(S%3)*XSLOT
        return [("vm", f"X{S}", [f"s_add_u32 m0, s{S_M0X}, {sb-128*S+1024*i}", f"buffer_load_dwordx4 v{V_X+i}, s[{S_X}:{S_X+3}], 0 offen offset:{128*S} lds"]) for i in range(4)]
    def put(self, a, items):
        for x in items:
            if isinstance(x, tuple):
                n = x[3] if len(x)>3 else 1
                for _ in range(n): self.vm.add(x[1], x[0]=="vm")
                a(x[2])
            else: a(x)
    def read_addr(self, a):
        t=V_T
        a(f"v_and_b32 v{t}, 15, v0"); a(f"v_lshlrev_b32 v{t}, 7, v{t}")
        a(f"v_bfe_u32 v{t+1}, v0, 1, 3"); a(f"v_lshrrev_b32 v{t+2}, 4, v0"); a(f"v_xor_b32 v{t+1}, v{t+1}, v{t+2}")
        a(f"v_lshl_add_u32 v{t}, v{t+1}, 4, v{t}"); a(f"s_lshl_b32 s{S_T0}, s{S_TG}, 13"); a(f"s_add_u32 s{S_T0}, s{S_T0}, {XBASE}")
        a(f"v_add_u32 v{V_XR}, s{S_T0}, v{t}"); a(f"v_xor_b32 v{V_XR+1}, 64, v{V_XR}")
        a(f"v_add_u32 v{V_XR+2}, {2*XSLOT}, v{V_XR}"); a(f"v_add_u32 v{V_XR+3}, {2*XSLOT}, v{V_XR+1}")
        gs, rs, fs, cs = (1536,192,96,8) if self.gu else (2592,320,160,40)
        a(f"v_mul_u32_u24 v{t}, {gs}, v{t+2}"); a(f"v_bfe_u32 v{t+1}, v0, 2, 2"); a(f"v_mul_u32_u24 v{t+1}, {rs}, v{t+1}"); a(f"v_add_u32 v{t}, v{t}, v{t+1}")
        a(f"v_and_b32 v{t+1}, 3, v0"); a(f"v_mul_u32_u24 v{t+1}, {cs}, v{t+1}"); a(f"v_add_u32 v{t}, v{t}, v{t+1}")
        a(f"s_mul_i32 s{S_T0}, s{S_FG}, {fs}"); a(f"v_add_u32 v{V_WR}, s{S_T0}, v{t}")
        if self.gu:
            a(f"v_and_b32 v{t+2}, 1, v{t+2}"); a(f"s_cmp_eq_u32 s{S_FG}, 0"); a(f"s_cselect_b32 s{S_T0}, 32, -32"); a(f"v_mul_i32_i24 v{t+2}, s{S_T0}, v{t+2}")
            a(f"v_sub_u32 v{V_WR+1}, v{V_WR}, v{t+2}"); a(f"v_add_u32 v{V_WR}, v{V_WR}, v{t+2}")
    def rd_x(self, c):
        S=c//2; j=c%2; s=S%3
        return [f"ds_read_b128 {vr(XB[c%2]+4*t,4)}, v{V_XR+j+(2 if s==2 else 0)} offset:{(s%2)*XSLOT+2048*t}" for t in range(4)]
    def rd_w(self, c, half):
        S=c//2; j=c%2; so=(S%2)*WSLOT; L=[]
        for i,blk in enumerate(range(3) if half==0 else range(3,self.nA)):
            for rd in range(2):
                if self.gu: v=V_WR+((blk%3)&1); off=so+j*6144+rd*768+(blk%3)*32+(blk//3)*12288
                else: v=V_WR; off=so+j*10368+rd*1280+blk*8
                L.append(f"ds_read_b64_tr_b16 {vr(WB[half]+4*i+2*rd,2)}, v{v} offset:{off}")
        return L
    def mf(self, c, half):
        L=[]
        for i,blk in enumerate(range(3) if half==0 else range(3,self.nA)):
            for t in range(4):
                ac=ACC+4*(4*blk+t)
                L.append(f"v_mfma_f32_16x16x32_bf16 {vr(ac,4)}, {vr(WB[half]+4*i,4)}, {vr(XB[c%2]+4*t,4)}, {vr(ac,4) if c>0 else 0}")
        return L
    def first_reads(self, c):
        r = self.rd_x(c); w = self.rd_w(c,0)
        return [r[0], w[0], w[1]] + r[1:] + w[2:]
    def emit(self, a, extra=None, pre_bar=None, post_bar=None):
        a(self.first_reads(0))
        for c in range(20):
            S=c//2
            for half in range(2):
                isbar = (c%2==1 and half==1 and S+1<10)
                if isbar:
                    tags={f"W{S+1}", f"X{S+1}"} | set(pre_bar(S) if pre_bar else [])
                    a(f"s_waitcnt vmcnt({self.vm.n_after(tags)}) lgkmcnt(0)"); a("s_barrier")
                    if post_bar: post_bar(a,S)
                else: a("s_waitcnt lgkmcnt(0)")
                rd = self.rd_w(c,1) if half==0 else (self.first_reads(c+1) if c+1<20 else [])
                dm=[]
                if isbar and S+2<10: dm=self.dma_w(S+2)
                if c%2==0 and S>=1 and S+2<10:
                    x=self.dma_x(S+2); dm = x[:2] if half==0 else x[2:]
                ex = extra(c,half) if extra else []
                if self.o.get("nodma"):
                    for x in dm: self.vm.add(x[1], False)
                    dm=[]
                if self.o.get("nox"):
                    for x in dm:
                        if x[1][0]=="X": self.vm.add(x[1], False)
                    dm=[x for x in dm if x[1][0]!="X"]
                if self.o.get("nords"): rd=[]
                self.put(a, place(self.mf(c,half), spread(rd, dm), ex))

def spread(x, y):
    if not y: return list(x)
    if not x: return list(y)
    return interleave(x, y)
def place(m, front, ex):
    n=len(m); lim=max(1,(3*n)//4)
    per=[0]*n
    k=len(front); i=0
    while k>0:
        per[i%lim]+=1; k-=1; i+=1
    out=[]; fi=0; ei=0
    for i,x in enumerate(m):
        out.append(x)
        for _ in range(per[i]): out.append(front[fi]); fi+=1
        tgt=(len(ex)*(i+1)+n-1)//n
        while ei<tgt: out.append(ex[ei]); ei+=1
    return out
```

```python
from p1 import *
E_RS=128
E_AB=136
E_CS=144
E_T=168
E_PHI=184
LO="op_sel:[{}] op_sel_hi:[{}]"
def pk(op, d, srcs, sel, neg=None):
    lo=",".join("1" if c=='h' else "0" for c in sel); hi=",".join("0" if c=='l' else "1" for c in sel)
    s=f"{op} {vr(d,2)}, " + ", ".join(x if isinstance(x,str) else vr(x,2) for x in srcs)
    if 'l' in sel or 'h' in sel: s+=f" op_sel:[{lo}] op_sel_hi:[{hi}]"
    if neg: n=",".join(str(x) for x in neg); s+=f" neg_lo:[{n}] neg_hi:[{n}]"
    return s
def epi_load_rs(a, RS=E_RS, flags="sc1"):
    a(f"s_lshl_b32 s{S_T0}, s{S_RT}, 8"); a(f"s_lshl_b32 s{S_T1}, s{S_TG}, 6"); a(f"s_add_u32 s{S_T0}, s{S_T0}, s{S_T1}"); a(f"s_lshl_b32 s{S_T0}, s{S_T0}, 3"); a(f"s_add_u32 s{S_T0}, s{S_T0}, {WS_RS}")
    a(f"v_and_b32 v{V_T}, 15, v0"); a(f"v_lshlrev_b32 v{V_T}, 3, v{V_T}")
    for t in range(4): a(f"buffer_load_dwordx2 {vr(RS+2*t,2)}, v{V_T}, s[{S_WS}:{S_WS+3}], s{S_T0} offen offset:{128*t} {flags}")
def epi_read_cs(a, gu):
    t=V_T
    a(f"v_lshrrev_b32 v{t}, 4, v0"); a(f"v_mul_u32_u24 v{t}, {16 if gu else 80}, v{t}")
    a(f"s_mul_i32 s{S_T0}, s{S_FG}, {192 if gu else 320}"); a(f"s_add_u32 s{S_T0}, s{S_T0}, {L_CS2}"); a(f"v_add_u32 v{t}, s{S_T0}, v{t}")
    for b in range(6 if gu else 5):
        off = ((b%3)*64 + (b//3)*384) if gu else b*16
        a(f"ds_read_b128 {vr(E_CS+4*b,4)}, v{t} offset:{off}")

def epi_gu(a, RS=E_RS, flags="sc1", hook=None, vm=None):
    for t in range(4):
        a(f"v_rcp_f32 v{E_AB+2*t}, v{RS+2*t+1}"); a(f"v_mul_f32 v{E_AB+2*t+1}, v{RS+2*t+1}, v{RS+2*t+1}")
    for t in range(4): a(f"v_mul_f32 v{E_AB+2*t}, {LOG2E|0x80000000}, v{E_AB+2*t}")
    vo=V_T; vmid=V_T+1
    a(f"v_lshlrev_b32 v{vo}, 4, v0")
    a(f"v_lshrrev_b32 v{vmid}, 5, v0"); a(f"v_mul_u32_u24 v{vmid}, {54*1024-512}, v{vmid}"); a(f"v_add_u32 v{vmid}, v{vmid}, v{vo}")
    a(f"s_lshl_b32 s{S_T0}, s{S_FG}, 9"); a(f"v_add_u32 v{vmid}, s{S_T0}, v{vmid}")
    sf, sm = S_CSOFF, S_WOFF
    a(f"s_lshl_b32 s{sf}, s{S_RT}, 4"); a(f"s_lshl_b32 s{S_T1}, s{S_TG}, 2"); a(f"s_add_u32 s{sf}, s{sf}, s{S_T1}"); a(f"s_mul_i32 s{sf}, s{sf}, 54")
    a(f"s_mul_i32 s{S_T1}, s{S_CT}, 3"); a(f"s_add_u32 s{sf}, s{sf}, s{S_T1}"); a(f"s_lshl_b32 s{sf}, s{sf}, 10"); a(f"s_add_u32 s{sf}, s{sf}, {WS_H}")
    a(f"s_add_u32 s{sm}, s{sf}, 1024"); a(f"s_lshl_b32 s{S_T2}, s{S_FG}, 11"); a(f"s_add_u32 s{sf}, s{sf}, s{S_T2}")
    def hblock(pts, dst):
        el=[(ACC+4*(4*p+t)+e, ACC+4*(4*(3+p)+t)+e, E_CS+4*p+e, E_CS+4*(3+p)+e, t) for (p,t) in pts for e in (0,2)]
        X=E_T
        for g,u,cg,cu,t in el: a(pk("v_pk_fma_f32", g, [RS+2*t, cg, g], "lpp", [1,0,0]))
        for i,(g,u,cg,cu,t) in enumerate(el): a(pk("v_pk_mul_f32", X+2*i, [g, E_AB+2*t], "pl"))
        for i,(g,u,cg,cu,t) in enumerate(el):
            a(f"v_exp_f32 v{X+2*i}, v{X+2*i}"); a(f"v_exp_f32 v{X+2*i+1}, v{X+2*i+1}"); a(pk("v_pk_fma_f32", u, [RS+2*t, cu, u], "lpp", [1,0,0]))
        for i,(g,u,cg,cu,t) in enumerate(el): a(pk("v_pk_fma_f32", X+2*i, [X+2*i, E_AB+2*t, E_AB+2*t], "phh"))
        for i,(g,u,cg,cu,t) in enumerate(el):
            a(f"v_rcp_f32 v{X+2*i}, v{X+2*i}"); a(f"v_rcp_f32 v{X+2*i+1}, v{X+2*i+1}"); a(pk("v_pk_mul_f32", g, [g, u], "pp"))
        for i,(g,u,cg,cu,t) in enumerate(el): a(pk("v_pk_mul_f32", g, [g, X+2*i], "pp"))
        for i,(g,u,cg,cu,t) in enumerate(el): a(f"v_cvt_pk_bf16_f32 v{dst+i}, v{g}, v{g+1}")
    D=[E_T+8, E_T+12]
    nst=0
    for t in range(4):
        d=D[nst%2]; hblock([(0,t),(1,t)], d)
        a(f"buffer_store_dwordx4 {vr(d,4)}, v{vo}, s[{S_WS}:{S_WS+3}], s{sf} offen {flags}")
        if vm: vm.add("est")
        if t<3: a(f"s_add_u32 s{sf}, s{sf}, {54*1024}")
        if hook: hook(nst)
        nst+=1
        if t&1:
            d=D[nst%2]; hblock([(2,t-1),(2,t)], d)
            a(f"v_permlane32_swap_b32 v{d}, v{d+2}"); a(f"v_permlane32_swap_b32 v{d+1}, v{d+3}")
            a(f"buffer_store_dwordx4 {vr(d,4)}, v{vmid}, s[{S_WS}:{S_WS+3}], s{sm} offen {flags}")
            if vm: vm.add("est")
            if t<3: a(f"s_add_u32 s{sm}, s{sm}, {2*54*1024}")
            if hook: hook(nst)
            nst+=1

def phi_dma(a, vm=None):
    a(f"s_lshl_b32 s{S_T0}, s{S_WAVE}, 10"); a(f"s_add_u32 m0, s{S_T0}, {L_WPHI}"); a(f"v_lshlrev_b32 v{V_T}, 4, v0")
    a(f"v_add_u32 v{V_T}, s{S_T0}, v{V_T}"); a(f"v_cmp_gt_u32 vcc, 6400, v{V_T}"); a(f"s_and_b64 exec, vcc, -1")
    a(f"s_cbranch_execz PHI_SKIP")
    a(f"buffer_load_dwordx4 v{V_T}, s[{S_PHI}:{S_PHI+3}], 0 offen lds")
    a.label("PHI_SKIP")
    a("s_mov_b64 exec, -1")
    if vm: vm.add("phi", False)
def lds_zero_init(a):
    t=V_T
    a(f"s_lshl_b32 s{S_T0}, s{S_WAVE}, 6"); a(f"v_add_u32 v{t+4}, s{S_T0}, v0"); a(f"v_subrev_u32 v{t+4}, 448, v{t+4}")
    for i in range(4): a(f"v_mov_b32 v{t+i}, 0")
    a(f"v_cmp_gt_u32 vcc, 50, v{t+4}"); a(f"v_lshlrev_b32 v{t+4}, 4, v{t+4}"); a(f"v_add_u32 v{t+4}, {L_ZERO}, v{t+4}")
    a(f"s_and_b64 exec, vcc, -1")
    a(f"ds_write_b128 v{t+4}, {vr(t,4)}")
    a("s_mov_b64 exec, -1")
def phi_frags(a):
    t=V_T
    a(f"v_lshrrev_b32 v{t}, 4, v0"); a(f"v_and_b32 v{t+1}, 3, v0"); a(f"v_cmp_eq_u32 vcc, v{t}, v{t+1}")
    a(f"v_mul_u32_u24 v{t}, 800, v{t}"); a(f"v_bfe_u32 v{t+1}, v0, 2, 2"); a(f"v_mul_u32_u24 v{t+1}, 40, v{t+1}"); a(f"v_add_u32 v{t}, v{t}, v{t+1}")
    a(f"s_mul_i32 s{S_T0}, s{S_FG}, 3200"); a(f"s_cmp_eq_u32 s{S_TYPE}, {T_KV}"); a(f"s_cselect_b32 s{S_T0}, 0, s{S_T0}"); a(f"s_add_u32 s{S_T0}, s{S_T0}, {L_WPHI}"); a(f"v_add_u32 v{t}, s{S_T0}, v{t}")
    a(f"v_mov_b32 v{t+1}, {L_ZERO}"); a(f"v_cndmask_b32 v{t}, v{t+1}, v{t}, vcc")
    L=[]
    for b in range(5):
        for s in range(3):
            for rd in range(2):
                r=E_PHI+4*(3*b+s)+2*rd
                if s==2 and rd==1: a(f"v_mov_b32 v{r}, 0"); a(f"v_mov_b32 v{r+1}, 0")
                else: L.append(f"ds_read_b64_tr_b16 {vr(r,2)}, v{t} offset:{(8*s+4*rd)*40+b*8}")
    return L
def ln_pack(a, t, dst, RS):
    el=[(ACC+4*(4*b+t)+e, E_CS+4*b+e) for b in range(5) for e in (0,2)]
    for g,c in el: a(pk("v_pk_fma_f32", g, [RS+2*t, c, g], "lpp", [1,0,0]))
    for g,c in el: a(pk("v_pk_mul_f32", g, [g, E_AB+2*t], "pl"))
    for k,(g,c) in enumerate(el): a(f"v_cvt_pk_bf16_f32 v{dst+k}, v{g}, v{g+1}")
def phi_mfma(a, t, F):
    for s in range(3):
        for b in range(5):
            ac=ACC+4*(4*b+t)
            a(f"v_mfma_f32_16x16x32_bf16 {vr(ac,4)}, {vr(E_PHI+4*(3*b+s),4)}, {vr(F+4*s,4)}, {vr(ac,4) if s else 0}")
def epi_rstd(a, RS):
    for t in range(4): a(f"v_rcp_f32 v{E_AB+2*t}, v{RS+2*t+1}")
def epi_q(a, RS=E_RS, flags="sc1", vm=None):
    epi_rstd(a, RS)
    F=[E_T, 112]
    for f in F: a(f"v_mov_b32 v{f+10}, 0"); a(f"v_mov_b32 v{f+11}, 0")
    for t in range(4):
        ln_pack(a, t, F[t&1], RS); phi_mfma(a, t, F[t&1])
    v16=V_T; v8=V_T+1; t_=V_T+2
    a(f"v_lshrrev_b32 v{t_}, 4, v0"); a(f"v_mul_u32_u24 v{t_}, 81920, v{t_}"); a(f"v_and_b32 v{v8}, 15, v0")
    a(f"v_lshl_add_u32 v{v16}, v{v8}, 4, v{t_}"); a(f"v_lshl_add_u32 v{v8}, v{v8}, 3, v{t_}")
    a(f"s_lshl_b32 s{S_T0}, s{S_CT}, 1"); a(f"s_add_u32 s{S_T0}, s{S_T0}, s{S_FG}"); a(f"s_mul_i32 s{S_T0}, s{S_T0}, {4*81920}"); a(f"s_add_u32 s{S_T0}, s{S_T0}, {WS_PQ}")
    a(f"s_lshl_b32 s{S_T1}, s{S_RT}, 8"); a(f"s_lshl_b32 s{S_T2}, s{S_TG}, 6"); a(f"s_add_u32 s{S_T1}, s{S_T1}, s{S_T2}")
    a(f"s_lshl_b32 s{S_T2}, s{S_T1}, 3"); a(f"s_add_u32 s{S_T2}, s{S_T2}, s{S_T0}"); a(f"s_add_u32 s{S_T2}, s{S_T2}, 65536")
    a(f"s_lshl_b32 s{S_T1}, s{S_T1}, 4"); a(f"s_add_u32 s{S_T0}, s{S_T0}, s{S_T1}"); a(f"s_add_u32 s{S_T1}, s{S_T0}, 32768")
    for t in range(4):
        D=E_CS+12*(t&1)
        el=[ACC+4*(4*b+t)+e for b in range(5) for e in range(4)]
        for k in range(10): a(f"v_cvt_pk_bf16_f32 v{D+k}, v{el[2*k]}, v{el[2*k+1]}")
        a(f"buffer_store_dwordx4 {vr(D,4)}, v{v16}, s[{S_WS}:{S_WS+3}], s{S_T0} offen offset:{256*t} {flags}")
        a(f"buffer_store_dwordx4 {vr(D+4,4)}, v{v16}, s[{S_WS}:{S_WS+3}], s{S_T1} offen offset:{256*t} {flags}")
        a(f"buffer_store_dwordx2 {vr(D+8,2)}, v{v8}, s[{S_WS}:{S_WS+3}], s{S_T2} offen offset:{128*t} {flags}")
        if vm:
            for _ in range(3): vm.add("est")

def softmax20(a, p, sign, T, dst):
    q=[r+e for r in p for e in (0,1)]
    m=T+20; s=T+22
    op = "v_max3_f32" if sign>0 else "v_min3_f32"
    a(f"{op} v{m}, v{q[0]}, v{q[1]}, v{q[2]}"); a(f"{op} v{m+1}, v{q[3]}, v{q[4]}, v{q[5]}")
    for i in range(6,18,4): a(f"{op} v{m}, v{m}, v{q[i]}, v{q[i+1]}"); a(f"{op} v{m+1}, v{m+1}, v{q[i+2]}, v{q[i+3]}")
    a(f"{op} v{m}, v{m}, v{q[18]}, v{q[19]}")
    a(f"{'v_max_f32' if sign>0 else 'v_min_f32'} v{m}, v{m}, v{m+1}")
    a(f"v_mov_b32 v{m+1}, {LOG2E if sign>0 else LOG2E|0x80000000}")
    a(f"v_mul_f32 v{m}, v{m}, v{m+1}")
    for i,r in enumerate(p): a(pk("v_pk_fma_f32", T+2*i, [r, m, m], "phl", [0,0,1]))
    for i in range(20): a(f"v_exp_f32 v{T+i}, v{T+i}")
    a(pk("v_pk_add_f32", s, [T, T+2], "pp")); a(pk("v_pk_add_f32", m, [T+4, T+6], "pp"))
    for i in range(8,20,4): a(pk("v_pk_add_f32", s, [s, T+i], "pp")); a(pk("v_pk_add_f32", m, [m, T+i+2], "pp"))
    a(pk("v_pk_add_f32", s, [s, m], "pp")); a(f"v_add_f32 v{s}, v{s}, v{s+1}"); a(f"v_rcp_f32 v{s}, v{s}")
    for i in range(10): a(pk("v_pk_mul_f32", T+2*i, [T+2*i, s], "pl"))
    for k in range(10): a(f"v_cvt_pk_bf16_f32 v{dst+k}, v{T+2*k}, v{T+2*k+1}")

def epi_kv(a, RS=E_RS, flags="sc1", vm=None):
    epi_rstd(a, RS)
    vw=V_T
    a(f"v_and_b32 v{vw}, 15, v0"); a(f"v_mul_u32_u24 v{vw}, {KVROW}, v{vw}"); a(f"v_lshrrev_b32 v{vw+1}, 4, v0"); a(f"v_lshl_add_u32 v{vw}, v{vw+1}, 7, v{vw}")
    a(f"s_mul_i32 s{S_T0}, s{S_TG}, {64*KVROW}"); a(f"v_add_u32 v{vw}, s{S_T0}, v{vw}")
    a(f"s_cmp_eq_u32 s{S_FG}, 0"); a("s_cbranch_scc1 KV_KWAVE")
    for t in range(4):
        F=E_PHI+12*t
        ln_pack(a, t, F, RS); a(f"v_mov_b32 v{F+10}, 0x3f803f80"); a(f"v_mov_b32 v{F+11}, 0x3f803f80")
        for i in range(3): a(f"ds_write_b128 v{vw}, {vr(F+4*i,4)} offset:{t*16*KVROW+80+16*i}")
    a("s_branch KV_JOIN")
    a.label("KV_KWAVE")
    F=[E_T, 112]
    for f in F: a(f"v_mov_b32 v{f+10}, 0"); a(f"v_mov_b32 v{f+11}, 0")
    for t in range(4):
        ln_pack(a, t, F[t&1], RS); phi_mfma(a, t, F[t&1])
    T=E_CS
    for t in range(4):
        D=E_PHI+20*(t&1)
        p=[ACC+4*(4*b+t)+e for b in range(5) for e in (0,2)]
        softmax20(a, p, +1, T, D); softmax20(a, p, -1, T, D+10)
        for i in range(5): a(f"ds_write_b128 v{vw}, {vr(D+4*i,4)} offset:{t*16*KVROW+16*i}")
    a.label("KV_JOIN")
    a("s_waitcnt lgkmcnt(0)"); a("s_barrier")
    t=V_T
    a(f"v_bfe_u32 v{t}, v0, 2, 3"); a(f"v_lshrrev_b32 v{t+1}, 5, v0"); a(f"v_lshl_add_u32 v{t}, v{t+1}, 3, v{t}"); a(f"v_mul_u32_u24 v{t}, {2*KVROW}, v{t}")
    a(f"v_and_b32 v{t+1}, 3, v0"); a(f"v_lshl_add_u32 v{t}, v{t+1}, 3, v{t}")
    a(f"s_lshr_b32 s{S_T0}, s{S_WAVE}, 1"); a(f"s_lshl_b32 s{S_T0}, s{S_T0}, 7"); a(f"v_add_u32 v{t}, s{S_T0}, v{t}")
    a(f"s_and_b32 s{S_T1}, s{S_WAVE}, 1"); a(f"s_lshl_b32 s{S_T1}, s{S_T1}, 5"); a(f"s_add_u32 s{S_T1}, s{S_T1}, 80"); a(f"v_add_u32 v{t+1}, s{S_T1}, v{t}")
    a(f"v_add_u32 v{t+2}, {128*KVROW}, v{t}"); a(f"v_add_u32 v{t+3}, {128*KVROW}, v{t+1}")
    FR=[48,64,80,96]
    for st in range(8):
        va=t+(2 if st>=4 else 0); o=(st%4)*32*KVROW; f=FR[st%4]
        for rd in range(2): a(f"ds_read_b64_tr_b16 {vr(f+12+2*rd,2)}, v{va+1} offset:{o+rd*KVROW}")
        for fb in range(3):
            for rd in range(2): a(f"ds_read_b64_tr_b16 {vr(f+4*fb+2*rd,2)}, v{va} offset:{o+rd*KVROW+32*fb}")
        if st>=1:
            a("s_waitcnt lgkmcnt(8)"); g=FR[(st-1)%4]
            for fb in range(3): a(f"v_mfma_f32_16x16x32_bf16 {vr(ACC+4*fb,4)}, {vr(g+4*fb,4)}, {vr(g+12,4)}, {vr(ACC+4*fb,4) if st>1 else 0}")
    a("s_waitcnt lgkmcnt(0)"); g=FR[3]
    for fb in range(3): a(f"v_mfma_f32_16x16x32_bf16 {vr(ACC+4*fb,4)}, {vr(g+4*fb,4)}, {vr(g+12,4)}, {vr(ACC+4*fb,4)}")
    a(f"v_and_b32 v{t}, 15, v0"); a(f"s_and_b32 s{S_T1}, s{S_WAVE}, 1"); a(f"s_lshl_b32 s{S_T1}, s{S_T1}, 4"); a(f"v_add_u32 v{t}, s{S_T1}, v{t}")
    a(f"v_cmp_gt_u32 vcc, 21, v{t}"); a(f"v_lshrrev_b32 v{t+1}, 4, v0"); a(f"v_mul_u32_u24 v{t+1}, 21, v{t+1}"); a(f"v_add_u32 v{t}, v{t}, v{t+1}"); a(f"v_lshlrev_b32 v{t}, 4, v{t}")
    a(f"s_lshl_b32 s{S_T0}, s{S_RT}, 5"); a(f"s_lshl_b32 s{S_T1}, s{S_CT}, 2"); a(f"s_add_u32 s{S_T0}, s{S_T0}, s{S_T1}"); a(f"s_lshr_b32 s{S_T1}, s{S_WAVE}, 1"); a(f"s_add_u32 s{S_T0}, s{S_T0}, s{S_T1}")
    a(f"s_mul_i32 s{S_T0}, s{S_T0}, 3360"); a(f"s_add_u32 s{S_T0}, s{S_T0}, {WS_KVP}")
    a(f"s_mov_b64 exec, vcc")
    for fb in range(3):
        if fb==2: a("s_mov_b32 exec_hi, 0")
        a(f"buffer_store_dwordx4 {vr(ACC+4*fb,4)}, v{t}, s[{S_WS}:{S_WS+3}], s{S_T0} offen offset:{fb*4*21*16} {flags}")
        if vm: vm.add("est")
    a("s_mov_b64 exec, -1")
```

```python
from p1 import *
from p1e import *
S_DBG=4
S_OUT=16
S_B=12
S_CNT=81
SPIN_MAX=400000

def nonce_write(a):
    a(f"s_or_b32 s{S_T0}, s2, s{S_WAVE}"); a(f"s_cmp_eq_u32 s{S_T0}, 0"); a("s_cbranch_scc0 NONCE_SKIP")
    a(f"s_memrealtime s[{S_SAVE}:{S_SAVE+1}]"); a("s_waitcnt lgkmcnt(0)")
    a(f"s_lshl_b64 s[{S_SAVE}:{S_SAVE+1}], s[{S_SAVE}:{S_SAVE+1}], 3"); a(f"s_or_b32 s{S_SAVE}, s{S_SAVE}, 4")
    a(f"v_mov_b32 v{V_T}, s{S_SAVE}"); a(f"v_mov_b32 v{V_T+1}, s{S_SAVE+1}"); a(f"v_mov_b32 v{V_T+2}, 0")
    a("s_mov_b64 exec, 1")
    a(f"buffer_store_dwordx2 {vr(V_T,2)}, v{V_T+2}, s[{S_DBG}:{S_DBG+3}], 0 offen sc1")
    a("s_mov_b64 exec, -1")
    a.label("NONCE_SKIP")
def nonce_issue(R):
    return [f"v_mov_b32 v{R}, 0", f"buffer_load_dwordx2 {vr(R,2)}, v{R}, s[{S_DBG}:{S_DBG+3}], 0 offen sc1"]
def nonce_take(a, R, lab):
    a(f"v_readfirstlane_b32 s{S_TAG}, v{R}"); a(f"v_readfirstlane_b32 s{S_TAG+1}, v{R+1}")
    a(f"s_cmp_lg_u32 s{S_TAG}, 0"); a(f"s_cbranch_scc1 {lab}_OK")
    a(f"s_mov_b32 s{S_CNT}, 0")
    a.label(f"{lab}_SP")
    a("s_sleep 2"); a(nonce_issue(R)); a("s_waitcnt vmcnt(0)")
    a(f"v_readfirstlane_b32 s{S_TAG}, v{R}"); a(f"v_readfirstlane_b32 s{S_TAG+1}, v{R+1}")
    a(f"s_add_u32 s{S_CNT}, s{S_CNT}, 1"); a(f"s_cmp_ge_u32 s{S_CNT}, {SPIN_MAX}"); a(f"s_cbranch_scc1 {lab}_OK")
    a(f"s_cmp_eq_u32 s{S_TAG}, 0"); a(f"s_cbranch_scc1 {lab}_SP")
    a.label(f"{lab}_OK")
def publish(a, phase, T):
    a(f"s_add_u32 s{S_T0}, s{S_TAG}, {phase}"); a(f"v_mov_b32 v{T}, s{S_T0}"); a(f"v_mov_b32 v{T+1}, s{S_TAG+1}"); a(f"v_mov_b32 v{T+2}, 0")
    a(f"s_lshl_b32 s{S_T0}, s2, 7")
    a("s_mov_b64 exec, 1")
    a(f"buffer_store_dwordx2 {vr(T,2)}, v{T+2}, s[{S_WS}:{S_WS+3}], s{S_T0} offen sc1")
    a("s_mov_b64 exec, -1")
def poll_issue(VA, R):
    return [f"buffer_load_dwordx2 {vr(R,2)}, v{VA}, s[{S_WS}:{S_WS+3}], 0 offen sc1"]
def poll_test(a, R, T, need):
    a(f"v_subrev_u32 v{T}, s{S_TAG}, v{R}"); a(f"v_subrev_u32 v{T}, {need}, v{T}"); a(f"v_xor_b32 v{T+1}, s{S_TAG+1}, v{R+1}")
    a(f"v_cmp_ne_u32 s[{S_SAVE}:{S_SAVE+1}], 0, v{T+1}"); a(f"v_cmp_lt_u32 vcc, {3-need}, v{T}"); a(f"s_or_b64 vcc, vcc, s[{S_SAVE}:{S_SAVE+1}]")
def poll_wait(a, VA, R, T, need, lab, first_landed):
    if first_landed:
        poll_test(a, R, T, need); a(f"s_cbranch_vccz {lab}_OK")
    a(f"s_mov_b32 s{S_CNT}, 0")
    a.label(f"{lab}_SP")
    a(poll_issue(VA, R)); a("s_waitcnt vmcnt(0)")
    poll_test(a, R, T, need)
    a(f"s_add_u32 s{S_CNT}, s{S_CNT}, 1"); a(f"s_cmp_ge_u32 s{S_CNT}, {SPIN_MAX}"); a(f"s_cbranch_scc1 {lab}_OK")
    a(f"s_cbranch_vccz {lab}_OK"); a("s_sleep 1"); a(f"s_branch {lab}_SP")
    a.label(f"{lab}_OK")
def fa_stats(VA, T):
    return [f"s_and_b32 s{S_T0}, s{S_RT}, 3", f"s_lshl_b32 s{S_T0}, s{S_T0}, 1", f"s_lshr_b32 s{S_T1}, s{S_RT}, 2", f"s_add_u32 s{S_T0}, s{S_T0}, s{S_T1}",
            f"v_lshlrev_b32 v{VA}, 3, v0", f"v_add_u32 v{VA}, s{S_T0}, v{VA}", f"s_andn2_b32 s{S_T0}, s2, 24", f"v_and_b32 v{T}, 3, v0", f"v_lshlrev_b32 v{T}, 3, v{T}", f"v_or_b32 v{T}, s{S_T0}, v{T}",
            f"v_cmp_gt_u32 vcc, 32, v0", f"v_cndmask_b32 v{VA}, v{T}, v{VA}, vcc", f"v_lshlrev_b32 v{VA}, 7, v{VA}"]
def fa_spare(VA, T):
    return [f"v_and_b32 v{VA}, 3, v0", f"v_bfe_u32 v{T}, v0, 2, 2", f"v_lshl_add_u32 v{VA}, v{T}, 3, v{VA}", f"v_add_u32 v{VA}, {28*8+4}, v{VA}", f"v_lshlrev_b32 v{VA}, 7, v{VA}"]
def fa_qkv(VA, T):
    return [f"s_lshr_b32 s{S_T0}, s2, 5", f"s_and_b32 s{S_T1}, s{S_T0}, 1", f"s_add_u32 s{S_T1}, s{S_T1}, 1", f"s_lshl_b32 s{S_T1}, s{S_T1}, 5", f"s_andn2_b32 s{S_T0}, s{S_T0}, 1", f"s_add_u32 s{S_T1}, s{S_T1}, s{S_T0}",
            f"v_and_b32 v{VA}, 3, v0", f"v_bfe_u32 v{T}, v0, 2, 1", f"v_lshl_add_u32 v{VA}, v{VA}, 3, v{T}", f"v_add_u32 v{VA}, s{S_T1}, v{VA}",
            f"s_and_b32 s{S_T1}, s2, 3", f"s_lshl_b32 s{S_T1}, s{S_T1}, 3", f"s_add_u32 s{S_T0}, s{S_T0}, s{S_T1}", f"s_bfe_u32 s{S_T1}, s2, 0x10002", f"s_add_u32 s{S_T0}, s{S_T0}, s{S_T1}",
            f"v_mov_b32 v{T}, s{S_T0}", f"v_and_b32 v{T+1}, 8, v0", f"v_cmp_eq_u32 vcc, 0, v{T+1}", f"v_cndmask_b32 v{VA}, v{T}, v{VA}, vcc", f"v_lshlrev_b32 v{VA}, 7, v{VA}"]
def fa_gemm2(VA, T):
    return [f"v_min_u32 v{T}, 2, v0", f"s_mul_i32 s{S_T0}, s{S_WAVE}, 3", f"v_add_u32 v{T}, s{S_T0}, v{T}",
            f"v_cmp_le_u32 vcc, 14, v{T}", f"v_addc_co_u32 v{T+1}, vcc, 0, v{T}, vcc",
            f"v_mul_u32_u24 v{VA}, 52, v{T+1}", f"v_lshrrev_b32 v{VA}, 8, v{VA}",
            f"v_mul_u32_u24 v{T}, 5, v{VA}", f"v_sub_u32 v{T}, v{T+1}, v{T}", f"v_add_u32 v{T}, 3, v{T}",
            f"v_lshlrev_b32 v{T}, 5, v{T}", f"v_lshl_add_u32 v{VA}, v{VA}, 1, v{T}",
            f"s_and_b32 s{S_T0}, s2, 3", f"s_lshl_b32 s{S_T0}, s{S_T0}, 3", f"s_bfe_u32 s{S_T1}, s2, 0x10002", f"s_add_u32 s{S_T0}, s{S_T0}, s{S_T1}", f"v_add_u32 v{VA}, s{S_T0}, v{VA}",
            f"v_and_b32 v{T}, 31, v0", f"v_lshlrev_b32 v{T}, 3, v{T}", f"s_and_b32 s{S_T0}, s2, 7", f"v_add_u32 v{T}, s{S_T0}, v{T}",
            f"s_cmp_ge_u32 s{S_WAVE}, 6", f"s_cselect_b64 vcc, -1, 0", f"v_cndmask_b32 v{VA}, v{VA}, v{T}, vcc", f"v_lshlrev_b32 v{VA}, 7, v{VA}"]

def relayout(a):
    t=V_T; VD=32; VR=40; VS=50; F=64
    SK=S_CT; SO=S_CTG
    a(f"s_and_b32 s{SK}, s2, 3"); a(f"s_lshl_b32 s{SK}, s{SK}, 2"); a(f"s_bfe_u32 s{S_T0}, s2, 0x20003"); a(f"s_add_u32 s{SK}, s{SK}, s{S_T0}")
    a(f"s_and_b32 s{S_T0}, s{S_WAVE}, 1"); a(f"s_lshl_b32 s{S_T0}, s{S_T0}, 2")
    for i in range(5):
        a(f"v_add_u32 v{t}, {64*i}, v0"); a(f"v_mul_u32_u24 v{t+1}, 205, v{t}"); a(f"v_lshrrev_b32 v{t+1}, 14, v{t+1}")
        a(f"v_mul_u32_u24 v{t+2}, 80, v{t+1}"); a(f"v_sub_u32 v{t}, v{t}, v{t+2}")
        a(f"v_add_u32 v{t+2}, s{S_T0}, v{t+1}"); a(f"v_lshlrev_b32 v{t+2}, 1, v{t+2}"); a(f"v_xor_b32 v{t}, v{t}, v{t+2}")
        a(f"v_mul_u32_u24 v{t+1}, 1280, v{t+1}"); a(f"v_lshl_add_u32 v{VD+i}, v{t}, 4, v{t+1}")
    a(f"s_mul_i32 s{S_M0W}, s{S_WAVE}, 5120")
    def dma(m, buf):
        lab=f"RL{m}"
        a(f"s_add_u32 s{S_T0}, s{SK}, {16*m}")
        a(f"s_bfe_u32 s{S_T1}, s{S_WAVE}, 0x10001"); a(f"s_and_b32 s{S_T2}, s{S_WAVE}, 1"); a(f"s_lshr_b32 s{S_T3}, s{S_WAVE}, 2")
        a(f"s_cmp_ge_u32 s{S_T0}, 54"); a(f"s_cbranch_scc1 {lab}_WO")
        srd(a, S_B, P(7), 1728*1280)
        a(f"s_mul_i32 s{S_ROW}, s{S_T0}, 86"); a(f"s_lshr_b32 s{S_ROW}, s{S_ROW}, 8"); a(f"s_mul_i32 s{S_ROW}, s{S_ROW}, 3"); a(f"s_sub_u32 s{S_ROW}, s{S_T0}, s{S_ROW}")
        a(f"s_cmp_eq_u32 s{S_ROW}, 1"); a(f"s_cselect_b32 s{S_ROW}, 4, 3"); a(f"s_lshl_b32 s{S_T1}, s{S_T1}, s{S_ROW}")
        a(f"s_cmp_eq_u32 s{S_ROW}, 4"); a(f"s_cselect_b32 s{S_ROW}, 3, 4"); a(f"s_lshl_b32 s{S_T3}, s{S_T3}, s{S_ROW}")
        a(f"s_lshl_b32 s{S_T2}, s{S_T2}, 2"); a(f"s_lshl_b32 s{SO}, s{S_T0}, 5")
        a(f"s_branch {lab}_GO")
        a.label(f"{lab}_WO")
        srd(a, S_B, P(3), 640*1280)
        a(f"s_sub_u32 s{S_T0}, s{S_T0}, 54"); a(f"s_mul_i32 s{S_ROW}, s{S_T0}, 52"); a(f"s_lshr_b32 s{S_ROW}, s{S_ROW}, 8")
        a(f"s_mul_i32 s{SO}, s{S_ROW}, 160"); a(f"s_mul_i32 s{S_ROW}, s{S_ROW}, 5"); a(f"s_sub_u32 s{S_T0}, s{S_T0}, s{S_ROW}")
        a(f"s_cmp_eq_u32 s{S_T0}, 4"); a(f"s_cbranch_scc1 {lab}_LO")
        a(f"s_mul_i32 s{S_T0}, s{S_T0}, 40"); a(f"s_add_u32 s{SO}, s{SO}, s{S_T0}")
        a(f"s_mul_i32 s{S_T1}, s{S_T1}, 20"); a(f"s_lshl_b32 s{S_T2}, s{S_T2}, 2"); a(f"s_lshl_b32 s{S_T3}, s{S_T3}, 3")
        a(f"s_branch {lab}_GO")
        a.label(f"{lab}_LO")
        a(f"s_add_u32 s{SO}, s{SO}, 16"); a(f"s_xor_b32 s{S_T3}, s{S_T3}, s{S_T2}"); a(f"s_mul_i32 s{S_T3}, s{S_T3}, 20")
        a(f"s_mul_i32 s{S_T1}, s{S_T1}, 80"); a(f"s_mul_i32 s{S_T2}, s{S_T2}, 40")
        a.label(f"{lab}_GO")
        a(f"s_add_u32 s{SO}, s{SO}, s{S_T1}"); a(f"s_add_u32 s{SO}, s{SO}, s{S_T2}"); a(f"s_add_u32 s{SO}, s{SO}, s{S_T3}"); a(f"s_mul_i32 s{SO}, s{SO}, 1280")
        for i in range(5):
            a(f"s_add_u32 m0, s{S_M0W}, {buf*40960+1024*i}"); a(f"buffer_load_dwordx4 v{VD+i}, s[{S_B}:{S_B+3}], s{SO} offen lds")
    for m in range(4): dma(m, m)
    a(f"v_lshrrev_b32 v{t}, 2, v0"); a(f"v_and_b32 v{t+1}, 7, v{t}"); a(f"v_mul_u32_u24 v{t}, 1280, v{t}"); a(f"v_and_b32 v{t+2}, 3, v0"); a(f"v_lshl_add_u32 v{t}, v{t+2}, 3, v{t}")
    for nb in range(5):
        a(f"s_mul_i32 s{S_T0}, s{S_WAVE}, 5"); a(f"s_add_u32 s{S_T0}, s{S_T0}, {nb}"); a(f"s_and_b32 s{S_T1}, s{S_T0}, 7"); a(f"s_lshr_b32 s{S_T0}, s{S_T0}, 3"); a(f"s_lshl_b32 s{S_T0}, s{S_T0}, 8")
        a(f"v_xor_b32 v{t+2}, s{S_T1}, v{t+1}"); a(f"v_lshl_add_u32 v{t+2}, v{t+2}, 5, v{t}"); a(f"v_add_u32 v{VR+nb}, s{S_T0}, v{t+2}"); a(f"v_add_u32 v{VR+5+nb}, 81920, v{VR+nb}")
    a(f"v_lshlrev_b32 v{VS}, 4, v0"); a(f"v_add_u32 v{VS+1}, 4096, v{VS}")
    a(f"s_mul_i32 s{S_WOFF}, s{S_WAVE}, 74"); a(f"s_add_u32 s{S_WOFF}, s{S_WOFF}, s{SK}"); a(f"s_mul_i32 s{S_WOFF}, s{S_WOFF}, 5120"); a(f"s_add_u32 s{S_WOFF}, s{S_WOFF}, {WS_WT}")
    def conv(m, buf, nwait):
        a(f"s_waitcnt vmcnt({nwait})"); a("s_barrier")
        f=F+20*(m%2)
        for nb in range(5):
            for rd in range(2): a(f"ds_read_b64_tr_b16 {vr(f+4*nb+2*rd,2)}, v{VR+nb+(5 if buf>=2 else 0)} offset:{(buf%2)*40960+rd*20480}")
        a("s_waitcnt lgkmcnt(0)")
        for nb in range(5): a(f"buffer_store_dwordx4 {vr(f+4*nb,4)}, v{VS+(nb==4)}, s[{S_WS}:{S_WS+3}], s{S_WOFF} offen offset:{1024*nb if nb<4 else 0} sc1")
        a(f"s_add_u32 s{S_WOFF}, s{S_WOFF}, {16*5120}")
    conv(0,0,15)
    conv(1,1,15)
    a(f"s_cmp_lt_u32 s{SK}, 10"); a("s_cbranch_scc0 RL_NO5")
    dma(4, 0)
    a.label("RL_NO5")
    conv(2,2,15)
    conv(3,3,15)
    a(f"s_cmp_lt_u32 s{SK}, 10"); a("s_cbranch_scc0 RL_DONE")
    conv(4,0,10)
    a.label("RL_DONE")

def o_issue(a, RP, RQ, flags="sc1"):
    t=V_T
    a(f"s_lshr_b32 s{S_T0}, s2, 3")
    a(f"s_mul_i32 s{S_T1}, s{S_T0}, 81920"); a(f"s_add_u32 s{S_T1}, s{S_T1}, {WS_PQ}")
    a(f"s_and_b32 s{S_T2}, s2, 7"); a(f"s_lshl_b32 s{S_T2}, s{S_T2}, 3"); a(f"s_add_u32 s{S_T2}, s{S_T2}, s{S_WAVE}"); a(f"s_lshl_b32 s{S_T2}, s{S_T2}, 8")
    a(f"s_add_u32 s{S_T3}, s{S_T1}, s{S_T2}"); a(f"s_add_u32 s{S_T3}, s{S_T3}, 65536")
    a(f"s_lshl_b32 s{S_T2}, s{S_T2}, 1"); a(f"s_add_u32 s{S_T1}, s{S_T1}, s{S_T2}"); a(f"s_add_u32 s{S_T2}, s{S_T1}, 32768")
    a(f"v_and_b32 v{t}, 31, v0"); a(f"v_lshlrev_b32 v{t+1}, 3, v{t}"); a(f"v_lshlrev_b32 v{t}, 4, v{t}")
    a(f"buffer_load_dwordx4 {vr(RQ,4)}, v{t}, s[{S_WS}:{S_WS+3}], s{S_T1} offen {flags}")
    a(f"buffer_load_dwordx4 {vr(RQ+4,4)}, v{t}, s[{S_WS}:{S_WS+3}], s{S_T2} offen {flags}")
    a(f"buffer_load_dwordx2 {vr(RQ+8,2)}, v{t+1}, s[{S_WS}:{S_WS+3}], s{S_T3} offen {flags}")
    a(f"v_and_b32 v{t}, 31, v0"); a(f"s_mul_i32 s{S_T1}, s{S_WAVE}, 28"); a(f"v_add_u32 v{t+2}, s{S_T1}, v{t}"); a(f"v_min_u32 v{t+2}, 209, v{t+2}")
    a(f"v_lshrrev_b32 v{t+1}, 5, v0"); a(f"v_mul_u32_u24 v{t+1}, {4*32*3360}, v{t+1}"); a(f"v_lshl_add_u32 v{t}, v{t+2}, 4, v{t+1}")
    a(f"s_mul_i32 s{S_T0}, s{S_T0}, 3360"); a(f"s_add_u32 s{S_T0}, s{S_T0}, {WS_KVP}")
    for r in range(4):
        a(f"buffer_load_dwordx4 {vr(RP+4*r,4)}, v{t}, s[{S_WS}:{S_WS+3}], s{S_T0} offen {flags}")
        if r<3: a(f"s_add_u32 s{S_T0}, s{S_T0}, {32*3360}")
def o_kvz(a, RP, LB):
    t=V_T
    for e in (0,2):
        a(pk("v_pk_add_f32", RP+e, [RP+e, RP+4+e], "pp")); a(pk("v_pk_add_f32", RP+8+e, [RP+8+e, RP+12+e], "pp"))
    for e in (0,2): a(pk("v_pk_add_f32", RP+e, [RP+e, RP+8+e], "pp"))
    for e in range(4): a(f"v_mov_b32 v{RP+4+e}, v{RP+e}")
    for e in range(4): a(f"v_permlane32_swap_b32 v{RP+e}, v{RP+4+e}")
    for e in (0,2): a(pk("v_pk_add_f32", RP+e, [RP+e, RP+4+e], "pp"))
    a(f"v_cvt_pk_bf16_f32 v{RP+4}, v{RP}, v{RP+1}"); a(f"v_cvt_pk_bf16_f32 v{RP+5}, v{RP+2}, v{RP+3}")
    a(f"v_mov_b32 v{RP+6}, 0"); a(f"v_mov_b32 v{RP+7}, 0")
    a(f"v_and_b32 v{t}, 31, v0"); a(f"s_mul_i32 s{S_T1}, s{S_WAVE}, 28"); a(f"v_add_u32 v{t}, s{S_T1}, v{t}"); a(f"v_min_u32 v{t}, 209, v{t}")
    a(f"v_mul_u32_u24 v{t+1}, 3121, v{t}"); a(f"v_lshrrev_b32 v{t+1}, 16, v{t+1}")
    a(f"v_mul_u32_u24 v{t+2}, 21, v{t+1}"); a(f"v_sub_u32 v{t+2}, v{t}, v{t+2}")
    a(f"v_cmp_le_u32 vcc, 5, v{t+1}"); a(f"v_cndmask_b32 v{t+3}, 0, 1, vcc")
    a(f"v_mul_u32_u24 v{t+4}, 5, v{t+3}"); a(f"v_sub_u32 v{t+1}, v{t+1}, v{t+4}")
    a(f"v_cmp_eq_u32 vcc, 20, v{t+2}"); a(f"v_cndmask_b32 v{t+4}, 0, 4, vcc"); a(f"v_lshrrev_b32 v{t+5}, 5, v0"); a(f"v_mad_u32_u24 v{t+2}, v{t+4}, v{t+5}, v{t+2}")
    a(f"v_lshl_add_u32 v{t+3}, v{t+3}, 5, v{t+2}"); a(f"v_lshlrev_b32 v{t+3}, 4, v{t+3}")
    a(f"v_lshrrev_b32 v{t+4}, 1, v{t+1}"); a(f"v_lshl_add_u32 v{t+3}, v{t+4}, 10, v{t+3}")
    a(f"v_and_b32 v{t+4}, 1, v{t+1}"); a(f"v_lshl_add_u32 v{t+3}, v{t+4}, 3, v{t+3}"); a(f"v_add_u32 v{t+3}, {LB}, v{t+3}")
    a(f"ds_write_b64 v{t+3}, {vr(RP+4,2)}")
    a(f"v_cmp_eq_u32 vcc, 4, v{t+1}"); a(f"s_mov_b64 exec, vcc")
    a(f"ds_write_b64 v{t+3}, {vr(RP+6,2)} offset:8")
    a("s_mov_b64 exec, -1")
def o_softmax(a, RQ, T, F):
    t=V_T
    a(f"v_lshrrev_b32 v{t}, 5, v0"); a(f"v_mul_u32_u24 v{t}, 0x8000, v{t}"); a(f"v_lshl_add_u32 v{t}, v{t}, 16, v{t}")
    for k in range(10): a(f"v_xor_b32 v{RQ+k}, v{RQ+k}, v{t}")
    for k in range(10): a(f"v_lshlrev_b32 v{T+2*k}, 16, v{RQ+k}"); a(f"v_and_b32 v{T+2*k+1}, 0xffff0000, v{RQ+k}")
    softmax20(a, [T+2*i for i in range(10)], +1, T+20, F)
    a(f"v_mov_b32 v{F+10}, 0"); a(f"v_mov_b32 v{F+11}, 0")
def o_finish(a, LB, AF, F, D, flags="sc1"):
    t=V_T
    a(f"v_lshlrev_b32 v{t}, 4, v0"); a(f"v_add_u32 v{t}, {LB}, v{t}")
    for s in range(3): a(f"ds_read_b128 {vr(AF+4*s,4)}, v{t} offset:{1024*s}")
    a(f"s_lshr_b32 s{S_T0}, s2, 3")
    a(f"s_and_b32 s{S_T1}, s2, 7"); a(f"s_lshl_b32 s{S_T1}, s{S_T1}, 3"); a(f"s_add_u32 s{S_T1}, s{S_T1}, s{S_WAVE}"); a(f"s_mul_i32 s{S_T1}, s{S_T1}, 40")
    a(f"s_lshr_b32 s{S_T2}, s{S_T0}, 3"); a(f"s_mul_i32 s{S_T2}, s{S_T2}, 5"); a(f"s_add_u32 s{S_T1}, s{S_T1}, s{S_T2}")
    a(f"s_lshl_b32 s{S_T1}, s{S_T1}, 10"); a(f"s_add_u32 s{S_T1}, s{S_T1}, {WS_O}")
    a(f"s_and_b32 s{S_T0}, s{S_T0}, 7")
    a(f"s_lshl_b32 s{S_T2}, s{S_T0}, 9"); a(f"s_add_u32 s{S_T2}, s{S_T2}, s{S_T1}")
    a(f"s_lshr_b32 s{S_T3}, s{S_T0}, 1"); a(f"s_xor_b32 s{S_T0}, s{S_T0}, s{S_T3}"); a(f"s_and_b32 s{S_T0}, s{S_T0}, 1"); a(f"s_lshl_b32 s{S_T0}, s{S_T0}, 3")
    a(f"s_lshl_b32 s{S_T3}, s{S_T3}, 8"); a(f"s_add_u32 s{S_T0}, s{S_T0}, s{S_T3}"); a(f"s_add_u32 s{S_T0}, s{S_T0}, s{S_T1}"); a(f"s_add_u32 s{S_T0}, s{S_T0}, 4096")
    a(f"v_bfe_u32 v{t}, v0, 4, 1"); a(f"v_mul_u32_u24 v{t}, 20480, v{t}"); a(f"v_and_b32 v{t+1}, 15, v0"); a(f"v_lshl_add_u32 v{t}, v{t+1}, 4, v{t}")
    a(f"v_lshrrev_b32 v{t+1}, 5, v0"); a(f"v_lshl_add_u32 v{t+1}, v{t+1}, 8, v{t}")
    a(f"v_cmp_gt_u32 vcc, 32, v0")
    a("s_waitcnt lgkmcnt(0)")
    for s in range(3): a(f"v_mfma_f32_32x32x16_bf16 {vr(D,16)}, {vr(AF+4*s,4)}, {vr(F+4*s,4)}, {vr(D,16) if s else 0}")
    a(f"v_cndmask_b32 v{D+14}, v{D+8}, v{D+12}, vcc"); a(f"v_add_f32 v{D+14}, 0x358637bd, v{D+14}"); a(f"v_rcp_f32 v{D+14}, v{D+14}")
    for i in range(0,12,2): a(pk("v_pk_mul_f32", D+i, [D+i, D+14], "pl"))
    for k in range(6): a(f"v_cvt_pk_bf16_f32 v{AF+k}, v{D+2*k}, v{D+2*k+1}")
    a(f"buffer_store_dwordx4 {vr(AF,4)}, v{t+1}, s[{S_WS}:{S_WS+3}], s{S_T2} offen {flags}")
    a("s_mov_b32 exec_hi, 0")
    a(f"buffer_store_dwordx2 {vr(AF+4,2)}, v{t}, s[{S_WS}:{S_WS+3}], s{S_T0} offen {flags}")
    a("s_mov_b64 exec, -1")

S_BO=39; S_AO=40; S_LB=41
G_A=1
G_B=5
G_L=7
G_X=8
G_F=11
def g2_addr_b(a):
    a(f"v_lshlrev_b32 v{G_B}, 4, v0"); a(f"v_add_u32 v{G_B+1}, 4096, v{G_B}")
    a(f"s_mul_i32 s{S_LB}, s{S_WAVE}, 20480"); a(f"v_add_u32 v{G_L}, s{S_LB}, v{G_B}")
    a(f"s_mul_i32 s{S_T0}, s{S_WAVE}, 9"); a(f"s_cmp_eq_u32 s{S_WAVE}, 7"); a(f"s_cselect_b32 s{S_T0}, 64, s{S_T0}")
    a(f"s_bfe_u32 s{S_T1}, s2, 0x30003"); a(f"s_mul_i32 s{S_T1}, s{S_T1}, 74"); a(f"s_add_u32 s{S_BO}, s{S_T0}, s{S_T1}"); a(f"s_mul_i32 s{S_BO}, s{S_BO}, 5120"); a(f"s_add_u32 s{S_BO}, s{S_BO}, {WS_WT}")
def g2_addr_a(a):
    a(f"s_and_b32 s{S_T0}, s2, 7"); a(f"s_lshl_b32 s{S_T0}, s{S_T0}, 4"); a(f"s_lshr_b32 s{S_T1}, s2, 6"); a(f"s_lshl_b32 s{S_T1}, s{S_T1}, 2"); a(f"s_add_u32 s{S_T0}, s{S_T0}, s{S_T1}")
    a(f"s_mul_i32 s{S_T1}, s{S_WAVE}, 9"); a(f"s_mul_i32 s{S_T2}, s{S_WAVE}, 10"); a(f"s_sub_u32 s{S_T2}, s{S_T2}, 60")
    a(f"s_cmp_ge_u32 s{S_WAVE}, 6"); a(f"s_cselect_b32 s{S_T1}, s{S_T2}, s{S_T1}"); a(f"s_cselect_b32 s{S_T2}, 20, 54"); a(f"s_mov_b32 s{S_T3}, {WS_H}"); a(f"s_cselect_b32 s{S_T3}, {WS_O}, s{S_T3}")
    a(f"s_mul_i32 s{S_AO}, s{S_T0}, s{S_T2}"); a(f"s_add_u32 s{S_AO}, s{S_AO}, s{S_T1}"); a(f"s_lshl_b32 s{S_AO}, s{S_AO}, 10"); a(f"s_add_u32 s{S_AO}, s{S_AO}, s{S_T3}")
    a(f"s_lshl_b32 s{S_T2}, s{S_T2}, 10"); a(f"v_lshlrev_b32 v{G_A}, 4, v0")
    for i in range(1,4): a(f"v_add_u32 v{G_A+i}, s{S_T2}, v{G_A+i-1}")
def g2_bdma(s, slot):
    L=[]
    for nb in range(5):
        it=[f"s_add_u32 m0, s{S_LB}, {slot*5120+(4096 if nb==4 else 0)}"]
        if nb==0: it.insert(0, f"s_add_u32 s{S_T3}, s{S_BO}, {s*5120}")
        it.append(f"buffer_load_dwordx4 v{G_B+(nb==4)}, s[{S_WS}:{S_WS+3}], s{S_T3} offen offset:{1024*nb if nb<4 else 0} sc1 lds")
        L.append(it)
    return L
def g2_bload(s, R):
    L=[]
    for nb in range(5):
        it=[]
        if nb==0: it.append(f"s_add_u32 s{S_T3}, s{S_BO}, {s*5120}")
        it.append(f"buffer_load_dwordx4 {vr(R+4*nb,4)}, v{G_B+(nb==4)}, s[{S_WS}:{S_WS+3}], s{S_T3} offen offset:{1024*nb if nb<4 else 0} sc1")
        L.append(it)
    return L
def g2_aload(s, R):
    L=[]
    for t in range(4):
        it=[]
        if t==0: it.append(f"s_add_u32 s{S_T2}, s{S_AO}, {s*1024}")
        it.append(f"buffer_load_dwordx4 {vr(R+4*t,4)}, v{G_A+t}, s[{S_WS}:{S_WS+3}], s{S_T2} offen sc1")
        L.append(it)
    return L
def g2_lread(slot, R):
    return [f"ds_read_b128 {vr(R+4*nb,4)}, v{G_L} offset:{slot*5120+nb*1024}" for nb in range(5)]
def g2_mfma(Wf, Af, first):
    return [f"v_mfma_f32_16x16x32_bf16 {vr(ACC+4*(4*nb+t),4)}, {vr(Wf+4*nb,4)}, {vr(Af+4*t,4)}, {0 if first else vr(ACC+4*(4*nb+t),4)}" for t in range(4) for nb in range(5)]
def g2_x_issue(a, R):
    t=V_T
    a(f"s_and_b32 s{S_T0}, s2, 7"); a(f"s_lshl_b32 s{S_T0}, s{S_T0}, 8"); a(f"s_lshr_b32 s{S_T1}, s2, 6"); a(f"s_lshl_b32 s{S_T1}, s{S_T1}, 6"); a(f"s_add_u32 s{S_T0}, s{S_T0}, s{S_T1}")
    a(f"s_lshl_b32 s{S_T1}, s{S_WAVE}, 3"); a(f"s_add_u32 s{S_T0}, s{S_T0}, s{S_T1}"); a(f"s_mul_i32 s{S_T0}, s{S_T0}, 1280")
    a(f"s_bfe_u32 s{S_T1}, s2, 0x30003"); a(f"s_mul_i32 s{S_T1}, s{S_T1}, 160"); a(f"s_add_u32 s{S_T0}, s{S_T0}, s{S_T1}")
    for r in range(3):
        a(f"v_add_u32 v{t}, {64*r}, v0"); a(f"v_mul_u32_u24 v{t+1}, 205, v{t}"); a(f"v_lshrrev_b32 v{t+1}, 12, v{t+1}")
        a(f"v_mul_u32_u24 v{t+2}, {1280-160}, v{t+1}"); a(f"v_lshl_add_u32 v{t+2}, v{t}, 3, v{t+2}"); a(f"v_add_u32 v{G_X+r}, s{S_T0}, v{t+2}")
        if r==2:
            a(f"v_cmp_gt_u32 vcc, 32, v0"); a(f"v_mov_b32 v{t}, 0x7ffffff0"); a(f"v_cndmask_b32 v{G_X+r}, v{t}, v{G_X+r}, vcc")
        a(f"buffer_load_dwordx2 {vr(R+2*r,2)}, v{G_X+r}, s[{S_XALL}:{S_XALL+3}], 0 offen")
def g2_reduce_final(a, RX):
    t=V_T
    a(f"v_and_b32 v{t}, 15, v0"); a(f"v_mul_u32_u24 v{t}, 320, v{t}"); a(f"v_lshrrev_b32 v{t+1}, 4, v0"); a(f"v_lshrrev_b32 v{t+2}, 1, v0"); a(f"v_xor_b32 v{t+1}, v{t+1}, v{t+2}")
    a(f"v_and_b32 v{t+1}, 3, v{t+1}"); a(f"v_lshl_add_u32 v{t}, v{t+1}, 4, v{t}"); a(f"v_add_u32 v{t}, s{S_LB}, v{t}")
    for nb in range(5):
        for tb in range(4): a(f"ds_write_b128 v{t}, {vr(ACC+4*(4*nb+tb),4)} offset:{tb*5120+nb*64}")
    RA=t+1
    for r in range(3):
        a(f"v_add_u32 v{t+4}, {64*r}, v0"); a(f"v_mul_u32_u24 v{t+5}, 205, v{t+4}"); a(f"v_lshrrev_b32 v{t+5}, 13, v{t+5}")
        a(f"v_and_b32 v{t+5}, 3, v{t+5}"); a(f"v_xor_b32 v{t+4}, v{t+4}, v{t+5}")
        a(f"v_lshlrev_b32 v{RA+r}, 4, v{t+4}")
    a(f"s_mul_i32 s{S_T0}, s{S_WAVE}, 2560")
    for r in range(3): a(f"v_add_u32 v{RA+r}, s{S_T0}, v{RA+r}")
    V2=t+4
    for r in range(3): a(f"v_add_u32 v{V2+r}, 81920, v{RA+r}")
    a(f"v_cmp_gt_u32 vcc, 32, v0"); a(f"v_cndmask_b32 v{V2+2}, 0, v{V2+2}, vcc")
    a("s_waitcnt lgkmcnt(0)"); a("s_barrier")
    B=128
    for r in range(3):
        for w in range(8): a(f"ds_read_b128 {vr(B+32*r+4*w,4)}, v{(RA if w<4 else V2)+r} offset:{(w%4)*20480}")
    a(f"s_mov_b32 s{S_L2E}, {LOG2E|0x80000000}")
    for r in range(3):
        a(f"s_waitcnt lgkmcnt({min(15,8*(2-r))})")
        b=B+32*r
        for w in (1,2):
            for e in (0,2): a(pk("v_pk_add_f32", b+e, [b+e, b+4*w+e], "pp")); a(pk("v_pk_add_f32", b+12+e, [b+12+e, b+12+4*w+e], "pp"))
        for e in (0,2): a(pk("v_pk_add_f32", b+e, [b+e, b+12+e], "pp")); a(pk("v_pk_add_f32", b+24+e, [b+24+e, b+28+e], "pp"))
        for e in range(4): a(f"v_mul_f32 v{b+4+e}, s{S_L2E}, v{b+e}")
        for e in range(4): a(f"v_exp_f32 v{b+4+e}, v{b+4+e}")
        for e in (0,2): a(pk("v_pk_mul_f32", b+e, [b+e, b+24+e], "pp"))
        for e in range(4): a(f"v_add_f32 v{b+4+e}, 1.0, v{b+4+e}")
        for e in range(4): a(f"v_rcp_f32 v{b+4+e}, v{b+4+e}")
        for e in range(2): a(f"v_lshlrev_b32 v{b+8+2*e}, 16, v{RX+2*r+e}"); a(f"v_and_b32 v{b+9+2*e}, 0xffff0000, v{RX+2*r+e}")
        for e in (0,2): a(pk("v_pk_fma_f32", b+8+e, [b+e, b+4+e, b+8+e], "ppp"))
        a(f"v_cvt_pk_bf16_f32 v{b}, v{b+8}, v{b+9}"); a(f"v_cvt_pk_bf16_f32 v{b+1}, v{b+10}, v{b+11}")
        a(f"buffer_store_dwordx2 {vr(b,2)}, v{G_X+r}, s[{S_OUT}:{S_OUT+3}], 0 offen")
```

```python
import sys
from asmlib import *
from p1 import *
from p1e import *
from p2 import *
import hazard
KN="recurrent_scan__linear_kernel_hedgehog__swiglu_ffn__prompt_kernel"
HDR = open("recurrent_scan__linear_kernel_hedgehog__swiglu_ffn__prompt.s.ref").read().split("; Override launch")[0]
S_ST=84
R_CS=[184,192]; A_CS=200; R_G=224; R_ST=232; R_RS=244; R_D=252; R_FL=254; R_NON=240; V_FA=31; V_FB=30; R_FS=28
class Gen:
    def __init__(self, name=KN, timing=False, fused=True, opts=None):
        self.a=Asm(); self.name=name; self.timing=timing; self.fused=fused; self.o=opts or {}
        self.nst=0
    def stamp(self, i):
        if self.timing:
            self.a(f"s_memrealtime s[{S_ST}:{S_ST+1}]"); self.a("s_waitcnt lgkmcnt(0)"); self.a(f"v_writelane_b32 v26, s{S_ST}, {i}")
    def only(self, w, lab):
        self.a(f"s_cmp_eq_u32 s{S_WAVE}, {w}"); self.a(f"s_cbranch_scc0 {lab}")
    def phase1(self, gu):
        a=self.a; vm=VM(); lp=Loop(gu, vm, self.o); tag="GU" if gu else "QKV"; o=self.o
        (w_dma_addr_gu if gu else w_dma_addr_qkv)(a); (cs_addr_gu if gu else cs_addr_qkv)(a)
        a("s_waitcnt lgkmcnt(0)"); srds_common(a); (srds_gu if gu else srds_qkv)(a)
        F=self.fused
        if F:
            srd(a, S_DBG, P(9), 256)
            if not gu: nonce_write(a); vm.add("nonce", False)
        if o.get("pf",1):
            lp.put(a, [("vm","xpf", xpf_item(V_T, R_D, 0, 4))])
        lp.put(a, [("vm","c0", colsum_issue(R_CS[0], 0), 2)])
        stats_issue(a, R_ST, vm)
        if not gu: phi_dma(a, vm)
        lp.put(a, lp.dma_w(0)+lp.dma_x(0))
        lp.read_addr(a)
        if not gu: lds_zero_init(a)
        late=o.get("late",1)
        if not late:
            lp.put(a, [("vm","c1", colsum_issue(R_CS[1], 1), 2)])
            lp.put(a, lp.dma_w(1)+lp.dma_x(1))
        a(f"s_waitcnt vmcnt({vm.n_after({'stats'})})")
        self.stamp(1)
        stats_compute(a, R_ST, XB[0], vm)
        a(colsum_acc(R_CS[0], A_CS, V_T, True, gu))
        if not late: lp.put(a, lp.dma_x(2))
        else: lp.put(a, [("vm","c1", colsum_issue(R_CS[1], 1), 2)])
        a(f"s_waitcnt vmcnt({vm.n_after({'W0','X0'})}) lgkmcnt(0)"); a("s_barrier")
        self.stamp(2)
        if self.timing: a("s_memtime s[98:99]")
        def extra(c, half):
            k=(c,half)
            if late:
                if k==(0,0): return lp.dma_w(1)+lp.dma_x(1)
                if k==(0,1): return [("vm","c2", colsum_issue(R_CS[0], 2), 2)]+([("vm","xpf", xpf_item(V_T, R_D, 4, 6))] if o.get("pf",1) else [])
                if k==(1,0): return lp.dma_x(2)
            if o.get("noextra"): return []
            if k==(0,0): return [("vm","c2", colsum_issue(R_CS[0], 2), 2)]
            if k==(0,1) and o.get("pf",1): return [("vm","xpf", xpf_item(V_T, R_D, 4, 6))]
            if k==(2,0): return colsum_acc(R_CS[1], A_CS, V_T, False, gu)
            if k==(3,0): return [("vm","c3", colsum_issue(R_CS[1], 3), 2)]
            if k==(4,0): return colsum_acc(R_CS[0], A_CS, V_T, False, gu)
            if k==(5,0): return [("vm","c4", colsum_issue(R_CS[0], 4), 2)]
            if k==(6,0): return colsum_acc(R_CS[1], A_CS, V_T, False, gu)
            if k==(8,0): return colsum_acc(R_CS[0], A_CS, V_T, False, gu)
            if k==(8,1): return colsum_fold(A_CS, V_T, gu)
            if F and k==(4,1): return [("vm","non", nonce_issue(R_NON))]
            if F and k==(12,0): return fa_stats(V_FA, V_T)+fa_spare(V_FB, V_T)
            if F and k==(14,0): return [("cond","pst", [f"s_cmp_eq_u32 s{S_WAVE}, 2", f"s_cbranch_scc0 {tag}_NPS"]+poll_issue(V_FA, R_FL)+[f"{tag}_NPS:"])]
            if F and k==(18,0): return [("vm","psp", poll_issue(V_FB, R_FS))]
            return []
        def post_bar(a, S):
            if S==4:
                self.only(0, f"{tag}_NCS"); colsum_store(a, 184, V_T); a.label(f"{tag}_NCS"); vm.add("csst", False)
            if S==3 and F: nonce_take(a, R_NON, f"{tag}_NON")
            if S==5 and F:
                self.only(1, f"{tag}_NP1"); publish(a, 1, V_T); a.label(f"{tag}_NP1"); vm.add("pub", False)
            if S==7:
                self.only(2, f"{tag}_NG")
                if F:
                    a(f"s_waitcnt vmcnt({vm.n_after({'pst'})})"); poll_wait(a, V_FA, R_FL, V_T, 1, f"{tag}_PS", True)
                colsum_gather_issue(a, R_G, V_T); a.label(f"{tag}_NG")
                for _ in range(4): vm.add("gat", False)
            if S==8:
                epi_load_rs(a, R_RS)
                for _ in range(4): vm.add("rs")
                self.only(2, f"{tag}_NG2"); a("s_waitcnt vmcnt(4)"); colsum_gather_sum(a, R_G, V_T); a.label(f"{tag}_NG2")
        lp.emit(a, extra, None, post_bar)
        self.stamp(3)
        if self.timing: a("s_memtime s[100:101]"); a("s_waitcnt lgkmcnt(0)"); a(f"s_sub_u32 s100, s100, s98"); a("v_writelane_b32 v26, s100, 14")
        if not gu: a(phi_frags(a))
        a("s_waitcnt lgkmcnt(0)"); a("s_barrier")
        epi_read_cs(a, gu)
        a("s_waitcnt vmcnt(0) lgkmcnt(0)")
        if gu:
            epi_gu(a, R_RS)
        else:
            a(f"s_cmp_eq_u32 s{S_TYPE}, {T_KV}"); a("s_cbranch_scc1 EKV")
            epi_q(a, R_RS); a("s_branch P1_FIN")
            a.label("EKV"); epi_kv(a, R_RS)
    def phase2(self):
        a=self.a; o=self.o; vm=VM()
        AB=[112,128,144]; BR=[160,180,200,220]; RX=244; RPL=250
        def put(items, tag):
            for x in items: a(x); vm.add(tag)
        vm.add("est")
        g2_addr_b(a); a(fa_qkv(G_F, V_T))
        nbe=o.get("nbe",0)
        if nbe:
            a("s_waitcnt vmcnt(63)")
        put([poll_issue(G_F, RPL)], "pq")
        a("s_waitcnt vmcnt(0)"); a("s_barrier")
        self.only(0, "P2_NP2"); a(f"s_cmp_eq_u32 s{S_TYPE}, {T_SP}"); a("s_cbranch_scc1 P2_NP2"); publish(a, 2, V_T); a.label("P2_NP2")
        self.stamp(5)
        poll_wait(a, G_F, RPL, V_T, 2, "P2_PQ", True)
        self.stamp(6)
        o_issue(a, 32, 48)
        for _ in range(7): vm.add("o")
        poll_wait(a, V_FB, R_FS, V_T, 2, "P2_PS", True)
        for s in range(4): put(g2_bload(s, BR[s]), f"B{s}")
        a(fa_gemm2(G_F, V_T)); g2_addr_a(a); srd(a, S_OUT, P(8), 2048*1280)
        a(f"s_waitcnt vmcnt({vm.n_after({'o'})-4+4})")
        o_kvz(a, 32, 15360)
        o_softmax(a, 48, 60, 112)
        a("s_waitcnt lgkmcnt(0)"); a("s_barrier")
        o_finish(a, 15360, 124, 112, 32)
        vm.add("ost"); vm.add("ost")
        put([poll_issue(G_F, RPL)], "pg")
        for s in range(3): put(g2_bdma(4+s, s), f"B{4+s}")
        a(f"s_waitcnt vmcnt({vm.n_after({'pg'})})"); a("s_barrier")
        self.only(0, "P2_NP3"); publish(a, 3, V_T); a.label("P2_NP3"); vm.add("pub", False)
        self.stamp(7)
        put(g2_bdma(7, 3), "B7")
        poll_wait(a, G_F, RPL, V_T, 2, "P2_PG0", True)
        a(f"s_cmp_ge_u32 s{S_WAVE}, 6"); a("s_cbranch_scc0 P2_GO")
        poll_wait(a, G_F, RPL, V_T, 3, "P2_PG1", True)
        a.label("P2_GO")
        self.stamp(8)
        for s in range(3): put(g2_aload(s, AB[s]), f"A{s}")
        g2_x_issue(a, RX)
        for _ in range(3): vm.add("x")
        for s in range(10):
            if s==9:
                a(f"s_cmp_ge_u32 s{S_WAVE}, 6"); a("s_cbranch_scc0 P2_RED")
            need={f"A{s}", f"B{s}"}
            a(f"s_waitcnt vmcnt({vm.n_after(need)})" + (" lgkmcnt(0)" if 4<=s<8 else ""))
            m=g2_mfma(BR[s%4], AB[s%3], s==0)
            post=[]
            a(m)
            if s+3<10:
                sure = s+3<9
                if not sure: a(f"s_cmp_ge_u32 s{S_WAVE}, 6"); a(f"s_cbranch_scc0 P2_NA{s}")
                for x in g2_aload(s+3, AB[s%3]): a(x); vm.add(f"A{s+3}", sure)
                if not sure: a.label(f"P2_NA{s}")
            if s<4:
                a(f"s_waitcnt vmcnt({vm.n_after({f'B{s+4}'})})")
                a(g2_lread(s, BR[s]))
            if s in (4,5):
                sure = s==4
                if not sure: a(f"s_cmp_ge_u32 s{S_WAVE}, 6"); a(f"s_cbranch_scc0 P2_NB{s}")
                for x in g2_bload(s+4, BR[s%4]): a(x); vm.add(f"B{s+4}", sure)
                if not sure: a.label(f"P2_NB{s}")
        a.label("P2_RED")
        a("s_nop 7")
        a("s_waitcnt vmcnt(0)")
        self.stamp(9)
        a("s_barrier")
        g2_reduce_final(a, RX)
    def build(self):
        a=self.a; a.raw(kernel_header(self.name))
        a("s_cmp_ge_u32 s2, 256"); a("s_cbranch_scc1 K_END")
        self.stamp(0)
        load_ptrs(a); decode_ids(a); x_dma_addr(a)
        a(f"s_mov_b32 s{S_WOFF}, 0")
        a(f"s_cmp_eq_u32 s{S_TYPE}, {T_SP}"); a("s_cbranch_scc1 SPARE")
        a(f"s_cmp_eq_u32 s{S_TYPE}, {T_GU}"); a("s_cbranch_scc0 P1_QKV")
        self.phase1(1); a("s_branch P1_FIN")
        a.label("P1_QKV"); self.phase1(0); a("s_branch P1_FIN")
        a.label("SPARE")
        a("s_waitcnt lgkmcnt(0)"); srds_common(a); srd(a, S_DBG, P(9), 256)
        a(xpf_item(V_T, R_D, 0, 4)); stats_issue(a, R_ST); a(xpf_item(V_T, R_D+1, 4, 6))
        a("s_waitcnt vmcnt(1)"); stats_compute(a, R_ST, XB[0])
        if self.fused:
            a(nonce_issue(R_NON)); a(fa_spare(V_FB, V_T))
            a("s_waitcnt vmcnt(0)"); nonce_take(a, R_NON, "SP_NON"); a("s_barrier")
            self.only(1, "SP_NP1"); publish(a, 1, V_T); a.label("SP_NP1")
        for i in (1,2): self.stamp(i)
        relayout(a)
        self.stamp(3)
        if self.fused:
            a("s_waitcnt vmcnt(0)"); a("s_barrier")
            self.only(1, "SP_NP2"); publish(a, 2, V_T); a.label("SP_NP2")
            a(poll_issue(V_FB, R_FS))
        a.label("P1_FIN")
        self.stamp(4)
        if self.fused: self.phase2()
        if self.timing:
            last = 10 if self.fused else 5
            a("s_waitcnt vmcnt(0)"); self.stamp(last); a("s_waitcnt lgkmcnt(0)")
            a(f"v_writelane_b32 v26, s{S_TYPE}, 15")
            a(f"s_lshl_b32 s{S_T0}, s2, 3"); a(f"s_add_u32 s{S_T0}, s{S_T0}, s{S_WAVE}"); a(f"s_lshl_b32 s{S_T0}, s{S_T0}, 6"); a(f"s_add_u32 s{S_T0}, s{S_T0}, {WS_DBG}")
            a("v_lshlrev_b32 v3, 2, v0"); a("s_mov_b64 exec, 0xffff")
            a(f"buffer_store_dword v26, v3, s[{S_WS}:{S_WS+3}], s{S_T0} offen")
        a.label("K_END"); a("s_endpgm")
        return hazard.fix(a.text(), True)
def write(path, ks, launches=None):
    out=HDR
    for n in (launches or [k[0] for k in ks]):
        l=[k for k in ks if k[0]==n][0][3]
        out+=f"; @launch kernel={n} grid=(256,1,1) block=(512,1,1) lds={l}\n"
    out+='.amdgcn_target "amdgcn-amd-amdhsa--gfx950"\n.text\n'
    for n,t,_,_ in ks: out+=t+"\n"
    out+='.section .rodata,"a"\n'
    for n,_,v,_ in ks: out+=kernel_desc(n, v)
    open(path,"w").write(out)

def fusedfile(path, opts=None, timing=False):
    g=Gen(KN, timing=timing, fused=True, opts=opts)
    t=g.build()
    out=HDR+"; @launch grid=(256,1,1) block=(512,1,1) lds=163840\n"+'.amdgcn_target "amdgcn-amd-amdhsa--gfx950"\n.text\n'+t+"\n"+'.section .rodata,"a"\n'+kernel_desc(KN,256)
    open(path,"w").write(out)
if __name__=="__main__":
    opts=eval(sys.argv[1]) if len(sys.argv)>1 else {}
    fusedfile("f_t.s", opts, True)
    fusedfile("f.s", opts, False)
```

```python
import sys
from asmlib import *
from p1 import *
from p1e import *
from p2 import *
import hazard
KN="recurrent_scan__linear_kernel_hedgehog__swiglu_ffn__prompt_kernel"
HDR = open("recurrent_scan__linear_kernel_hedgehog__swiglu_ffn__prompt.s.ref").read().split("; Override launch")[0]
S_ST=84
R_CS=[184,192]; A_CS=200; R_G=224; R_ST=232; R_RS=244; R_D=252; R_FL=254; R_NON=240; V_FA=31; V_FB=30; R_FS=28
class Gen:
    def __init__(self, name=KN, timing=False, fused=True, opts=None):
        self.a=Asm(); self.name=name; self.timing=timing; self.fused=fused; self.o=opts or {}
        self.nst=0
    def stamp(self, i):
        if self.timing:
            self.a(f"s_memrealtime s[{S_ST}:{S_ST+1}]"); self.a("s_waitcnt lgkmcnt(0)"); self.a(f"v_writelane_b32 v26, s{S_ST}, {i}")
    def only(self, w, lab):
        self.a(f"s_cmp_eq_u32 s{S_WAVE}, {w}"); self.a(f"s_cbranch_scc0 {lab}")
    def phase1(self, gu):
        a=self.a; vm=VM(); lp=Loop(gu, vm, self.o); tag="GU" if gu else "QKV"; o=self.o
        (w_dma_addr_gu if gu else w_dma_addr_qkv)(a); (cs_addr_gu if gu else cs_addr_qkv)(a)
        a("s_waitcnt lgkmcnt(0)"); srds_common(a); (srds_gu if gu else srds_qkv)(a)
        F=self.fused
        if F:
            srd(a, S_DBG, P(9), 256)
            if not gu: nonce_write(a); vm.add("nonce", False)
        if o.get("pf",1):
            lp.put(a, [("vm","xpf", xpf_item(V_T, R_D, 0, 4))])
        lp.put(a, [("vm","c0", colsum_issue(R_CS[0], 0), 2)])
        stats_issue(a, R_ST, vm)
        if not gu: phi_dma(a, vm)
        lp.put(a, lp.dma_w(0)+lp.dma_x(0))
        lp.read_addr(a)
        if not gu: lds_zero_init(a)
        late=o.get("late",1)
        if not late:
            lp.put(a, [("vm","c1", colsum_issue(R_CS[1], 1), 2)])
            lp.put(a, lp.dma_w(1)+lp.dma_x(1))
        a(f"s_waitcnt vmcnt({vm.n_after({'stats'})})")
        self.stamp(1)
        stats_compute(a, R_ST, XB[0], vm)
        a(colsum_acc(R_CS[0], A_CS, V_T, True, gu))
        if not late: lp.put(a, lp.dma_x(2))
        else: lp.put(a, [("vm","c1", colsum_issue(R_CS[1], 1), 2)])
        a(f"s_waitcnt vmcnt({vm.n_after({'W0','X0'})}) lgkmcnt(0)"); a("s_barrier")
        self.stamp(2)
        if self.timing: a("s_memtime s[98:99]")
        def extra(c, half):
            k=(c,half)
            if late:
                if k==(0,0): return lp.dma_w(1)+lp.dma_x(1)
                if k==(0,1): return [("vm","c2", colsum_issue(R_CS[0], 2), 2)]+([("vm","xpf", xpf_item(V_T, R_D, 4, 6))] if o.get("pf",1) else [])
                if k==(1,0): return lp.dma_x(2)
            if o.get("noextra"): return []
            if k==(0,0): return [("vm","c2", colsum_issue(R_CS[0], 2), 2)]
            if k==(0,1) and o.get("pf",1): return [("vm","xpf", xpf_item(V_T, R_D, 4, 6))]
            if k==(2,0): return colsum_acc(R_CS[1], A_CS, V_T, False, gu)
            if k==(3,0): return [("vm","c3", colsum_issue(R_CS[1], 3), 2)]
            if k==(4,0): return colsum_acc(R_CS[0], A_CS, V_T, False, gu)
            if k==(5,0): return [("vm","c4", colsum_issue(R_CS[0], 4), 2)]
            if k==(6,0): return colsum_acc(R_CS[1], A_CS, V_T, False, gu)
            if k==(8,0): return colsum_acc(R_CS[0], A_CS, V_T, False, gu)
            if k==(8,1): return colsum_fold(A_CS, V_T, gu)
            if F and k==(4,1): return [("vm","non", nonce_issue(R_NON))]
            if F and k==(12,0): return fa_stats(V_FA, V_T)+fa_spare(V_FB, V_T)
            if F and k==(14,0): return [("cond","pst", [f"s_cmp_eq_u32 s{S_WAVE}, 2", f"s_cbranch_scc0 {tag}_NPS"]+poll_issue(V_FA, R_FL)+[f"{tag}_NPS:"])]
            if F and k==(18,0): return [("vm","psp", poll_issue(V_FB, R_FS))]
            return []
        def post_bar(a, S):
            if S==4:
                self.only(0, f"{tag}_NCS"); colsum_store(a, 184, V_T); a.label(f"{tag}_NCS"); vm.add("csst", False)
            if S==3 and F: nonce_take(a, R_NON, f"{tag}_NON")
            if S==5 and F:
                self.only(1, f"{tag}_NP1"); publish(a, 1, V_T); a.label(f"{tag}_NP1"); vm.add("pub", False)
            if S==7:
                self.only(2, f"{tag}_NG")
                if F:
                    a(f"s_waitcnt vmcnt({vm.n_after({'pst'})})"); poll_wait(a, V_FA, R_FL, V_T, 1, f"{tag}_PS", True)
                colsum_gather_issue(a, R_G, V_T); a.label(f"{tag}_NG")
                for _ in range(4): vm.add("gat", False)
            if S==8:
                epi_load_rs(a, R_RS)
                for _ in range(4): vm.add("rs")
                self.only(2, f"{tag}_NG2"); a("s_waitcnt vmcnt(4)"); colsum_gather_sum(a, R_G, V_T); a.label(f"{tag}_NG2")
        lp.emit(a, extra, None, post_bar)
        self.stamp(3)
        if self.timing: a("s_memtime s[100:101]"); a("s_waitcnt lgkmcnt(0)"); a(f"s_sub_u32 s100, s100, s98"); a("v_writelane_b32 v26, s100, 14")
        if not gu: a(phi_frags(a))
        a("s_waitcnt lgkmcnt(0)"); a("s_barrier")
        epi_read_cs(a, gu)
        a("s_waitcnt vmcnt(0) lgkmcnt(0)")
        if gu:
            epi_gu(a, R_RS)
        else:
            a(f"s_cmp_eq_u32 s{S_TYPE}, {T_KV}"); a("s_cbranch_scc1 EKV")
            epi_q(a, R_RS); a("s_branch P1_FIN")
            a.label("EKV"); epi_kv(a, R_RS)
    def phase2(self):
        a=self.a; o=self.o; vm=VM()
        AB=[112,128,144]; BR=[160,180,200,220]; RX=244; RPL=250
        def put(items, tag):
            for x in items: a(x); vm.add(tag)
        vm.add("est")
        g2_addr_b(a); a(fa_qkv(G_F, V_T))
        nbe=o.get("nbe",0)
        if nbe:
            a("s_waitcnt vmcnt(63)")
        put([poll_issue(G_F, RPL)], "pq")
        a("s_waitcnt vmcnt(0)"); a("s_barrier")
        self.only(0, "P2_NP2"); a(f"s_cmp_eq_u32 s{S_TYPE}, {T_SP}"); a("s_cbranch_scc1 P2_NP2"); publish(a, 2, V_T); a.label("P2_NP2")
        self.stamp(5)
        poll_wait(a, G_F, RPL, V_T, 2, "P2_PQ", True)
        self.stamp(6)
        o_issue(a, 32, 48)
        for _ in range(7): vm.add("o")
        poll_wait(a, V_FB, R_FS, V_T, 2, "P2_PS", True)
        for s in range(4): put(g2_bload(s, BR[s]), f"B{s}")
        a(fa_gemm2(G_F, V_T)); g2_addr_a(a); srd(a, S_OUT, P(8), 2048*1280)
        a(f"s_waitcnt vmcnt({vm.n_after({'o'})-4+4})")
        o_kvz(a, 32, 15360)
        o_softmax(a, 48, 60, 112)
        a("s_waitcnt lgkmcnt(0)"); a("s_barrier")
        o_finish(a, 15360, 124, 112, 32)
        vm.add("ost"); vm.add("ost")
        put([poll_issue(G_F, RPL)], "pg")
        for s in range(3): put(g2_bdma(4+s, s), f"B{4+s}")
        a(f"s_waitcnt vmcnt({vm.n_after({'pg'})})"); a("s_barrier")
        self.only(0, "P2_NP3"); publish(a, 3, V_T); a.label("P2_NP3"); vm.add("pub", False)
        self.stamp(7)
        put(g2_bdma(7, 3), "B7")
        poll_wait(a, G_F, RPL, V_T, 2, "P2_PG0", True)
        a(f"s_cmp_ge_u32 s{S_WAVE}, 6"); a("s_cbranch_scc0 P2_GO")
        poll_wait(a, G_F, RPL, V_T, 3, "P2_PG1", True)
        a.label("P2_GO")
        self.stamp(8)
        for s in range(3): put(g2_aload(s, AB[s]), f"A{s}")
        g2_x_issue(a, RX)
        for _ in range(3): vm.add("x")
        for s in range(10):
            if s==9:
                a(f"s_cmp_ge_u32 s{S_WAVE}, 6"); a("s_cbranch_scc0 P2_RED")
            need={f"A{s}", f"B{s}"}
            a(f"s_waitcnt vmcnt({vm.n_after(need)})" + (" lgkmcnt(0)" if 4<=s<8 else ""))
            m=g2_mfma(BR[s%4], AB[s%3], s==0)
            post=[]
            a(m)
            if s+3<10:
                sure = s+3<9
                if not sure: a(f"s_cmp_ge_u32 s{S_WAVE}, 6"); a(f"s_cbranch_scc0 P2_NA{s}")
                for x in g2_aload(s+3, AB[s%3]): a(x); vm.add(f"A{s+3}", sure)
                if not sure: a.label(f"P2_NA{s}")
            if s<4:
                a(f"s_waitcnt vmcnt({vm.n_after({f'B{s+4}'})})")
                a(g2_lread(s, BR[s]))
            if s in (4,5):
                sure = s==4
                if not sure: a(f"s_cmp_ge_u32 s{S_WAVE}, 6"); a(f"s_cbranch_scc0 P2_NB{s}")
                for x in g2_bload(s+4, BR[s%4]): a(x); vm.add(f"B{s+4}", sure)
                if not sure: a.label(f"P2_NB{s}")
        a.label("P2_RED")
        a("s_nop 7")
        a("s_waitcnt vmcnt(0)")
        self.stamp(9)
        a("s_barrier")
        g2_reduce_final(a, RX)
    def build(self):
        a=self.a; a.raw(kernel_header(self.name))
        a("s_cmp_ge_u32 s2, 256"); a("s_cbranch_scc1 K_END")
        self.stamp(0)
        load_ptrs(a); decode_ids(a); x_dma_addr(a)
        a(f"s_mov_b32 s{S_WOFF}, 0")
        a(f"s_cmp_eq_u32 s{S_TYPE}, {T_SP}"); a("s_cbranch_scc1 SPARE")
        a(f"s_cmp_eq_u32 s{S_TYPE}, {T_GU}"); a("s_cbranch_scc0 P1_QKV")
        self.phase1(1); a("s_branch P1_FIN")
        a.label("P1_QKV"); self.phase1(0); a("s_branch P1_FIN")
        a.label("SPARE")
        a("s_waitcnt lgkmcnt(0)"); srds_common(a); srd(a, S_DBG, P(9), 256)
        a(xpf_item(V_T, R_D, 0, 4)); stats_issue(a, R_ST); a(xpf_item(V_T, R_D+1, 4, 6))
        a("s_waitcnt vmcnt(1)"); stats_compute(a, R_ST, XB[0])
        if self.fused:
            a(nonce_issue(R_NON)); a(fa_spare(V_FB, V_T))
            a("s_waitcnt vmcnt(0)"); nonce_take(a, R_NON, "SP_NON"); a("s_barrier")
            self.only(1, "SP_NP1"); publish(a, 1, V_T); a.label("SP_NP1")
        for i in (1,2): self.stamp(i)
        relayout(a)
        self.stamp(3)
        if self.fused:
            a("s_waitcnt vmcnt(0)"); a("s_barrier")
            self.only(1, "SP_NP2"); publish(a, 2, V_T); a.label("SP_NP2")
            a(poll_issue(V_FB, R_FS))
        a.label("P1_FIN")
        self.stamp(4)
        if self.fused: self.phase2()
        if self.timing:
            last = 10 if self.fused else 5
            a("s_waitcnt vmcnt(0)"); self.stamp(last); a("s_waitcnt lgkmcnt(0)")
            a(f"v_writelane_b32 v26, s{S_TYPE}, 15")
            a(f"s_lshl_b32 s{S_T0}, s2, 3"); a(f"s_add_u32 s{S_T0}, s{S_T0}, s{S_WAVE}"); a(f"s_lshl_b32 s{S_T0}, s{S_T0}, 6"); a(f"s_add_u32 s{S_T0}, s{S_T0}, {WS_DBG}")
            a("v_lshlrev_b32 v3, 2, v0"); a("s_mov_b64 exec, 0xffff")
            a(f"buffer_store_dword v26, v3, s[{S_WS}:{S_WS+3}], s{S_T0} offen")
            if self.o.get("dbgout"):
                a("v_readlane_b32 s84, v26, 0"); a("s_not_b32 s84, s84"); a("v_add_u32 v3, 12, v3"); a("s_mov_b64 exec, 0x7ff")
                a(f"buffer_atomic_umax v26, v3, s[{S_DBG}:{S_DBG+3}], 0 offen sc1")
                a("v_mov_b32 v4, s84"); a("v_mov_b32 v3, 8"); a("s_mov_b64 exec, 1")
                a(f"buffer_atomic_umax v4, v3, s[{S_DBG}:{S_DBG+3}], 0 offen sc1")
        a.label("K_END"); a("s_endpgm")
        return hazard.fix(a.text(), True)
def write(path, ks, launches=None):
    out=HDR
    for n in (launches or [k[0] for k in ks]):
        l=[k for k in ks if k[0]==n][0][3]
        out+=f"; @launch kernel={n} grid=(256,1,1) block=(512,1,1) lds={l}\n"
    out+='.amdgcn_target "amdgcn-amd-amdhsa--gfx950"\n.text\n'
    for n,t,_,_ in ks: out+=t+"\n"
    out+='.section .rodata,"a"\n'
    for n,_,v,_ in ks: out+=kernel_desc(n, v)
    open(path,"w").write(out)

def fusedfile(path, opts=None, timing=False):
    g=Gen(KN, timing=timing, fused=True, opts=opts)
    t=g.build()
    out=HDR+"; @launch grid=(256,1,1) block=(512,1,1) lds=163840\n"+'.amdgcn_target "amdgcn-amd-amdhsa--gfx950"\n.text\n'+t+"\n"+'.section .rodata,"a"\n'+kernel_desc(KN,256)
    open(path,"w").write(out)
if __name__=="__main__":
    opts=eval(sys.argv[1]) if len(sys.argv)>1 else {}
    fusedfile("f_t.s", opts, True)
    fusedfile("f.s", opts, False)
    fusedfile("f_dbg.s", dict(opts, dbgout=1), True)
```

```python
import sys
from asmlib import *
from p1 import *
from p1e import *
from p2 import *
from p3 import *
from p4 import *
import hazard
KN="recurrent_scan__linear_kernel_hedgehog__swiglu_ffn__prompt_kernel"
HDR = open("recurrent_scan__linear_kernel_hedgehog__swiglu_ffn__prompt.s.ref").read().split("; Override launch")[0]
S_ST=84
A_CS=200; R_ST=244; R_RS=244; R_D=252; R_FL=254; R_NON=242; V_FA=31; V_FB=30; R_FS=28; V_WP=25
SBUF=[128]; VST=26; VST2=27; S_ROT2=S_PHI; L_CSX=163072
def split(L, n):
    k=len(L); return [L[(k*i)//n:(k*(i+1))//n] for i in range(n)]
class Gen:
    def __init__(self, name=KN, timing=False, opts=None):
        self.a=Asm(); self.name=name; self.timing=timing; self.o=opts or {}
    def stamp(self, i, a=None):
        a=a or self.a
        if self.timing:
            a(f"s_memrealtime s[{S_ST}:{S_ST+1}]"); a("s_waitcnt lgkmcnt(0)"); a(f"v_writelane_b32 v{VST if i<16 else VST2}, s{S_ST}, {i if i<16 else i-10}")
    def gst(self, p):
        if self.timing:
            self.a(f"s_memrealtime s[{S_ST}:{S_ST+1}]"); self.a("s_waitcnt lgkmcnt(0)"); self.a(f"v_writelane_b32 v{VST2}, s{S_ST}, {p}")
    def only(self, w, lab):
        self.a(f"s_cmp_eq_u32 s{S_WAVE}, {w}"); self.a(f"s_cbranch_scc0 {lab}")
    def codepf(self):
        a=self.a
        if not self.o.get("codepf",1): return
        self.only(7, "CPF_SKIP")
        a(f"s_getpc_b64 s[{S_SAVE}:{S_SAVE+1}]")
        a.label("CPF_BASE")
        a(f"s_lshr_b32 s{S_T0}, s2, 3"); a(f"s_lshl_b32 s{S_T0}, s{S_T0}, 4"); a(f"v_add_u32 v{V_T}, s{S_T0}, v0"); a(f"v_lshlrev_b32 v{V_T}, 7, v{V_T}")
        a(f"v_min_u32 v{V_T}, K_LAST-CPF_BASE, v{V_T}"); a("s_mov_b64 exec, 0xffff")
        a(f"global_load_dword v{R_D+1}, v{V_T}, s[{S_SAVE}:{S_SAVE+1}]")
        a("s_mov_b64 exec, -1")
        a.label("CPF_SKIP")
    def wtpf_items(self, tag):
        t=V_T
        pre=[f"s_lshr_b32 s{S_T0}, s2, 3", f"s_mul_i32 s{S_T0}, s{S_T0}, 740", f"s_mul_i32 s{S_T1}, s{S_WAVE}, 93", f"s_add_u32 s{S_T0}, s{S_T0}, s{S_T1}",
             f"v_add_u32 v{V_WP}, s{S_T0}, v0", f"v_lshlrev_b32 v{V_WP}, 7, v{V_WP}", f"v_add_u32 v{V_WP}, {WS_WT}, v{V_WP}"]
        test=[f"v_subrev_u32 v{t}, s{S_TAG}, v{R_FS}", f"v_subrev_u32 v{t}, 2, v{t}", f"v_xor_b32 v{t+1}, s{S_TAG+1}, v{R_FS+1}", f"v_lshl_or_b32 v{t}, v{t+1}, 1, v{t}", f"v_or_b32 v{t}, v{t}, v{t+1}",
              [f"v_cmp_lt_u32 vcc, 1, v{t}", "s_nop 1", f"s_cmp_eq_u64 vcc, 0", f"s_cselect_b32 s{S_ROW}, 1, 0"]]
        def ld(i, lanes):
            it=[f"s_cmp_eq_u32 s{S_ROW}, 1", f"s_cbranch_scc0 {tag}_WP{i}"]
            if lanes<64: it+=[f"s_mov_b64 exec, {(1<<lanes)-1}"]
            if i: it+=[f"v_add_u32 v{V_WP}, 8192, v{V_WP}"]
            it+=[f"buffer_load_dword v{R_D}, v{V_WP}, s[{S_WS}:{S_WS+3}], 0 offen sc1", "s_mov_b64 exec, -1", f"{tag}_WP{i}:"]
            return ("cond", "wpf", it)
        return pre, test, ld(0,64), ld(1,29)
    def phase1(self, gu):
        a=self.a; o=self.o; tag="GU" if gu else "QKV"; vm0=VM(); lp=Loop(gu, vm0, o)
        (w_dma_addr_gu if gu else w_dma_addr_qkv)(a)
        if self.timing: a("s_memrealtime s[90:91]")
        a("s_waitcnt lgkmcnt(0)")
        if self.timing: a("s_memrealtime s[92:93]")
        srds_common(a); (srds_gu if gu else srds_qkv)(a); a(f"s_mov_b32 s{S_XHI}, {128*1280}")
        RC=[184,192,216,224,232]
        a(f"s_cmp_lg_u32 s{S_FG}, 0"); a(f"s_cbranch_scc1 {tag}_ROLEP")
        for loader in (1,0):
            vm=VM(); vm.ops=list(vm0.ops); lp.vm=vm; rt_=f"{tag}{'L' if loader else 'P'}"
            sch={}
            def add(c,h,items): sch.setdefault((c,h),[]).extend(items)
            def over(phases, L):
                for ph,part in zip(phases, split(L,len(phases))): add(ph[0],ph[1],part)
            if not loader: a.label(f"{tag}_ROLEP")
            npre=0; xl=1
            for ch in o.get("ordL","sWXr") if loader else o.get("ordP","sacWXrc"):
                if ch=="a": (cs_addr_gu if gu else cs_addr_qkv)(a)
                if ch=="c": lp.put(a, [("vm",f"c{npre}", colsum_issue(RC[npre], npre), 2)]); npre+=1
                if ch=="x": lp.put(a, [("vm","xpf", xpf2_item(V_T, R_D, xl, 4))]); xl+=4
                if ch=="y": lp.put(a, [("vm","xpf", xpf2_item(V_T, R_D, xl, 2))]); xl+=2
                if ch=="X": lp.put(a, lp.dma_x(0))
                if ch=="W": lp.put(a, lp.dma_w(0))
                if ch=="A": lp.put(a, lp.dma_x_all(0)+lp.dma_w_all(0))
                if ch=="s": stats_issue(a, R_ST, vm)
                if ch=="r":
                    if self.timing: a("s_memrealtime s[94:95]")
                    srd(a, S_DBG, P(9), 256)
                    if not gu:
                        if loader: nonce_write(a); vm.add("nonce", False)
                        phi_dma(a, vm, rt_)
                    lp.read_addr(a)
                    if not gu and not loader: lds_zero_init(a)
            if not any(t in ("W0","X0") for t,_ in vm.ops): vm.add("W0", False); vm.ops.insert(0, vm.ops.pop())
            a(f"s_waitcnt vmcnt({vm.n_after({'W0','X0'})}) lgkmcnt(0)"); a("s_barrier")
            self.stamp(2)
            if self.timing: a("s_memtime s[98:99]")
            tmp=Asm(); st=stats_compute(tmp, R_ST, 200 if loader else 200, "ret", "sc1", S_L2E)
            stl=[x.strip() for x in tmp.lines]+[("vm","statst",st)]
            if loader:
                if o.get("prioL",1): a("s_setprio 1")
                lp.put(a, lp.dma_w_all(1)+lp.dma_x_all(1))
                x2=lp.dma_x_all(2); add(0,1,x2[:4]); add(1,0,x2[4:])
                over([(1,1),(2,0),(2,1),(3,0),(3,1),(4,0)], stl)
            else:
                for r in range(npre,5): add(*o.get("cat",[(0,0),(0,0),(1,1),(2,0),(2,1)])[r], [("vm",f"c{r}", colsum_issue(RC[r], r), 2)])
                if o.get("xpf",0) and xl<10: add(0,1, [("vm","xpf", xpf2_item(V_T, R_D, xl, min(8,10-xl)))])
                over([(1,1),(2,0),(2,1),(3,0)], [("wait","stats")]+stl)
                ph=[(c,h) for c in range(3,8) for h in range(2)][1:-1]
                L=[]
                for r in range(5): L+=[("wait",f"c{r}")]+colsum_acc(RC[r], A_CS, V_T, r==0, gu)
                L+=colsum_fold(A_CS, V_T, gu)
                over(ph, L)
            add(3,0, [("vm","non", nonce_issue(R_NON))])
            over([(8,0),(8,1),(9,0)], fa_spare(V_FB, V_T)+([] if loader else fa_stats(V_FA, V_T)))
            if not loader and o.get("wpf",0):
                w0,w1=o.get("wpf_at",(9,13))
                add(9,0, wpf_addr())
                add(w0,0, [("vm","pw1", poll_issue(V_FB, R_FS))]); add(w0+1,0, [("wait","pw1")]+wpf_ok(R_FS, V_T, 1)+wpf_ok(R_FS, V_T, 2))
                add(w0+1,1, [("cond","wpf", wpf_load(0,0,R_D,f"{rt_}_WA0"))]); add(w0+3,1, [("cond","wpf", wpf_load(0,1,R_D,f"{rt_}_WA1"))])
                add(w1+1,0, [("wait","psp")]+wpf_ok(R_FS, V_T, 2))
                for b in range(3): add(w1+1+2*b,1, [("cond","wpf", wpf_load(1,b,R_D,f"{rt_}_WB{b}"))])
                if not gu: add(13,0, [("vm","psp", poll_issue(V_FB, R_FS))])
            over([(11,1),(12,0),(12,1)], addr_b()+[f"s_mov_b32 s{S_PRE}, 0"])
            if gu and o.get("inloopb",1):
                add(*o.get("psp1",(13,0)), [("vm","psp", poll_issue(V_FB, R_FS))])
                chk=[("wait","psp")]+flag_ok_items(R_FS, V_T, 1, 1)
                gi=lambda s_,k: ("cond", f"B{s_}", guard(bstep(s_)[k[0]:k[1]], 1, f"{rt_}_B{s_}_{k[0]}"))
                if loader:
                    add(16,0, chk)
                    add(16,1, [gi(0,(0,3)), gi(0,(3,5))]); add(17,0, [gi(1,(0,3)), gi(1,(3,5))])
                    add(18,0, [gi(2,(0,3)), gi(2,(3,5))]); add(18,1, [gi(3,(0,3)), gi(3,(3,5))])
                else:
                    add(16,0, chk)
                    w7=("cond","B3",[f"s_cmp_eq_u32 s{S_WAVE}, 7", f"s_cbranch_scc1 {rt_}_W7"]+guard(bstep(3)[4:5], 1, f"{rt_}_B3_4")+[f"{rt_}_W7:"])
                    add(18,0, [gi(2,(0,3)), gi(2,(3,5))]); add(18,1, [gi(3,(0,3)), gi(3,(3,4)), w7])
                    add(19,0, [gi(0,(0,3)), gi(0,(3,5))]); add(19,1, [gi(1,(0,3)), gi(1,(3,5))])
            add(*((17,1) if gu else (15,1)), [("vm","psp2", poll_issue(V_FB, R_FS))])
            if not gu:
                tmp=Asm(); rds=phi_frags(tmp, V_T+6)
                add(15,1, [x.strip() for x in tmp.lines]); over([(15,1),(16,0),(16,1),(17,0)], rds)
                add(17,0, [("wait","psp2")]+flag_ok_items(R_FS, V_T, 2, 3))
                def qg(s_,k0,k1,w7=False):
                    it=[f"s_cmp_eq_u32 s{S_TYPE}, {T_Q}", f"s_cbranch_scc0 {rt_}_Q{s_}{k0}"]
                    if w7: it+=[f"s_cmp_eq_u32 s{S_WAVE}, 7", f"s_cbranch_scc1 {rt_}_Q{s_}{k0}"]
                    return ("cond", f"B{s_}", it+guard(bstep(s_)[k0:k1], 3, f"{rt_}_QB{s_}{k0}")+[f"{rt_}_Q{s_}{k0}:"])
                add(18,0, [qg(2,0,3), qg(2,3,5)]); add(18,1, [qg(3,0,3), qg(3,3,4), qg(3,4,5,True)])
            if not loader: add(12,0, [("cond","pst", [f"s_cmp_eq_u32 s{S_WAVE}, 6", f"s_cbranch_scc0 {rt_}_NPS"]+poll_issue(V_FA, R_FL)+[f"{rt_}_NPS:"])])
            def extra(c, half):
                out=[]
                for x in sch.get((c,half),[]):
                    out.append(("lazy", x[1]) if (isinstance(x,tuple) and x[0]=="wait") else x)
                return out
            def post_bar(a, S):
                if self.timing and o.get("lstamp"): a(f"s_memtime s[{86}:{87}]"); a("s_waitcnt lgkmcnt(0)"); a("s_sub_u32 s86, s86, s98"); a(f"v_writelane_b32 v{VST2}, s86, {S}")
                if S==2:
                    a(f"s_waitcnt vmcnt({vm.n_after({'non'})})"); nonce_take(a, R_NON, f"{rt_}_NON")
                if loader:
                    if S==7:
                        epi_load_rs(a, R_RS)
                        for _ in range(4): vm.add("rs")
                    return
                if S==3:
                    self.only(4, f"{rt_}_NCS"); colsum_store(a, 184, V_T); a.label(f"{rt_}_NCS"); vm.add("csst", False)
                if S==4:
                    self.only(5, f"{rt_}_NP1"); publish(a, 1, V_T); a.label(f"{rt_}_NP1"); vm.add("pub", False)
                if S==6:
                    self.only(6, f"{rt_}_NG")
                    a(f"s_waitcnt vmcnt({vm.n_after({'pst'})})"); poll_wait(a, V_FA, R_FL, V_T, 1, f"{rt_}_PS", True)
                    colsum_gather_issue(a, 184, V_T); a.label(f"{rt_}_NG")
                    for _ in range(8): vm.add("gat", False)
                if S==7:
                    epi_load_rs(a, R_RS)
                    for _ in range(4): vm.add("rs")
                    self.only(6, f"{rt_}_NG2"); a("s_waitcnt vmcnt(4)"); a(colsum_gather_sum(184, V_T, L_CSX)); a.label(f"{rt_}_NG2")
            pre=lambda S: (["statst"] if S==3 else [])+(["csst"] if (S==4 and not loader) else [])
            lp.emit2(a, loader, extra, post_bar, pre)
            if gu:
                a(f"s_cmp_eq_u32 s{S_PRE}, 1"); a(f"s_cbranch_scc1 {rt_}_WB"); a("s_waitcnt vmcnt(0)"); a.label(f"{rt_}_WB"); a(f"s_waitcnt vmcnt({10 if loader else 19})")
            if loader:
                a("s_setprio 0"); a(f"s_branch {tag}_LOOPEND")
        a.label(f"{tag}_LOOPEND")
        a("s_nop 7")
        self.stamp(3)
        if self.timing: a("s_memtime s[100:101]"); a("s_waitcnt lgkmcnt(0)"); a(f"s_sub_u32 s100, s100, s98"); a(f"v_writelane_b32 v{VST}, s100, 14")
        epi_read_cs(a, gu, L_CSX)
        if gu:
            a(f"s_cmp_eq_u32 s{S_PRE}, 1"); a("s_cbranch_scc0 GU_NO3"); a(flag_ok_items(R_FS, V_T+4, 2, 3)); a.label("GU_NO3")
            a("s_waitcnt lgkmcnt(0)")
            b4=bstep(4)
            def hook(i):
                if i<5: a(guard([b4[i]], 3, f"GU_B4_{i}"))
            epi_gu(a, R_RS, hook=hook)
        else:
            gl=lambda pre: [guard([x], 3, f"{pre}_{s_}_{k}") for s_ in (0,1,4,2,3) for k,x in enumerate(bstep(s_))]
            a(f"s_cmp_eq_u32 s{S_TYPE}, {T_KV}"); a("s_cbranch_scc1 EKV")
            a("s_waitcnt lgkmcnt(0)")
            epi_q(a, R_RS)
            a(f"s_cmp_eq_u32 s{S_PRE}, 3"); a("s_cbranch_scc0 Q_NOB")
            for s_ in (0,1,4): a(bstep(s_))
            a("s_waitcnt vmcnt(15)"); a("s_branch P1_FIN2")
            a.label("Q_NOB"); a("s_branch P1_FIN")
            a.label("EKV"); epi_kv5(a, R_RS, st=(lambda i: self.stamp(i) if i>15 else None), bk=gl("KVK"), bv=gl("KVV"))
    def phase2(self):
        a=self.a; o=self.o; vm=VM()
        RX=244; FQ=244; RPL=20; RPL2=22; RPL3=24; WA=14; RA=20; G_F3=31
        BH={6:BR4,0:BR[0],1:BR[1],4:BR[2],5:BR[3],2:BR[0],3:BR[1]}; BW=[204,224]; G=112
        def put(items, tag):
            for x in items: a(x); vm.add(tag)
        for s in range(5): vm.add(f"B{s}", False)
        pub_prep(a, 2, V_T); pub_fire(a, V_T, 0, "P2_NP2"); vm.add("pub", False)
        self.stamp(5)
        a(fa_q(G_F)); put([poll_issue(G_F, RPL)], "pq")
        self.only(7, "P2_W7"); a(f"s_or_b32 s{S_T0}, s{S_TYPE}, 2"); a(f"s_cmp_eq_u32 s{S_T0}, 2"); a("s_cbranch_scc0 P2_W7"); a(f"s_cmp_eq_u32 s{S_PRE}, 0"); a("s_cbranch_scc1 P2_W7")
        a(f"s_add_u32 s{S_T3}, s{S_BO}, {3*5120}"); a(bstep(3)[4]); a.label("P2_W7")
        a(f"s_cmp_eq_u32 s{S_PRE}, 3"); a(f"s_cbranch_scc1 P2_HAVE")
        poll_wait(a, V_FB, R_FS, V_T, 2, f"P2_PSP", True)
        a(guard(sum((bstep(s) for s in (0,1,2,3)), []), 0, f"P2_E"))
        a(bstep(4))
        a.label(f"P2_HAVE")
        a(f"s_cmp_ge_u32 s{S_WAVE}, 6"); a(f"s_cbranch_scc1 P2_N6"); a(bstep(6)); a.label(f"P2_N6"); vm.add("B6", False)
        put(bstep(5), "B5")
        a(fa_kv(G_F2, V_T)); a(fa_h(G_F3, V_T)); srd(a, S_OUT, P(8), 2048*1280); addr_a(a, 0); red_addr(a, WA, None)
        a(f"s_waitcnt vmcnt({vm.n_after({'pq'})})")
        poll_wait(a, G_F, RPL, V_T, 2, "P2_PQ", True)
        o1_pq(a, 48)
        for _ in range(3): vm.add("q")
        put([poll_issue(G_F3, RPL3)], "pg")
        a(f"s_waitcnt vmcnt({vm.n_after({'q'})})"); o_softmax(a, 48, 60, FQ)
        a(f"s_waitcnt vmcnt({vm.n_after({'pg'})})")
        poll_wait(a, G_F3, RPL3, V_T, 2, f"P2_PH", True)
        self.stamp(8)
        def gemm_d(n):
            ORD=[6,0,1,4,5,2,3][7-n:]
            for p in range(2 if n==7 else 3): put(aload(ORD[p], AB[p]), f"A{ORD[p]}")
            for p in range(n):
                s=ORD[p]
                a(f"s_waitcnt vmcnt({vm.n_after({f'A{s}', f'B{s}'})})" + (" lgkmcnt(0)" if s in (2,3) else ""))
                if o.get("gstamp"): self.gst(p)
                a(g2_mfma(BH[s], AB[p%3], p==0))
                if p==0 and n==7: put(aload(ORD[2], AB[2]), f"A{ORD[2]}")
                if p+3<n: put(aload(ORD[p+3], AB[p%3]), f"A{ORD[p+3]}")
                if s in (0,1):
                    a(f"s_waitcnt vmcnt({vm.n_after({f'B{s+2}'})})"); a(lread(s, BR[s]))
                if p==n-3: put([poll_issue(G_F2, RPL2)], "pk")
        mid=list(vm.ops)
        a(f"s_cmp_ge_u32 s{S_WAVE}, 6"); a(f"s_cbranch_scc1 P2_G6")
        gemm_d(7); a(f"s_branch P2_GD")
        a.label(f"P2_G6"); vm.ops=list(mid); gemm_d(6)
        a.label(f"P2_GD")
        O1=164; RP=168; D=184
        o1_addr0(a, O1)
        a("s_waitcnt vmcnt(0)"); self.stamp(9)
        poll_wait(a, G_F2, RPL2, V_T+2, 2, f"P2_PK", True)
        self.stamp(6)
        o1_part(a, RP, O1)
        red_write(a, WA, (0,2,3))
        self.only(7, "P2_RW1"); a("s_branch P2_RW2"); a.label("P2_RW1"); red_write(a, WA, (1,)); a.label("P2_RW2")
        o1_addr(a, O1)
        a(f"s_waitcnt vmcnt(0)")
        o1_kvz(a, RP, O1)
        a("s_waitcnt lgkmcnt(0)"); a("s_barrier")
        o1_finish(a, RP, FQ, D, O1)
        pub_prep(a, 3, V_T)
        a(f"s_cmp_eq_u32 s{S_FG}, 0"); a(f"s_cbranch_scc1 P2_WB")
        addr_a(a, 1); a(f"v_add_u32 v{G_L}, s{S_LB}, v{G_A}"); a(fa_o(G_F3))
        a.label("P2_WB")
        red_addr(a, None, RA, 128)
        a(f"s_waitcnt vmcnt(0)"); pub_fire(a, V_T, 7, f"P2_NP3", lambda: (red_write(a, WA, (1,)), a("s_waitcnt lgkmcnt(0)")))
        self.stamp(7)
        a(f"s_cmp_eq_u32 s{S_FG}, 0"); a(f"s_cbranch_scc1 P2_WB2")
        for s,R in enumerate(BW): a(bload(s, R))
        a.label("P2_WB2")
        x_issue(a, RX)
        d_reduce(a, RA, 124, G)
        a("s_barrier")
        self.stamp(1)
        a(f"s_cmp_eq_u32 s{S_FG}, 0"); a("s_cbranch_scc1 P2_FIN")
        for s in (2,3,4): a(bdma(s, s%4 if s<4 else 0))
        poll_wait(a, G_F3, 250, V_T, 3, "P2_PO", False)
        self.stamp(11)
        vm.ops=[]
        AS=[124,140,156,172,188]
        for p in range(5): put(aload(p, AS[p]), f"A{p}")
        for p in range(5):
            a(f"s_waitcnt vmcnt({vm.n_after({f'A{p}'})})" + (" lgkmcnt(0)" if p>=2 else ""))
            a(g2_mfma(BW[p%2], AS[p], p==0))
            if p<3: a(lread((p+2)%4 if p<2 else 0, BW[p%2]))
        a("s_nop 7"); self.stamp(12)
        red_write(a, WA)
        a.label("P2_FIN")
        a("s_waitcnt vmcnt(0) lgkmcnt(0)"); a("s_barrier")
        s_final(a, RX, RA, 32, G)
    def build(self):
        a=self.a; a.raw(kernel_header(self.name)); SLEEP[0]=self.o.get('sleep',2)
        a("s_cmp_ge_u32 s2, 256"); a("s_cbranch_scc1 K_END")
        if self.timing: a("s_memrealtime s[88:89]")
        load_ptrs(a)
        decode_ids(a); self.codepf(); x_dma_addr(a)
        a(f"s_mov_b32 s{S_WOFF}, 0")
        a(f"s_cmp_eq_u32 s{S_TYPE}, {T_SP}"); a("s_cbranch_scc1 SPARE")
        a(f"s_cmp_eq_u32 s{S_TYPE}, {T_GU}"); a("s_cbranch_scc0 P1_QKV")
        self.phase1(1); a("s_branch P1_FIN")
        a.label("P1_QKV"); self.phase1(0); a("s_branch P1_FIN")
        a.label("SPARE")
        a("s_waitcnt lgkmcnt(0)"); srds_common(a); srd(a, S_DBG, P(9), 256)
        def mid():
            a(nonce_issue(R_NON)); a(fa_spare(V_FB, V_T))
            a("s_waitcnt vmcnt(21)"); self.stamp(1); stats_compute(a, R_ST, XB[0]); self.stamp(2)
            return 2
        def early():
            nonce_take(a, R_NON, "SP_NON")
            self.only(1, "SP_NP1"); publish(a, 1, V_T); a.label("SP_NP1")
        stats_issue(a, R_ST); a(f"s_mov_b32 s{S_ROT2}, s{S_ROW}")
        relayout3(a, mid, early)
        self.stamp(3)
        a("s_waitcnt vmcnt(0)"); a("s_barrier")
        self.only(1, "SP_NP2"); publish(a, 2, V_T); a.label("SP_NP2")
        a(addr_b()); poll_wait(a, V_FB, R_FS, V_T, 2, "SP_PSP", False)
        for s in (0,1,4,2,3): a(bstep(s))
        a(f"s_mov_b32 s{S_PRE}, 3")
        a.label("P1_FIN")
        a("s_waitcnt vmcnt(0)")
        a.label("P1_FIN2")
        self.stamp(4)
        self.phase2()
        if self.timing:
            a("s_waitcnt vmcnt(0)"); self.stamp(10)
            a(f"v_writelane_b32 v{VST}, s{S_TYPE}, 15"); a(f"v_writelane_b32 v{VST}, s88, 0"); a(f"v_writelane_b32 v{VST}, s94, 13")
            a(f"s_lshl_b32 s{S_T0}, s2, 3"); a(f"s_add_u32 s{S_T0}, s{S_T0}, s{S_WAVE}"); a(f"s_lshl_b32 s{S_T0}, s{S_T0}, 6"); a(f"s_add_u32 s{S_T0}, s{S_T0}, {WS_DBG}")
            a("v_lshlrev_b32 v3, 2, v0"); a("s_mov_b64 exec, 0xffff")
            a(f"buffer_store_dword v{VST}, v3, s[{S_WS}:{S_WS+3}], s{S_T0} offen")
            a(f"s_add_u32 s{S_T0}, s{S_T0}, 0x20000")
            a(f"buffer_store_dword v{VST2}, v3, s[{S_WS}:{S_WS+3}], s{S_T0} offen")
        a.label("K_END")
        a.label("K_LAST"); a("s_endpgm")
        return hazard.fix(a.text())
def fusedfile(path, opts=None, timing=False):
    t=Gen(KN, timing=timing, opts=opts).build()
    out=HDR+"; @launch grid=(256,1,1) block=(512,1,1) lds=163840\n"+'.amdgcn_target "amdgcn-amd-amdhsa--gfx950"\n.text\n'+t+"\n"+'.section .rodata,"a"\n'+kernel_desc(KN,256)
    open(path,"w").write(out)
if __name__=="__main__":
    opts=eval(sys.argv[1]) if len(sys.argv)>1 else {}
    fusedfile("m_t.s", dict(opts,lstamp=1), True)
    fusedfile("m.s", opts, False)
```

```python
from asmlib import *

WS_FLAG = 0x0
WS_RS   = 0x8000
WS_CS   = 0x10000
WS_PQ   = 0x100000
WS_KVP  = 0x400000
WS_O    = 0x600000
WS_WT   = 0xA00000
WS_H    = 0x1000000
WS_DBG  = 0x2000000
WS_SIZE = 0x10000000

WSLOT = 24576; XBASE = 49152; XSLOT = 32768
L_WPHI = 147456
L_ZERO = L_WPHI + 6400
L_CSW  = L_ZERO + 800
L_CS2  = L_CSW + 8*768
LDS_P1 = L_CS2 + 768
KVROW = 528
assert LDS_P1 <= 163840

S_X=8; S_W0=12; S_W1=16; S_WS=20; S_XALL=24; S_PHI=28
S_WAVE=32; S_RT=33; S_CT=34; S_TYPE=35; S_CTG=36; S_TG=37; S_FG=38
S_M0X=39; S_M0W=40; S_WOFF=41; S_EXC=42
S_CSOFF=44; S_T0=45; S_T1=46; S_T2=47; S_T3=48
S_WSTR=49
S_ROW=50; S_L2E=51
S_PTR=52
S_SAVE=74
S_WD=76
S_SLOT=80; S_XHI=3; S_TAG=82
P = lambda i: S_PTR + 2*i
T_Q, T_KV, T_GU, T_SP = 0, 1, 2, 3

V_X=1
V_W=5
V_C=8
V_XR=10
V_WR=14
V_T=16
ACC=32; XB=[128,144]; WB=[160,172]; FREE=184
LOG2E = 0x3fb8aa3b

class VM:
    def __init__(self): self.ops=[]
    def add(self, tag, sure=True): self.ops.append((tag, sure))
    def n_after(self, tags):
        last=max(i for i,(t,_) in enumerate(self.ops) if t in tags)
        return min(63, sum(1 for t,s in self.ops[last+1:] if s))

def load_ptrs(a):
    a(f"s_load_dwordx16 s[{S_PTR}:{S_PTR+15}], s[0:1], 0")
    a(f"s_load_dwordx4 s[{S_PTR+16}:{S_PTR+19}], s[0:1], 64")
    a(f"s_load_dwordx2 s[{S_PTR+20}:{S_PTR+21}], s[0:1], 80")

def decode_ids(a):
    a(f"v_lshrrev_b32 v{V_T}, 6, v0"); a(f"v_and_b32 v0, 63, v0")
    a(f"s_and_b32 s{S_T0}, s2, 7"); a(f"s_lshr_b32 s{S_T1}, s2, 3")
    a(f"v_readfirstlane_b32 s{S_WAVE}, v{V_T}")
    a(f"s_and_b32 s{S_RT}, s{S_T0}, 1"); a(f"s_lshl_b32 s{S_RT}, s{S_RT}, 2"); a(f"s_and_b32 s{S_T2}, s{S_T1}, 3"); a(f"s_add_u32 s{S_RT}, s{S_RT}, s{S_T2}")
    a(f"s_lshr_b32 s{S_T0}, s{S_T0}, 1")
    a(f"s_lshr_b32 s{S_SLOT}, s{S_T1}, 2")
    a(f"s_mul_i32 s{S_CT}, s{S_T0}, 5"); a(f"s_cmp_eq_u32 s{S_T0}, 3"); a(f"s_cselect_b32 s{S_T2}, 4, 3")
    a(f"s_add_u32 s{S_CT}, s{S_CT}, s{S_SLOT}"); a(f"s_sub_u32 s{S_CT}, s{S_CT}, s{S_T2}")
    a(f"s_add_u32 s{S_CTG}, s{S_CT}, 12"); a(f"s_mov_b32 s{S_TYPE}, {T_GU}")
    a(f"s_lshl_b32 s{S_T2}, s{S_SLOT}, 2"); a(f"s_add_u32 s{S_T2}, s{S_T2}, s{S_T0}"); a(f"s_cmp_ge_u32 s{S_T2}, 30"); a(f"s_cselect_b32 s{S_TYPE}, {T_SP}, s{S_TYPE}")
    a(f"s_lshl_b32 s{S_T2}, s{S_T0}, 1"); a(f"s_add_u32 s{S_T2}, s{S_T2}, s{S_SLOT}"); a(f"s_sub_u32 s{S_T2}, s{S_T2}, 1")
    a(f"s_add_u32 s{S_T3}, s{S_T2}, 4")
    a(f"s_cmp_lt_u32 s{S_SLOT}, 3"); a(f"s_cselect_b32 s{S_CT}, s{S_T2}, s{S_CT}"); a(f"s_cselect_b32 s{S_CTG}, s{S_T3}, s{S_CTG}"); a(f"s_cselect_b32 s{S_TYPE}, {T_KV}, s{S_TYPE}")
    a(f"s_cmp_eq_u32 s{S_SLOT}, 0"); a(f"s_cselect_b32 s{S_CT}, s{S_T0}, s{S_CT}"); a(f"s_cselect_b32 s{S_CTG}, s{S_T0}, s{S_CTG}"); a(f"s_cselect_b32 s{S_TYPE}, {T_Q}, s{S_TYPE}")
    a(f"s_and_b32 s{S_TG}, s{S_WAVE}, 3"); a(f"s_lshr_b32 s{S_FG}, s{S_WAVE}, 2")

def x_dma_addr(a):
    t=V_T
    a(f"v_lshrrev_b32 v{t}, 3, v0"); a(f"s_lshl_b32 s{S_T0}, s{S_WAVE}, 5"); a(f"v_add_u32 v{t}, s{S_T0}, v{t}"); a(f"v_mul_u32_u24 v{t}, 1280, v{t}")
    a(f"v_lshrrev_b32 v{t+1}, 4, v0"); a(f"v_xor_b32 v{t+1}, v{t+1}, v0"); a(f"v_and_b32 v{t+1}, 7, v{t+1}"); a(f"v_lshlrev_b32 v{t+1}, 4, v{t+1}")
    a(f"v_add_u32 v{V_X}, v{t}, v{t+1}"); a(f"v_xor_b32 v{t+1}, 64, v{t+1}"); a(f"v_add_u32 v{V_X+1}, v{t}, v{t+1}"); a(f"v_add_u32 v{V_X+1}, 10240, v{V_X+1}")
    a(f"v_add_u32 v{V_X+2}, 20480, v{V_X}"); a(f"v_add_u32 v{V_X+3}, 20480, v{V_X+1}")
    a(f"s_lshl_b32 s{S_M0X}, s{S_WAVE}, 12")
def gu_colperm(a, ch, tmp):
    a(f"v_cmp_le_u32 vcc, 6, v{ch}"); a(f"v_cndmask_b32 v{tmp}, 0, 2, vcc"); a(f"v_cmp_le_u32 vcc, 10, v{ch}"); a(f"v_cndmask_b32 v{tmp}, v{tmp}, -4, vcc")
    a(f"v_add_u32 v{ch}, v{ch}, v{tmp}")
def w_dma_addr_gu(a):
    t=V_T
    a(f"s_mul_i32 s{S_T0}, s{S_TG}, {16*3456}")
    for i in range(3):
        a(f"v_add_u32 v{t+3}, {64*i}, v0"); a(f"v_mul_u32_u24 v{t}, 171, v{t+3}"); a(f"v_lshrrev_b32 v{t}, 11, v{t}")
        a(f"v_mul_u32_u24 v{t+1}, 12, v{t}"); a(f"v_sub_u32 v{t+1}, v{t+3}, v{t+1}")
        a(f"v_lshrrev_b32 v{t+2}, 2, v{t}"); a(f"v_and_b32 v{t+2}, 2, v{t+2}"); a(f"v_xor_b32 v{t+1}, v{t+1}, v{t+2}")
        gu_colperm(a, t+1, t+2)
        a(f"v_mul_u32_u24 v{t}, 3456, v{t}"); a(f"v_lshl_add_u32 v{t}, v{t+1}, 4, v{t}"); a(f"v_add_u32 v{V_W+i}, s{S_T0}, v{t}")
    a(f"s_mul_i32 s{S_M0W}, s{S_WAVE}, 3072")
    a(f"s_mov_b32 s{S_WSTR}, {64*3456}")
def cs_addr_gu(a):
    t=V_T
    a(f"v_and_b32 v{t+1}, 15, v0"); gu_colperm(a, t+1, t+2)
    a(f"v_lshrrev_b32 v{t}, 4, v0"); a(f"v_mul_u32_u24 v{t}, 3456, v{t}"); a(f"v_lshl_add_u32 v{t}, v{t+1}, 4, v{t}")
    a(f"s_mul_i32 s{S_T0}, s{S_RT}, {4*3456}"); a(f"v_add_u32 v{V_C}, s{S_T0}, v{t}"); a(f"v_mov_b32 v{V_C+1}, v{V_C}")
    a(f"s_mov_b32 s{S_EXC}, 0x0fff0fff"); a(f"s_mov_b32 s{S_EXC+1}, 0x0fff0fff")
    a(f"s_mul_i32 s{S_CSOFF}, s{S_TG}, {32*3456}")
def kv_coladj(a, ch, dst, tmp):
    a(f"s_cmp_eq_u32 s{S_TYPE}, {T_KV}"); a(f"s_cselect_b32 s{S_T1}, {1280-160}, 0")
    a(f"v_mov_b32 v{tmp}, s{S_T1}"); a(f"v_cmp_le_u32 vcc, 10, v{ch}"); a(f"v_cndmask_b32 v{tmp}, 0, v{tmp}, vcc"); a(f"v_add_u32 v{dst}, v{dst}, v{tmp}")
def w_dma_addr_qkv(a):
    t=V_T
    a(f"s_mul_i32 s{S_T0}, s{S_WAVE}, {8*3840}")
    for i in range(3):
        a(f"v_add_u32 v{t+3}, {64*i}, v0"); a(f"v_mul_u32_u24 v{t}, 205, v{t+3}"); a(f"v_lshrrev_b32 v{t}, 12, v{t}")
        a(f"v_mul_u32_u24 v{t+1}, 20, v{t}"); a(f"v_sub_u32 v{t+1}, v{t+3}, v{t+1}")
        a(f"v_mul_u32_u24 v{t}, 3840, v{t}"); a(f"v_lshl_add_u32 v{t}, v{t+1}, 4, v{t}")
        kv_coladj(a, t+1, t, t+2)
        a(f"v_add_u32 v{V_W+i}, s{S_T0}, v{t}")
    a(f"s_mul_i32 s{S_M0W}, s{S_WAVE}, 2592")
    a(f"s_mov_b32 s{S_WSTR}, {64*3840}")
def cs_addr_qkv(a):
    t=V_T
    a(f"v_and_b32 v{t+1}, 31, v0"); a(f"v_lshrrev_b32 v{t}, 5, v0"); a(f"v_mul_u32_u24 v{t}, 3840, v{t}"); a(f"v_lshl_add_u32 v{t}, v{t+1}, 4, v{t}")
    kv_coladj(a, t+1, t, t+2)
    a(f"s_mul_i32 s{S_T0}, s{S_RT}, {4*3840}"); a(f"v_add_u32 v{V_C}, s{S_T0}, v{t}"); a(f"v_add_u32 v{V_C+1}, 7680, v{V_C}")
    a(f"s_mov_b32 s{S_EXC}, 0xfffff"); a(f"s_mov_b32 s{S_EXC+1}, 0xfffff")
    a(f"s_mul_i32 s{S_CSOFF}, s{S_TG}, {32*3840}")

def srds_common(a):
    a(f"s_mul_i32 s{S_T0}, s{S_RT}, 327680"); a(f"s_add_u32 s{S_X}, s{P(0)}, s{S_T0}"); a(f"s_addc_u32 s{S_X+1}, s{P(0)+1}, 0")
    a(f"s_and_b32 s{S_X+1}, s{S_X+1}, 0xffff"); a(f"s_mov_b32 s{S_X+2}, 327680"); a(f"s_mov_b32 s{S_X+3}, 0x20000")
    srd(a, S_XALL, P(0), 2048*1280)
    srd(a, S_WS, P(10), WS_SIZE)
def srds_gu(a):
    a(f"s_mul_i32 s{S_T0}, s{S_CT}, 192")
    for d, p in ((S_W0, P(5)), (S_W1, P(6))):
        a(f"s_add_u32 s{d}, s{p}, s{S_T0}"); a(f"s_addc_u32 s{d+1}, s{p+1}, 0"); a(f"s_and_b32 s{d+1}, s{d+1}, 0xffff")
        a(f"s_sub_u32 s{d+2}, {640*3456}, s{S_T0}"); a(f"s_mov_b32 s{d+3}, 0x20000")
    a(f"s_cmp_eq_u32 s{S_FG}, 0"); a(f"s_cselect_b32 s{S_WD}, s{S_W0}, s{S_W1}"); a(f"s_cselect_b32 s{S_WD+1}, s{S_W0+1}, s{S_W1+1}")
    a(f"s_mov_b32 s{S_WD+2}, s{S_W0+2}"); a(f"s_mov_b32 s{S_WD+3}, 0x20000")
def srds_qkv(a):
    a(f"s_mul_i32 s{S_T0}, s{S_CT}, 320"); a(f"s_mul_i32 s{S_T1}, s{S_CT}, 160"); a(f"s_add_u32 s{S_T1}, s{S_T1}, 1280")
    a(f"s_cmp_eq_u32 s{S_TYPE}, {T_KV}"); a(f"s_cselect_b32 s{S_T0}, s{S_T1}, s{S_T0}")
    for d in (S_W0, S_W1, S_WD):
        a(f"s_add_u32 s{d}, s{P(1)}, s{S_T0}"); a(f"s_addc_u32 s{d+1}, s{P(1)+1}, 0"); a(f"s_and_b32 s{d+1}, s{d+1}, 0xffff")
        a(f"s_sub_u32 s{d+2}, {640*3840}, s{S_T0}"); a(f"s_mov_b32 s{d+3}, 0x20000")
    a(f"s_mul_i32 s{S_T0}, s{S_CT}, 6400"); a(f"s_mul_i32 s{S_T1}, s{S_CT}, 3200"); a(f"s_cmp_eq_u32 s{S_TYPE}, {T_KV}"); a(f"s_cselect_b32 s{S_T0}, s{S_T1}, s{S_T0}")
    a(f"s_add_u32 s{S_PHI}, s{P(2)}, s{S_T0}"); a(f"s_addc_u32 s{S_PHI+1}, s{P(2)+1}, 0"); a(f"s_and_b32 s{S_PHI+1}, s{S_PHI+1}, 0xffff")
    a(f"s_sub_u32 s{S_PHI+2}, 25600, s{S_T0}"); a(f"s_mov_b32 s{S_PHI+3}, 0x20000")

def stats_issue(a, R, vm=None):
    a(f"s_and_b32 s{S_T0}, s2, 1"); a(f"s_lshl_b32 s{S_T0}, s{S_T0}, 7"); a(f"s_bfe_u32 s{S_T1}, s2, 0x20001"); a(f"s_lshl_b32 s{S_T1}, s{S_T1}, 5")
    a(f"s_add_u32 s{S_T0}, s{S_T0}, s{S_T1}"); a(f"s_lshr_b32 s{S_T1}, s2, 3"); a(f"s_add_u32 s{S_T0}, s{S_T0}, s{S_T1}")
    a(f"s_lshl_b32 s{S_T0}, s{S_T0}, 3"); a(f"s_add_u32 s{S_ROW}, s{S_T0}, s{S_WAVE}")
    a(f"s_mul_i32 s{S_T0}, s{S_ROW}, 1280")
    a(f"v_lshlrev_b32 v{V_T}, 4, v0"); a(f"v_lshlrev_b32 v{V_T+1}, 2, v0")
    a(f"buffer_load_dwordx4 {vr(R,4)}, v{V_T}, s[{S_XALL}:{S_XALL+3}], s{S_T0} offen")
    a(f"buffer_load_dword v{R+4}, v{V_T+1}, s[{S_XALL}:{S_XALL+3}], s{S_T0} offen offset:1024")
    if vm: vm.add("stats"); vm.add("stats")
def wave_sum(a, v, sdst):
    for sh in (1,2,4,8): a(f"v_add_f32_dpp v{v}, v{v}, v{v} row_shr:{sh} row_mask:0xf bank_mask:0xf bound_ctrl:0")
    a(f"v_add_f32_dpp v{v}, v{v}, v{v} row_bcast:15 row_mask:0xa bank_mask:0xf")
    a(f"v_add_f32_dpp v{v}, v{v}, v{v} row_bcast:31 row_mask:0xc bank_mask:0xf")
    a(f"v_readlane_b32 s{sdst}, v{v}, 63")
def stats_compute(a, R, T, vm=None, flags="sc1", S_T0=S_T0):
    for i in range(5):
        a(f"v_lshlrev_b32 v{T+2*i}, 16, v{R+i}"); a(f"v_and_b32 v{T+2*i+1}, 0xffff0000, v{R+i}")
    s=T+10
    a(f"v_add_f32 v{s}, v{T}, v{T+1}")
    for i in range(2,10): a(f"v_add_f32 v{s}, v{s}, v{T+i}")
    wave_sum(a, s, S_T0)
    a(f"v_mov_b32 v{s+1}, 0x3acccccd"); a(f"v_mul_f32 v{s+1}, s{S_T0}, v{s+1}")
    for i in range(10): a(f"v_sub_f32 v{T+i}, v{T+i}, v{s+1}")
    a(f"v_mul_f32 v{s}, v{T}, v{T}")
    for i in range(1,10): a(f"v_fmac_f32 v{s}, v{T+i}, v{T+i}")
    wave_sum(a, s, S_T0)
    a(f"v_mov_b32 v{s}, 0x3acccccd"); a(f"v_mul_f32 v{s}, s{S_T0}, v{s}")
    a(f"v_cvt_pk_bf16_f32 v{s}, v{s}, v{s+1}")
    a(f"v_and_b32 v{T}, 0xffff0000, v{s}"); a(f"v_lshlrev_b32 v{s}, 16, v{s}")
    a(f"v_add_f32 v{s}, 0x3727c5ac, v{s}"); a(f"v_cvt_pk_bf16_f32 v{s}, v{s}, v{s}"); a(f"v_lshlrev_b32 v{s}, 16, v{s}")
    a(f"v_sqrt_f32 v{s}, v{s}"); a(f"v_cvt_pk_bf16_f32 v{s}, v{s}, v{s}"); a(f"v_lshlrev_b32 v{T+1}, 16, v{s}")
    a(f"s_lshl_b32 s{S_T0}, s{S_ROW}, 3"); a(f"s_add_u32 s{S_T0}, s{S_T0}, {WS_RS}"); a(f"v_mov_b32 v{s}, 0")
    st=["s_mov_b64 exec, 1", f"buffer_store_dwordx2 {vr(T,2)}, v{s}, s[{S_WS}:{S_WS+3}], s{S_T0} offen {flags}", "s_mov_b64 exec, -1"]
    if vm=="ret": return st
    a(st)
    if vm: vm.add("statst")

def colsum_issue(R, i):
    L=[]
    if i: L += [f"s_lshl_b32 s{S_T0}, s{S_WSTR}, 1", f"s_add_u32 s{S_CSOFF}, s{S_CSOFF}, s{S_T0}"]
    L += [f"s_mov_b64 exec, s[{S_EXC}:{S_EXC+1}]",
          f"buffer_load_dwordx4 {vr(R,4)}, v{V_C}, s[{S_W0}:{S_W0+3}], s{S_CSOFF} offen",
          f"buffer_load_dwordx4 {vr(R+4,4)}, v{V_C+1}, s[{S_W1}:{S_W1+3}], s{S_CSOFF} offen",
          "s_mov_b64 exec, -1"]
    return L
def colsum_acc(R, A, T, first, gu):
    L=[]
    for i in range(8):
        k = i if gu else (i&3)
        if first and (gu or i<4):
            L += [f"v_lshlrev_b32 v{A+2*k}, 16, v{R+i}", f"v_and_b32 v{A+2*k+1}, 0xffff0000, v{R+i}"]
        else:
            L += [f"v_lshlrev_b32 v{T}, 16, v{R+i}", f"v_and_b32 v{T+1}, 0xffff0000, v{R+i}", f"v_add_f32 v{A+2*k}, v{A+2*k}, v{T}", f"v_add_f32 v{A+2*k+1}, v{A+2*k+1}, v{T+1}"]
    return L
def colsum_fold(A, T, gu):
    L=[]
    if gu:
        for i in range(8): L += [f"v_permlane32_swap_b32 v{A+i}, v{A+8+i}"]
        for i in range(8): L += [f"v_add_f32 v{A+i}, v{A+i}, v{A+8+i}"]
        for i in range(4): L += [f"v_permlane16_swap_b32 v{A+i}, v{A+4+i}"]
        for i in range(4): L += [f"v_add_f32 v{A+i}, v{A+i}, v{A+4+i}"]
        L += [f"v_and_b32 v{T}, 15, v0", f"v_lshlrev_b32 v{T}, 5, v{T}", f"v_bfe_u32 v{T+1}, v0, 4, 1", f"v_lshl_add_u32 v{T}, v{T+1}, 4, v{T}",
              f"v_lshrrev_b32 v{T+1}, 5, v0", f"v_mul_u32_u24 v{T+1}, 384, v{T+1}", f"v_add_u32 v{T}, v{T}, v{T+1}"]
    else:
        for i in range(4): L += [f"v_permlane32_swap_b32 v{A+i}, v{A+4+i}"]
        for i in range(4): L += [f"v_add_f32 v{A+i}, v{A+i}, v{A+4+i}"]
        L += [f"v_and_b32 v{T}, 31, v0", f"v_lshlrev_b32 v{T}, 5, v{T}", f"v_lshrrev_b32 v{T+1}, 5, v0", f"v_lshl_add_u32 v{T}, v{T+1}, 4, v{T}"]
    L += [f"s_mul_i32 s{S_T0}, s{S_TG}, 768", f"s_add_u32 s{S_T0}, s{S_T0}, {L_CSW}", f"v_add_u32 v{T}, s{S_T0}, v{T}",
          [f"s_mov_b64 exec, s[{S_EXC}:{S_EXC+1}]", f"ds_write_b128 v{T}, {vr(A,4)}", "s_mov_b64 exec, -1"]]
    return L
def colsum_store(a, R, T, flags="sc1"):
    a(f"v_lshlrev_b32 v{T}, 4, v0"); a(f"v_add_u32 v{T+1}, {L_CSW}, v{T}")
    a(f"s_mov_b32 exec_hi, 0xffff")
    for w in range(4): a(f"ds_read_b128 {vr(R+4*w,4)}, v{T+1} offset:{768*w}")
    a(f"s_lshl_b32 s{S_T0}, s{S_CTG}, 3"); a(f"s_add_u32 s{S_T0}, s{S_T0}, s{S_RT}"); a(f"s_mul_i32 s{S_T0}, s{S_T0}, 768"); a(f"s_add_u32 s{S_T0}, s{S_T0}, {WS_CS}")
    a("s_waitcnt lgkmcnt(0)")
    for w in range(1,4):
        for e in range(4): a(f"v_add_f32 v{R+e}, v{R+e}, v{R+4*w+e}")
    a(f"buffer_store_dwordx4 {vr(R,4)}, v{T}, s[{S_WS}:{S_WS+3}], s{S_T0} offen {flags}")
    a("s_mov_b64 exec, -1")
def colsum_gather_issue(a, R, T, flags="sc1"):
    a(f"v_lshlrev_b32 v{T}, 4, v0"); a(f"s_mul_i32 s{S_T0}, s{S_CTG}, {8*768}"); a(f"s_add_u32 s{S_T0}, s{S_T0}, {WS_CS}"); a(f"s_add_u32 s{S_T1}, s{S_T0}, {4*768}")
    a(f"s_mov_b32 exec_hi, 0xffff")
    for i in range(8): a(f"buffer_load_dwordx4 {vr(R+4*i,4)}, v{T}, s[{S_WS}:{S_WS+3}], s{S_T0 if i<4 else S_T1} offen offset:{(i%4)*768} {flags}")
    a("s_mov_b64 exec, -1")
def colsum_gather_sum(R, T, LCS):
    L=[f"v_lshlrev_b32 v{T}, 4, v0", f"v_add_u32 v{T}, {LCS}, v{T}"]
    for i in range(1,8):
        for e in (0,2): L.append(f"v_pk_add_f32 {vr(R+e,2)}, {vr(R+e,2)}, {vr(R+4*i+e,2)}")
    L.append([f"s_mov_b32 exec_hi, 0xffff", f"ds_write_b128 v{T}, {vr(R,4)}", "s_mov_b64 exec, -1"])
    return L
def xpf_item(T, D, l0, nl):
    sh = 2
    return [f"v_and_b32 v{T}, 3, v0", f"s_lshl_b32 s{S_T0}, s{S_WAVE}, 2", f"v_add_u32 v{T}, s{S_T0}, v{T}", f"v_lshlrev_b32 v{T}, 3, v{T}", f"v_add_u32 v{T}, s{S_SLOT}, v{T}",
            f"v_mul_u32_u24 v{T}, 1280, v{T}", f"v_lshrrev_b32 v{D}, 2, v0", f"v_lshl_add_u32 v{T}, v{D}, 7, v{T}",
            f"s_mov_b64 exec, {(1<<(4*nl))-1}", f"buffer_load_dword v{D}, v{T}, s[{S_X}:{S_X+3}], 0 offen offset:{128*l0}", "s_mov_b64 exec, -1"]

def xpf2_item(T, D, l0, nl):
    return [f"v_and_b32 v{T}, 7, v0", f"s_lshl_b32 s{S_T0}, s{S_TG}, 3", f"v_add_u32 v{T}, s{S_T0}, v{T}", f"v_lshlrev_b32 v{T}, 3, v{T}", f"v_add_u32 v{T}, s{S_SLOT}, v{T}",
            f"v_mul_u32_u24 v{T}, 1280, v{T}", f"v_lshrrev_b32 v{D}, 3, v0", f"v_lshl_add_u32 v{T}, v{D}, 7, v{T}",
            (f"s_mov_b32 exec_hi, {((1<<(8*nl-32))-1)&0xffffffff}" if nl>=4 else f"s_mov_b64 exec, {(1<<(8*nl))-1}"), f"buffer_load_dword v{D}, v{T}, s[{S_X}:{S_X+3}], 0 offen offset:{128*l0}", "s_mov_b64 exec, -1"]
class Loop:
    def __init__(self, gu, vm, o=None):
        self.gu=gu; self.nA = 6 if gu else 5; self.vm=vm; self.o=o or {}
    def blks(self, half):
        n0 = 3 if self.gu else self.o.get("qsplit",2)
        return range(n0) if half==0 else range(n0, self.nA)
    def dma_w_all(self, S):
        sb=(S%2)*WSLOT; L=[]
        for hi in (1,0):
            for i in range(3):
                it=[]
                if self.gu: lo=12288*hi; srdn=S_W1 if hi else S_W0; so=S_WOFF
                else:
                    lo=4*2592*hi; srdn=S_WD; so=S_T0 if hi else S_WOFF
                    if hi: it+=[f"s_add_u32 s{S_T0}, s{S_WOFF}, {32*3840}"]
                it+=[f"s_add_u32 m0, s{S_M0W}, {sb+1024*i+lo}"]
                if i==2 and not self.gu: it+=["s_mov_b32 exec_hi, 0"]
                it+=[f"buffer_load_dwordx4 v{V_W+i}, s[{srdn}:{srdn+3}], s{so} offen lds"]
                if i==2 and not self.gu: it+=["s_mov_b32 exec_hi, -1"]
                if i==2 and not hi: it+=[f"s_add_u32 s{S_WOFF}, s{S_WOFF}, s{S_WSTR}"]
                L.append(("vm", f"W{S}", it))
        return L
    def dma_x_all(self, S):
        sb=XBASE+(S%3)*XSLOT
        return [("vm", f"X{S}", [f"s_add_u32 m0, s{S_M0X}, {sb-128*S+1024*i+16384*hi}", f"buffer_load_dwordx4 v{V_X+i}, s[{S_X}:{S_X+3}], {('s%d'%S_XHI) if hi else 0} offen offset:{128*S} lds"]) for hi in (0,1) for i in range(4)]
    def emit2(self, a, loader, extra, post_bar, pre_tags=None):
        a(self.first_reads(0))
        pend=[]
        for c in range(20):
            S=c//2
            for half in range(2):
                isbar = (c%2==1 and half==1 and S+1<10)
                if isbar:
                    tags=set(pre_tags(S) if pre_tags else [])
                    if loader: tags|={f"W{S+1}", f"X{S+1}"}
                    a((f"s_waitcnt vmcnt({self.vm.n_after(tags)}) lgkmcnt(0)") if tags else "s_waitcnt lgkmcnt(0)"); a("s_barrier")
                    post_bar(a,S)
                    if loader: pend=(self.dma_w_all(S+2) if S+2<10 else [])+(self.dma_x_all(S+3) if S+3<10 else [])
                else: a("s_waitcnt lgkmcnt(0)")
                rd = self.rd_w(c,1) if half==0 else (self.first_reads(c+1) if c+1<20 else [])
                ph=(2*c+half+1)%4
                k=self.o.get("dsplit",[4,4,3,3])[ph]
                dm=pend[:k]; pend=pend[k:]
                if self.o.get("nodma"):
                    for x in dm: self.vm.add(x[1], False)
                    dm=[]
                if self.o.get("nords"): rd=[]
                self.put(a, place(self.mf(c,half), spread(rd, dm) if self.o.get("dfront",0) else rd, spread(extra(c,half), [] if self.o.get("dfront",0) else dm)))
    def dma_w(self, S):
        sb=(S%2)*WSLOT; L=[]
        for i in range(3):
            it=[f"s_add_u32 m0, s{S_M0W}, {sb+1024*i}"]
            if i==2 and not self.gu: it+=["s_mov_b32 exec_hi, 0"]
            it+=[f"buffer_load_dwordx4 v{V_W+i}, s[{S_WD}:{S_WD+3}], s{S_WOFF} offen lds"]
            if i==2:
                if not self.gu: it+=["s_mov_b32 exec_hi, -1"]
                it+=[f"s_add_u32 s{S_WOFF}, s{S_WOFF}, s{S_WSTR}"]
            L.append(("vm", f"W{S}", it))
        return L
    def dma_x(self, S):
        sb=XBASE+(S%3)*XSLOT
        return [("vm", f"X{S}", [f"s_add_u32 m0, s{S_M0X}, {sb-128*S+1024*i}", f"buffer_load_dwordx4 v{V_X+i}, s[{S_X}:{S_X+3}], 0 offen offset:{128*S} lds"]) for i in range(4)]
    def put(self, a, items):
        for x in items:
            if isinstance(x, tuple) and x[0]=="lazy":
                a(f"s_waitcnt vmcnt({self.vm.n_after({x[1]})})")
            elif isinstance(x, tuple):
                n = x[3] if len(x)>3 else 1
                for _ in range(n): self.vm.add(x[1], x[0]=="vm")
                a(x[2])
            else: a(x)
    def read_addr(self, a):
        t=V_T
        a(f"v_and_b32 v{t}, 15, v0"); a(f"v_lshlrev_b32 v{t}, 7, v{t}")
        a(f"v_bfe_u32 v{t+1}, v0, 1, 3"); a(f"v_lshrrev_b32 v{t+2}, 4, v0"); a(f"v_xor_b32 v{t+1}, v{t+1}, v{t+2}")
        a(f"v_lshl_add_u32 v{t}, v{t+1}, 4, v{t}"); a(f"s_lshl_b32 s{S_T0}, s{S_TG}, 13"); a(f"s_add_u32 s{S_T0}, s{S_T0}, {XBASE}")
        a(f"v_add_u32 v{V_XR}, s{S_T0}, v{t}"); a(f"v_xor_b32 v{V_XR+1}, 64, v{V_XR}")
        a(f"v_add_u32 v{V_XR+2}, {2*XSLOT}, v{V_XR}"); a(f"v_add_u32 v{V_XR+3}, {2*XSLOT}, v{V_XR+1}")
        gs, rs, fs, cs = (1536,192,96,8) if self.gu else (2592,320,160,40)
        a(f"v_mul_u32_u24 v{t}, {gs}, v{t+2}"); a(f"v_bfe_u32 v{t+1}, v0, 2, 2"); a(f"v_mul_u32_u24 v{t+1}, {rs}, v{t+1}"); a(f"v_add_u32 v{t}, v{t}, v{t+1}")
        a(f"v_and_b32 v{t+1}, 3, v0"); a(f"v_mul_u32_u24 v{t+1}, {cs}, v{t+1}"); a(f"v_add_u32 v{t}, v{t}, v{t+1}")
        a(f"s_mul_i32 s{S_T0}, s{S_FG}, {fs}"); a(f"v_add_u32 v{V_WR}, s{S_T0}, v{t}")
        if self.gu:
            a(f"v_and_b32 v{t+2}, 1, v{t+2}"); a(f"s_cmp_eq_u32 s{S_FG}, 0"); a(f"s_cselect_b32 s{S_T0}, 32, -32"); a(f"v_mul_i32_i24 v{t+2}, s{S_T0}, v{t+2}")
            a(f"v_sub_u32 v{V_WR+1}, v{V_WR}, v{t+2}"); a(f"v_add_u32 v{V_WR}, v{V_WR}, v{t+2}")
    def rd_x(self, c):
        S=c//2; j=c%2; s=S%3
        return [f"ds_read_b128 {vr(XB[c%2]+4*t,4)}, v{V_XR+j+(2 if s==2 else 0)} offset:{(s%2)*XSLOT+2048*t}" for t in range(4)]
    def rd_w(self, c, half):
        S=c//2; j=c%2; so=(S%2)*WSLOT; L=[]
        for i,blk in enumerate(self.blks(half)):
            for rd in range(2):
                if self.gu: v=V_WR+((blk%3)&1); off=so+j*6144+rd*768+(blk%3)*32+(blk//3)*12288
                else: v=V_WR; off=so+j*10368+rd*1280+blk*8
                L.append(f"ds_read_b64_tr_b16 {vr(WB[half]+4*i+2*rd,2)}, v{v} offset:{off}")
        return L
    def mf(self, c, half):
        L=[]
        for i,blk in enumerate(self.blks(half)):
            for t in range(4):
                ac=ACC+4*(4*blk+t)
                L.append(f"v_mfma_f32_16x16x32_bf16 {vr(ac,4)}, {vr(WB[half]+4*i,4)}, {vr(XB[c%2]+4*t,4)}, {vr(ac,4) if c>0 else 0}")
        return L
    def first_reads(self, c):
        r = self.rd_x(c); w = self.rd_w(c,0)
        return [r[0], w[0], w[1]] + r[1:] + w[2:]
    def emit(self, a, extra=None, pre_bar=None, post_bar=None):
        a(self.first_reads(0))
        for c in range(20):
            S=c//2
            for half in range(2):
                isbar = (c%2==1 and half==1 and S+1<10)
                if isbar:
                    tags={f"W{S+1}", f"X{S+1}"} | set(pre_bar(S) if pre_bar else [])
                    a(f"s_waitcnt vmcnt({self.vm.n_after(tags)}) lgkmcnt(0)"); a("s_barrier")
                    if post_bar: post_bar(a,S)
                else: a("s_waitcnt lgkmcnt(0)")
                rd = self.rd_w(c,1) if half==0 else (self.first_reads(c+1) if c+1<20 else [])
                dm=[]
                if isbar and S+2<10: dm=self.dma_w(S+2)
                if c%2==0 and S>=1 and S+2<10:
                    x=self.dma_x(S+2); dm = x[:2] if half==0 else x[2:]
                ex = extra(c,half) if extra else []
                if self.o.get("nodma"):
                    for x in dm: self.vm.add(x[1], False)
                    dm=[]
                if self.o.get("nox"):
                    for x in dm:
                        if x[1][0]=="X": self.vm.add(x[1], False)
                    dm=[x for x in dm if x[1][0]!="X"]
                if self.o.get("nords"): rd=[]
                self.put(a, place(self.mf(c,half), spread(rd, dm), ex))

def spread(x, y):
    if not y: return list(x)
    if not x: return list(y)
    return interleave(x, y)
def place(m, front, ex):
    n=len(m); lim=max(1,(3*n)//4)
    per=[0]*n
    k=len(front); i=0
    while k>0:
        per[i%lim]+=1; k-=1; i+=1
    out=[]; fi=0; ei=0
    for i,x in enumerate(m):
        out.append(x)
        for _ in range(per[i]): out.append(front[fi]); fi+=1
        tgt=(len(ex)*(i+1)+n-1)//n
        while ei<tgt: out.append(ex[ei]); ei+=1
    return out
```

```python
from p1 import *
E_RS=128
E_AB=136
E_CS=144
E_T=168
E_PHI=184
LO="op_sel:[{}] op_sel_hi:[{}]"
def pk(op, d, srcs, sel, neg=None):
    assert 'h' not in sel
    lo=",".join("1" if c=='h' else "0" for c in sel); hi=",".join("0" if c=='l' else "1" for c in sel)
    s=f"{op} {vr(d,2)}, " + ", ".join(x if isinstance(x,str) else vr(x,2) for x in srcs)
    if 'l' in sel or 'h' in sel: s+=f" op_sel:[{lo}] op_sel_hi:[{hi}]"
    if neg: n=",".join(str(x) for x in neg); s+=f" neg_lo:[{n}] neg_hi:[{n}]"
    return s
def epi_load_rs(a, RS=E_RS, flags="sc1"):
    a(f"s_lshl_b32 s{S_T0}, s{S_RT}, 8"); a(f"s_lshl_b32 s{S_T1}, s{S_TG}, 6"); a(f"s_add_u32 s{S_T0}, s{S_T0}, s{S_T1}"); a(f"s_lshl_b32 s{S_T0}, s{S_T0}, 3"); a(f"s_add_u32 s{S_T0}, s{S_T0}, {WS_RS}")
    a(f"v_and_b32 v{V_T}, 15, v0"); a(f"v_lshlrev_b32 v{V_T}, 3, v{V_T}")
    for t in range(4): a(f"buffer_load_dwordx2 {vr(RS+2*t,2)}, v{V_T}, s[{S_WS}:{S_WS+3}], s{S_T0} offen offset:{128*t} {flags}")
def epi_read_cs(a, gu, L_CS2=L_CS2):
    t=V_T
    a(f"v_lshrrev_b32 v{t}, 4, v0"); a(f"v_mul_u32_u24 v{t}, {16 if gu else 80}, v{t}")
    a(f"s_mul_i32 s{S_T0}, s{S_FG}, {192 if gu else 320}"); a(f"s_add_u32 s{S_T0}, s{S_T0}, {L_CS2}"); a(f"v_add_u32 v{t}, s{S_T0}, v{t}")
    for b in range(6 if gu else 5):
        off = ((b%3)*64 + (b//3)*384) if gu else b*16
        a(f"ds_read_b128 {vr(E_CS+4*b,4)}, v{t} offset:{off}")

def epi_gu(a, RS=E_RS, flags="sc1", hook=None, vm=None, var=0):
    for t in range(4):
        a(f"v_rcp_f32 v{E_AB+2*t}, v{RS+2*t+1}"); a(f"v_mul_f32 v{E_RS+2*t}, v{RS+2*t+1}, v{RS+2*t+1}")
    for t in range(4): a(f"v_mul_f32 v{E_AB+2*t}, {LOG2E|0x80000000}, v{E_AB+2*t}")
    vo=V_T; vmid=V_T+1
    a(f"v_lshlrev_b32 v{vo}, 4, v0")
    a(f"v_lshrrev_b32 v{vmid}, 5, v0"); a(f"v_mul_u32_u24 v{vmid}, {54*1024-512}, v{vmid}"); a(f"v_add_u32 v{vmid}, v{vmid}, v{vo}")
    a(f"s_lshl_b32 s{S_T0}, s{S_FG}, 9"); a(f"v_add_u32 v{vmid}, s{S_T0}, v{vmid}")
    sf, sm = S_EXC, S_EXC+1
    a(f"s_lshl_b32 s{sf}, s{S_RT}, 4"); a(f"s_lshl_b32 s{S_T1}, s{S_TG}, 2"); a(f"s_add_u32 s{sf}, s{sf}, s{S_T1}"); a(f"s_mul_i32 s{sf}, s{sf}, 54")
    a(f"s_mul_i32 s{S_T1}, s{S_CT}, 3"); a(f"s_add_u32 s{sf}, s{sf}, s{S_T1}"); a(f"s_lshl_b32 s{sf}, s{sf}, 10"); a(f"s_add_u32 s{sf}, s{sf}, {WS_H}")
    a(f"s_add_u32 s{sm}, s{sf}, 1024"); a(f"s_lshl_b32 s{S_T2}, s{S_FG}, 11"); a(f"s_add_u32 s{sf}, s{sf}, s{S_T2}")
    def hblock(pts, dst):
        el=[(ACC+4*(4*p+t)+e, ACC+4*(4*(3+p)+t)+e, E_CS+4*p+e, E_CS+4*(3+p)+e, t) for (p,t) in pts for e in (0,2)]
        X=E_T
        for g,u,cg,cu,t in el: a(pk("v_pk_fma_f32", g, [RS+2*t, cg, g], "lpp", [1,0,0]))
        for i,(g,u,cg,cu,t) in enumerate(el): a(pk("v_pk_mul_f32", X+2*i, [g, E_AB+2*t], "pl"))
        for i,(g,u,cg,cu,t) in enumerate(el):
            a(f"v_exp_f32 v{X+2*i}, v{X+2*i}"); a(f"v_exp_f32 v{X+2*i+1}, v{X+2*i+1}"); a(pk("v_pk_fma_f32", u, [RS+2*t, cu, u], "lpp", [1,0,0]))
        for i,(g,u,cg,cu,t) in enumerate(el): a(pk("v_pk_fma_f32", X+2*i, [X+2*i, E_RS+2*t, E_RS+2*t], "pll"))
        for i,(g,u,cg,cu,t) in enumerate(el):
            a(f"v_rcp_f32 v{X+2*i}, v{X+2*i}"); a(f"v_rcp_f32 v{X+2*i+1}, v{X+2*i+1}"); a(pk("v_pk_mul_f32", g, [g, u], "pp"))
        for i,(g,u,cg,cu,t) in enumerate(el): a(pk("v_pk_mul_f32", g, [g, X+2*i], "pp"))
        for i,(g,u,cg,cu,t) in enumerate(el): a(f"v_cvt_pk_bf16_f32 v{dst+i}, v{g}, v{g+1}")
    D=[E_T+8, E_T+12]
    nst=0
    for t in range(4):
        d=D[nst%2]; hblock([(0,t),(1,t)], d)
        a(f"buffer_store_dwordx4 {vr(d,4)}, v{vo}, s[{S_WS}:{S_WS+3}], s{sf} offen {flags}")
        if vm: vm.add("est")
        if t<3: a(f"s_add_u32 s{sf}, s{sf}, {54*1024}")
        if hook: hook(nst)
        nst+=1
        if t&1:
            d=D[nst%2]; hblock([(2,t-1),(2,t)], d)
            a(f"v_permlane32_swap_b32 v{d}, v{d+2}"); a(f"v_permlane32_swap_b32 v{d+1}, v{d+3}")
            a(f"buffer_store_dwordx4 {vr(d,4)}, v{vmid}, s[{S_WS}:{S_WS+3}], s{sm} offen {flags}")
            if vm: vm.add("est")
            if t<3: a(f"s_add_u32 s{sm}, s{sm}, {2*54*1024}")
            if hook: hook(nst)
            nst+=1

def phi_dma(a, vm=None, lab=""):
    a(f"s_lshl_b32 s{S_T0}, s{S_WAVE}, 10"); a(f"s_add_u32 m0, s{S_T0}, {L_WPHI}"); a(f"v_lshlrev_b32 v{V_T}, 4, v0")
    a(f"v_add_u32 v{V_T}, s{S_T0}, v{V_T}"); a(f"v_cmp_gt_u32 vcc, 6400, v{V_T}"); a(f"s_and_b64 exec, vcc, -1")
    a(f"s_cbranch_execz PHI_SKIP{lab}")
    a(f"buffer_load_dwordx4 v{V_T}, s[{S_PHI}:{S_PHI+3}], 0 offen lds")
    a.label(f"PHI_SKIP{lab}")
    a("s_mov_b64 exec, -1")
    if vm: vm.add("phi", False)
def lds_zero_init(a):
    t=V_T
    a(f"s_lshl_b32 s{S_T0}, s{S_WAVE}, 6"); a(f"v_add_u32 v{t+4}, s{S_T0}, v0"); a(f"v_subrev_u32 v{t+4}, 448, v{t+4}")
    for i in range(4): a(f"v_mov_b32 v{t+i}, 0")
    a(f"v_cmp_gt_u32 vcc, 50, v{t+4}"); a(f"v_lshlrev_b32 v{t+4}, 4, v{t+4}"); a(f"v_add_u32 v{t+4}, {L_ZERO}, v{t+4}")
    a(f"s_and_b64 exec, vcc, -1")
    a(f"ds_write_b128 v{t+4}, {vr(t,4)}")
    a("s_mov_b64 exec, -1")
def phi_frags(a, t=V_T):
    a(f"v_lshrrev_b32 v{t}, 4, v0"); a(f"v_and_b32 v{t+1}, 3, v0"); a(f"v_cmp_eq_u32 vcc, v{t}, v{t+1}")
    a(f"v_mul_u32_u24 v{t}, 800, v{t}"); a(f"v_bfe_u32 v{t+1}, v0, 2, 2"); a(f"v_mul_u32_u24 v{t+1}, 40, v{t+1}"); a(f"v_add_u32 v{t}, v{t}, v{t+1}")
    a(f"s_mul_i32 s{S_T0}, s{S_FG}, 3200"); a(f"s_cmp_eq_u32 s{S_TYPE}, {T_KV}"); a(f"s_cselect_b32 s{S_T0}, 0, s{S_T0}"); a(f"s_add_u32 s{S_T0}, s{S_T0}, {L_WPHI}"); a(f"v_add_u32 v{t}, s{S_T0}, v{t}")
    a(f"v_mov_b32 v{t+1}, {L_ZERO}"); a(f"v_cndmask_b32 v{t}, v{t+1}, v{t}, vcc")
    L=[]
    for b in range(5):
        for s in range(3):
            for rd in range(2):
                r=E_PHI+4*(3*b+s)+2*rd
                if s==2 and rd==1: a(f"v_mov_b32 v{r}, 0"); a(f"v_mov_b32 v{r+1}, 0")
                else: L.append(f"ds_read_b64_tr_b16 {vr(r,2)}, v{t} offset:{(8*s+4*rd)*40+b*8}")
    return L
def ln_pack(a, t, dst, RS):
    el=[(ACC+4*(4*b+t)+e, E_CS+4*b+e) for b in range(5) for e in (0,2)]
    for g,c in el: a(pk("v_pk_fma_f32", g, [RS+2*t, c, g], "lpp", [1,0,0]))
    for g,c in el: a(pk("v_pk_mul_f32", g, [g, E_AB+2*t], "pl"))
    for k,(g,c) in enumerate(el): a(f"v_cvt_pk_bf16_f32 v{dst+k}, v{g}, v{g+1}")
def phi_mfma(a, t, F):
    for s in range(3):
        for b in range(5):
            ac=ACC+4*(4*b+t)
            a(f"v_mfma_f32_16x16x32_bf16 {vr(ac,4)}, {vr(E_PHI+4*(3*b+s),4)}, {vr(F+4*s,4)}, {vr(ac,4) if s else 0}")
def epi_rstd(a, RS):
    for t in range(4): a(f"v_rcp_f32 v{E_AB+2*t}, v{RS+2*t+1}")
def epi_q(a, RS=E_RS, flags="sc1", vm=None):
    epi_rstd(a, RS)
    F=[E_T, 112]
    for f in F: a(f"v_mov_b32 v{f+10}, 0"); a(f"v_mov_b32 v{f+11}, 0")
    for t in range(4):
        ln_pack(a, t, F[t&1], RS); phi_mfma(a, t, F[t&1])
    v16=V_T; v8=V_T+1; t_=V_T+2
    a(f"v_lshrrev_b32 v{t_}, 4, v0"); a(f"v_mul_u32_u24 v{t_}, 81920, v{t_}"); a(f"v_and_b32 v{v8}, 15, v0")
    a(f"v_lshl_add_u32 v{v16}, v{v8}, 4, v{t_}"); a(f"v_lshl_add_u32 v{v8}, v{v8}, 3, v{t_}")
    a(f"s_lshl_b32 s{S_T0}, s{S_CT}, 1"); a(f"s_add_u32 s{S_T0}, s{S_T0}, s{S_FG}"); a(f"s_mul_i32 s{S_T0}, s{S_T0}, {4*81920}"); a(f"s_add_u32 s{S_T0}, s{S_T0}, {WS_PQ}")
    a(f"s_lshl_b32 s{S_T1}, s{S_RT}, 8"); a(f"s_lshl_b32 s{S_T2}, s{S_TG}, 6"); a(f"s_add_u32 s{S_T1}, s{S_T1}, s{S_T2}")
    a(f"s_lshl_b32 s{S_T2}, s{S_T1}, 3"); a(f"s_add_u32 s{S_T2}, s{S_T2}, s{S_T0}"); a(f"s_add_u32 s{S_T2}, s{S_T2}, 65536")
    a(f"s_lshl_b32 s{S_T1}, s{S_T1}, 4"); a(f"s_add_u32 s{S_T0}, s{S_T0}, s{S_T1}"); a(f"s_add_u32 s{S_T1}, s{S_T0}, 32768")
    for t in range(4):
        D=E_CS+12*(t&1)
        el=[ACC+4*(4*b+t)+e for b in range(5) for e in range(4)]
        for k in range(10): a(f"v_cvt_pk_bf16_f32 v{D+k}, v{el[2*k]}, v{el[2*k+1]}")
        a(f"buffer_store_dwordx4 {vr(D,4)}, v{v16}, s[{S_WS}:{S_WS+3}], s{S_T0} offen offset:{256*t} {flags}")
        a(f"buffer_store_dwordx4 {vr(D+4,4)}, v{v16}, s[{S_WS}:{S_WS+3}], s{S_T1} offen offset:{256*t} {flags}")
        a(f"buffer_store_dwordx2 {vr(D+8,2)}, v{v8}, s[{S_WS}:{S_WS+3}], s{S_T2} offen offset:{128*t} {flags}")
        if vm:
            for _ in range(3): vm.add("est")

def softmax20(a, p, sign, T, dst, sc=None, mid=None):
    out=[]
    q=[r+e for r in p for e in (0,1)]
    m=T+20; s=T+22
    op = "v_max3_f32" if sign>0 else "v_min3_f32"
    out+=[f"{op} v{m}, v{q[0]}, v{q[1]}, v{q[2]}", f"{op} v{m+1}, v{q[3]}, v{q[4]}, v{q[5]}"]
    for i in range(6,18,4): out+=[f"{op} v{m}, v{m}, v{q[i]}, v{q[i+1]}", f"{op} v{m+1}, v{m+1}, v{q[i+2]}, v{q[i+3]}"]
    out+=[f"{op} v{m}, v{m}, v{q[18]}, v{q[19]}", f"{'v_max_f32' if sign>0 else 'v_min_f32'} v{m}, v{m}, v{m+1}"]
    if sc is None:
        out+=[f"v_mov_b32 v{s}, {LOG2E if sign>0 else LOG2E|0x80000000}", f"v_mul_f32 v{m}, v{m}, v{s}"]
        for i,r in enumerate(p): out.append(pk("v_pk_fma_f32", T+2*i, [r, s, m], "pll", [0,0,1]))
    else:
        out+=[f"v_mul_f32 v{m}, v{m}, v{sc}"]
        for i,r in enumerate(p): out.append(pk("v_pk_fma_f32", T+2*i, [r, sc, m], "pll", [0,0,1] if sign>0 else [0,1,0]))
    for i in range(20): out.append(f"v_exp_f32 v{T+i}, v{T+i}")
    out+=[pk("v_pk_add_f32", s, [T, T+2], "pp"), pk("v_pk_add_f32", m, [T+4, T+6], "pp")]
    for i in range(8,20,4): out+=[pk("v_pk_add_f32", s, [s, T+i], "pp"), pk("v_pk_add_f32", m, [m, T+i+2], "pp")]
    out+=[pk("v_pk_add_f32", s, [s, m], "pp"), f"v_add_f32 v{s}, v{s}, v{s+1}", f"v_rcp_f32 v{s}, v{s}"]
    if sc is not None: out+=[f"v_mul_f32 v{s}, v{s}, v{sc+1}"]
    for i in range(10): out.append(pk("v_pk_mul_f32", T+2*i, [T+2*i, s], "pl"))
    for k in range(10): out.append(f"v_cvt_pk_bf16_f32 v{dst[k] if isinstance(dst,list) else dst+k}, v{T+2*k}, v{T+2*k+1}")
    if mid: out=interleave(out[:40], mid)+out[40:]
    if a is None: return out
    a(out)

def epi_kv(a, RS=E_RS, flags="sc1", vm=None):
    epi_rstd(a, RS)
    vw=V_T
    a(f"v_and_b32 v{vw}, 15, v0"); a(f"v_mul_u32_u24 v{vw}, {KVROW}, v{vw}"); a(f"v_lshrrev_b32 v{vw+1}, 4, v0"); a(f"v_lshl_add_u32 v{vw}, v{vw+1}, 7, v{vw}")
    a(f"s_mul_i32 s{S_T0}, s{S_TG}, {64*KVROW}"); a(f"v_add_u32 v{vw}, s{S_T0}, v{vw}")
    a(f"s_cmp_eq_u32 s{S_FG}, 0"); a("s_cbranch_scc1 KV_KWAVE")
    for t in range(4):
        F=E_PHI+12*t
        ln_pack(a, t, F, RS); a(f"v_mov_b32 v{F+10}, 0x3f803f80"); a(f"v_mov_b32 v{F+11}, 0x3f803f80")
        for i in range(3): a(f"ds_write_b128 v{vw}, {vr(F+4*i,4)} offset:{t*16*KVROW+80+16*i}")
    a("s_branch KV_JOIN")
    a.label("KV_KWAVE")
    F=[E_T, 112]
    for f in F: a(f"v_mov_b32 v{f+10}, 0"); a(f"v_mov_b32 v{f+11}, 0")
    for t in range(4):
        ln_pack(a, t, F[t&1], RS); phi_mfma(a, t, F[t&1])
    T=E_CS
    for t in range(4):
        D=E_PHI+20*(t&1)
        p=[ACC+4*(4*b+t)+e for b in range(5) for e in (0,2)]
        softmax20(a, p, +1, T, D); softmax20(a, p, -1, T, D+10)
        for i in range(5): a(f"ds_write_b128 v{vw}, {vr(D+4*i,4)} offset:{t*16*KVROW+16*i}")
    a.label("KV_JOIN")
    kv_stage(a, flags, vm)
def kv_stage(a, flags, vm, stp=None):
    a("s_waitcnt lgkmcnt(0)"); a("s_barrier")
    if stp: stp(23)
    t=V_T
    a(f"v_bfe_u32 v{t}, v0, 2, 3"); a(f"v_lshrrev_b32 v{t+1}, 5, v0"); a(f"v_lshl_add_u32 v{t}, v{t+1}, 3, v{t}"); a(f"v_mul_u32_u24 v{t}, {2*KVROW}, v{t}")
    a(f"v_and_b32 v{t+1}, 3, v0"); a(f"v_lshl_add_u32 v{t}, v{t+1}, 3, v{t}")
    a(f"s_lshr_b32 s{S_T0}, s{S_WAVE}, 1"); a(f"s_lshl_b32 s{S_T0}, s{S_T0}, 7"); a(f"v_add_u32 v{t}, s{S_T0}, v{t}")
    a(f"s_and_b32 s{S_T1}, s{S_WAVE}, 1"); a(f"s_lshl_b32 s{S_T1}, s{S_T1}, 5"); a(f"s_add_u32 s{S_T1}, s{S_T1}, 80"); a(f"v_add_u32 v{t+1}, s{S_T1}, v{t}")
    a(f"v_add_u32 v{t+2}, {128*KVROW}, v{t}"); a(f"v_add_u32 v{t+3}, {128*KVROW}, v{t+1}")
    FR=[48,64,80,96]
    for st in range(8):
        va=t+(2 if st>=4 else 0); o=(st%4)*32*KVROW; f=FR[st%4]
        for rd in range(2): a(f"ds_read_b64_tr_b16 {vr(f+12+2*rd,2)}, v{va+1} offset:{o+rd*KVROW}")
        for fb in range(3):
            for rd in range(2): a(f"ds_read_b64_tr_b16 {vr(f+4*fb+2*rd,2)}, v{va} offset:{o+rd*KVROW+32*fb}")
        if st>=1:
            a("s_waitcnt lgkmcnt(8)"); g=FR[(st-1)%4]
            for fb in range(3): a(f"v_mfma_f32_16x16x32_bf16 {vr(ACC+4*fb,4)}, {vr(g+4*fb,4)}, {vr(g+12,4)}, {vr(ACC+4*fb,4) if st>1 else 0}")
    a("s_waitcnt lgkmcnt(0)"); g=FR[3]
    for fb in range(3): a(f"v_mfma_f32_16x16x32_bf16 {vr(ACC+4*fb,4)}, {vr(g+4*fb,4)}, {vr(g+12,4)}, {vr(ACC+4*fb,4)}")
    if stp: stp(24)
    a(f"v_and_b32 v{t}, 15, v0"); a(f"s_and_b32 s{S_T1}, s{S_WAVE}, 1"); a(f"s_lshl_b32 s{S_T1}, s{S_T1}, 4"); a(f"v_add_u32 v{t}, s{S_T1}, v{t}")
    a(f"v_cmp_gt_u32 vcc, 21, v{t}"); a(f"v_lshrrev_b32 v{t+1}, 4, v0"); a(f"v_mul_u32_u24 v{t+1}, 21, v{t+1}"); a(f"v_add_u32 v{t}, v{t}, v{t+1}"); a(f"v_lshlrev_b32 v{t}, 4, v{t}")
    a(f"s_lshl_b32 s{S_T0}, s{S_RT}, 5"); a(f"s_lshl_b32 s{S_T1}, s{S_CT}, 2"); a(f"s_add_u32 s{S_T0}, s{S_T0}, s{S_T1}"); a(f"s_lshr_b32 s{S_T1}, s{S_WAVE}, 1"); a(f"s_add_u32 s{S_T0}, s{S_T0}, s{S_T1}")
    a(f"s_mul_i32 s{S_T0}, s{S_T0}, 3360"); a(f"s_add_u32 s{S_T0}, s{S_T0}, {WS_KVP}")
    a(f"s_mov_b64 exec, vcc")
    for fb in range(3):
        if fb==2: a("s_mov_b32 exec_hi, 0")
        a(f"buffer_store_dwordx4 {vr(ACC+4*fb,4)}, v{t}, s[{S_WS}:{S_WS+3}], s{S_T0} offen offset:{fb*4*21*16} {flags}")
        if vm: vm.add("est")
    a("s_mov_b64 exec, -1")

def epi_kv2(a, RS=E_RS, flags="sc1", vm=None):
    epi_rstd(a, RS)
    vw=V_T
    a(f"v_and_b32 v{vw}, 15, v0"); a(f"v_mul_u32_u24 v{vw}, {KVROW}, v{vw}"); a(f"v_lshrrev_b32 v{vw+1}, 4, v0"); a(f"v_lshl_add_u32 v{vw}, v{vw+1}, 7, v{vw}")
    a(f"s_mul_i32 s{S_T0}, s{S_TG}, {64*KVROW}"); a(f"v_add_u32 v{vw}, s{S_T0}, v{vw}")
    T=E_CS
    def sm(t, D):
        p=[ACC+4*(4*b+t)+e for b in range(5) for e in (0,2)]
        softmax20(a, p, +1, T, D); softmax20(a, p, -1, T, D+10)
        for i in range(5): a(f"ds_write_b128 v{vw}, {vr(D+4*i,4)} offset:{t*16*KVROW+16*i}")
    a(f"s_cmp_eq_u32 s{S_FG}, 0"); a("s_cbranch_scc1 KV_KWAVE")
    for t in range(4):
        F=E_PHI+12*t
        ln_pack(a, t, F, RS); a(f"v_mov_b32 v{F+10}, 0x3f803f80"); a(f"v_mov_b32 v{F+11}, 0x3f803f80")
        for i in range(3): a(f"ds_write_b128 v{vw}, {vr(F+4*i,4)} offset:{t*16*KVROW+80+16*i}")
    a("s_barrier")
    for t in (2,3):
        for b in range(5): a(f"ds_read_b128 {vr(ACC+4*(4*b+t),4)}, v{vw} offset:{t*16*KVROW+16*b}")
    a("s_waitcnt lgkmcnt(5)"); sm(2, E_PHI)
    a("s_waitcnt lgkmcnt(5)"); sm(3, E_PHI+20)
    a("s_branch KV_JOIN")
    a.label("KV_KWAVE")
    F=[E_T, 112]
    for f in F: a(f"v_mov_b32 v{f+10}, 0"); a(f"v_mov_b32 v{f+11}, 0")
    for t in (2,3):
        ln_pack(a, t, F[t&1], RS); phi_mfma(a, t, F[t&1])
    ln_pack(a, 0, F[0], RS)
    for b in range(5): a(f"ds_write_b128 v{vw}, {vr(ACC+4*(4*b+2),4)} offset:{2*16*KVROW+16*b}")
    phi_mfma(a, 0, F[0])
    for b in range(5): a(f"ds_write_b128 v{vw}, {vr(ACC+4*(4*b+3),4)} offset:{3*16*KVROW+16*b}")
    ln_pack(a, 1, F[1], RS)
    a("s_waitcnt lgkmcnt(0)"); a("s_barrier")
    phi_mfma(a, 1, F[1])
    sm(0, KV_D); sm(1, KV_D2)
    a.label("KV_JOIN")
    kv_stage(a, flags, vm)
KV_D=E_PHI+0; KV_D2=E_PHI+20

def center_pack(t, dst, RS):
    el=[(ACC+4*(4*b+t)+e, E_CS+4*b+e) for b in range(5) for e in (0,2)]
    return [pk("v_pk_fma_f32", g, [RS+2*t, c, g], "lpp", [1,0,0]) for g,c in el]+[f"v_cvt_pk_bf16_f32 v{dst+k}, v{g}, v{g+1}" for k,(g,c) in enumerate(el)]
def phi_mf(t, F):
    return [f"v_mfma_f32_16x16x32_bf16 {vr(ACC+4*(4*b+t),4)}, {vr(E_PHI+4*(3*b+s),4)}, {vr(F+4*s,4)}, {vr(ACC+4*(4*b+t),4) if s else 0}" for s in range(3) for b in range(5)]
def epi_kv3(a, RS=E_RS, flags="sc1", vm=None, st=None):
    if st: st(20)
    for t in range(4): a(f"v_rcp_f32 v{E_AB+2*t+1}, v{RS+2*t+1}")
    vw=V_T
    a(f"v_and_b32 v{vw}, 15, v0"); a(f"v_mul_u32_u24 v{vw}, {KVROW}, v{vw}"); a(f"v_lshrrev_b32 v{vw+1}, 4, v0"); a(f"v_lshl_add_u32 v{vw}, v{vw+1}, 7, v{vw}")
    a(f"s_mul_i32 s{S_T0}, s{S_TG}, {64*KVROW}"); a(f"v_add_u32 v{vw}, s{S_T0}, v{vw}")
    for t in range(4): a(f"v_mul_f32 v{E_AB+2*t}, {LOG2E}, v{E_AB+2*t+1}")
    T=E_CS
    P=lambda t: [ACC+4*(4*b+t)+e for b in range(5) for e in (0,2)]
    wr=lambda t,D,i0,i1: [f"ds_write_b128 v{vw}, {vr(D+4*i,4)} offset:{t*16*KVROW+16*i}" for i in range(i0,i1)]
    a(f"s_cmp_eq_u32 s{S_FG}, 0"); a("s_cbranch_scc1 KV_KWAVE")
    for t in range(4):
        F=E_PHI+12*t
        a(center_pack(t, F, RS)); a(f"v_cvt_pk_bf16_f32 v{F+10}, v{RS+2*t+1}, v{RS+2*t+1}"); a(f"v_mov_b32 v{F+11}, 0")
        for i in range(3): a(f"ds_write_b128 v{vw}, {vr(F+4*i,4)} offset:{t*16*KVROW+80+16*i}")
    if st: st(21)
    a("s_barrier")
    if st: st(22)
    for t in (2,3):
        for b in range(5): a(f"ds_read_b128 {vr(ACC+4*(4*b+t),4)}, v{vw} offset:{t*16*KVROW+16*b}")
    a("s_waitcnt lgkmcnt(5)")
    softmax20(a, P(2), +1, T, E_PHI, E_AB+4); softmax20(a, P(2), -1, T, E_PHI+10, E_AB+4, wr(2,E_PHI,0,2))
    a("s_waitcnt lgkmcnt(2)")
    softmax20(a, P(3), +1, T, E_PHI+20, E_AB+6, wr(2,E_PHI,2,5)); softmax20(a, P(3), -1, T, E_PHI+30, E_AB+6, wr(3,E_PHI+20,0,2))
    a(wr(3,E_PHI+20,2,5))
    a("s_branch KV_JOIN")
    a.label("KV_KWAVE")
    F=[E_T, 112]
    for f in F: a(f"v_mov_b32 v{f+10}, 0"); a(f"v_mov_b32 v{f+11}, 0")
    a(center_pack(2, F[0], RS))
    a(interleave(phi_mf(2,F[0]), center_pack(3, F[1], RS)))
    F2=KV_F2
    a(f"v_mov_b32 v{F2+10}, 0"); a(f"v_mov_b32 v{F2+11}, 0")
    a(interleave(phi_mf(3,F[1]), center_pack(0, F2, RS)))
    ex=lambda t: [f"ds_write_b128 v{vw}, {vr(ACC+4*(4*b+t),4)} offset:{t*16*KVROW+16*b}" for b in range(5)]
    a(ex(2))
    a(interleave(phi_mf(0,F2), center_pack(1, F[0], RS)))
    a(ex(3))
    a(phi_mf(1,F[0])[:5])
    a("s_waitcnt lgkmcnt(0)")
    if st: st(21)
    a("s_barrier")
    if st: st(22)
    D0=KV_D0; D1=E_PHI
    softmax20(a, P(0), +1, T, D0, E_AB+0, phi_mf(1,F[0])[5:]); softmax20(a, P(0), -1, T, D0+10, E_AB+0, wr(0,D0,0,2))
    softmax20(a, P(1), +1, T, D1, E_AB+2, wr(0,D0,2,5)); softmax20(a, P(1), -1, T, D1+10, E_AB+2, wr(1,D1,0,2))
    a(wr(1,D1,2,5))
    a.label("KV_JOIN")
    if st: st(1)
    kv_stage(a, flags, vm, st)
KV_F2=124
KV_D0=E_PHI+20

def epi_kv4(a, RS, st=None):
    vw=V_T
    a(f"v_and_b32 v{vw}, 15, v0"); a(f"v_mul_u32_u24 v{vw}, {KVROW}, v{vw}"); a(f"v_lshrrev_b32 v{vw+1}, 4, v0"); a(f"v_lshl_add_u32 v{vw}, v{vw+1}, 7, v{vw}")
    a(f"s_mul_i32 s{S_T0}, s{S_TG}, {64*KVROW}"); a(f"v_add_u32 v{vw}, s{S_T0}, v{vw}")
    a(f"s_cmp_eq_u32 s{S_FG}, 0"); a("s_cbranch_scc1 KV_KWAVE")
    a("s_waitcnt lgkmcnt(0)")
    for t in range(4):
        F=E_PHI+12*t
        a(center_pack(t, F, RS)); a(f"v_cvt_pk_bf16_f32 v{F+10}, v{RS+2*t+1}, v{RS+2*t+1}"); a(f"v_mov_b32 v{F+11}, 0")
    t=V_T+2
    a(f"v_bfe_u32 v{t}, v0, 2, 3"); a(f"v_lshrrev_b32 v{t+1}, 5, v0"); a(f"v_lshl_add_u32 v{t}, v{t+1}, 5, v{t}"); a(f"v_mul_u32_u24 v{t}, {2*KVROW}, v{t}")
    a(f"v_and_b32 v{t+1}, 3, v0"); a(f"v_lshl_add_u32 v{t}, v{t+1}, 3, v{t}")
    a(f"s_lshl_b32 s{S_T0}, s{S_TG}, 7"); a(f"v_add_u32 v{t}, s{S_T0}, v{t}"); a(f"v_add_u32 v{t+1}, {128*KVROW}, v{t}")
    a("s_barrier")
    for tb in range(4):
        F=E_PHI+12*tb
        for i in range(3): a(f"ds_write_b128 v{vw}, {vr(F+4*i,4)} offset:{tb*16*KVROW+80+16*i}")
    u=V_T+4
    a(f"v_and_b32 v{u}, 15, v0"); a(f"v_cmp_gt_u32 vcc, 5, v{u}"); a(f"v_lshrrev_b32 v{u+1}, 4, v0"); a(f"v_mul_u32_u24 v{u+1}, 21, v{u+1}"); a(f"v_add_u32 v{u}, v{u}, v{u+1}"); a(f"v_lshlrev_b32 v{u}, 4, v{u}")
    a(f"s_lshl_b32 s{S_T0}, s{S_RT}, 5"); a(f"s_lshl_b32 s{S_T1}, s{S_CT}, 2"); a(f"s_add_u32 s{S_T0}, s{S_T0}, s{S_T1}"); a(f"s_add_u32 s{S_T0}, s{S_T0}, s{S_TG}")
    a(f"s_mul_i32 s{S_T0}, s{S_T0}, 3360"); a(f"s_add_u32 s{S_T0}, s{S_T0}, {WS_KVP}")
    FR=[64,84]
    for tb in range(4):
        a("s_waitcnt lgkmcnt(0)"); a("s_barrier")
        for h in range(2):
            f=FR[h]; o=tb*16*KVROW
            for db in range(2):
                for rd in range(2): a(f"ds_read_b64_tr_b16 {vr(f+12+4*db+2*rd,2)}, v{t+h} offset:{o+rd*KVROW+80+32*db}")
            for fb in range(3):
                for rd in range(2): a(f"ds_read_b64_tr_b16 {vr(f+4*fb+2*rd,2)}, v{t+h} offset:{o+rd*KVROW+32*fb}")
        for h in range(2):
            f=FR[h]
            a(f"s_waitcnt lgkmcnt({10 if h==0 else 0})")
            for fb in range(3):
                for db in range(2):
                    ac=ACC+4*(2*fb+db)
                    a(f"v_mfma_f32_16x16x32_bf16 {vr(ac,4)}, {vr(f+4*fb,4)}, {vr(f+12+4*db,4)}, {vr(ac,4) if (tb or h) else 0}")
    if st: st(24)
    for db in range(2):
        for fb in range(3):
            if db==1 and fb==0: a("s_mov_b64 exec, vcc")
            if fb==2: a("s_mov_b32 exec_hi, 0")
            a(f"buffer_store_dwordx4 {vr(ACC+4*(2*fb+db),4)}, v{u}, s[{S_WS}:{S_WS+3}], s{S_T0} offen offset:{fb*4*21*16+db*256} sc1")
        a("s_mov_b64 exec, -1")
    a("s_branch KV_DONE")
    a.label("KV_KWAVE")
    if st: st(20)
    for t in range(4): a(f"v_rcp_f32 v{E_AB+2*t+1}, v{RS+2*t+1}")
    F=[E_T, 112, KV_F2]
    for f in F: a(f"v_mov_b32 v{f+10}, 0"); a(f"v_mov_b32 v{f+11}, 0")
    for t in range(4): a(f"v_mul_f32 v{E_AB+2*t}, {LOG2E}, v{E_AB+2*t+1}")
    a("s_waitcnt lgkmcnt(0)")
    a(center_pack(0, F[0], RS))
    a(interleave(phi_mf(0,F[0]), center_pack(1, F[1], RS)))
    a(interleave(phi_mf(1,F[1]), center_pack(2, F[2], RS)))
    a(interleave(phi_mf(2,F[2]), center_pack(3, F[0], RS)))
    T=E_CS
    P=lambda t: [ACC+4*(4*b+t)+e for b in range(5) for e in (0,2)]
    wr=lambda t,D,i0,i1: [f"ds_write_b128 v{vw}, {vr(D+4*i,4)} offset:{t*16*KVROW+16*i}" for i in range(i0,i1)]
    D=[112, E_PHI+0]
    if st: st(21)
    softmax20(a, P(0), +1, T, D[0], E_AB+0, phi_mf(3,F[0]))
    a("s_barrier")
    if st: st(22)
    for t in range(4):
        d=D[t&1]
        if t: softmax20(a, P(t), +1, T, d, E_AB+2*t, wr(t-1,D[(t-1)&1],2,5)+["s_waitcnt lgkmcnt(0)","s_barrier"])
        softmax20(a, P(t), -1, T, d+10, E_AB+2*t, wr(t,d,0,2))
    a(wr(3,D[1],2,5)); a("s_waitcnt lgkmcnt(0)")
    if st: st(1)
    a("s_barrier")
    a.label("KV_DONE")

def epi_kv5(a, RS, st=None, bk=None, bv=None):
    vw=V_T
    a(f"v_and_b32 v{vw}, 15, v0"); a(f"v_mul_u32_u24 v{vw}, {KVROW}, v{vw}"); a(f"v_lshrrev_b32 v{vw+1}, 4, v0"); a(f"v_lshl_add_u32 v{vw}, v{vw+1}, 7, v{vw}")
    a(f"s_mul_i32 s{S_T0}, s{S_TG}, {16*KVROW}"); a(f"v_add_u32 v{vw}, s{S_T0}, v{vw}")
    a(f"s_cmp_eq_u32 s{S_FG}, 0"); a("s_cbranch_scc1 KV_KWAVE")
    a("s_waitcnt lgkmcnt(0)")
    for t in range(4):
        F=[112,124,168,136][t]
        a(center_pack(t, F, RS)); a(f"v_cvt_pk_bf16_f32 v{F+10}, v{RS+2*t+1}, v{RS+2*t+1}"); a(f"v_mov_b32 v{F+11}, 0")
    t=V_T+2
    a(f"v_bfe_u32 v{t}, v0, 2, 3"); a(f"v_lshrrev_b32 v{t+1}, 5, v0"); a(f"v_lshl_add_u32 v{t}, v{t+1}, 3, v{t}"); a(f"v_mul_u32_u24 v{t}, {2*KVROW}, v{t}")
    a(f"v_and_b32 v{t+1}, 3, v0"); a(f"v_lshl_add_u32 v{t}, v{t+1}, 3, v{t}")
    a(f"s_lshl_b32 s{S_T0}, s{S_TG}, 7"); a(f"v_add_u32 v{t}, s{S_T0}, v{t}"); a(f"v_add_u32 v{t+1}, {32*KVROW}, v{t}")
    a("s_barrier")
    VF=[112,124,168,136]
    wv=lambda tb: [f"ds_write_b128 v{vw}, {vr(VF[tb]+4*i,4)} offset:{(tb&1)*64*KVROW+80+16*i}" for i in range(3)]
    a(wv(0)); a(wv(1))
    bv=list(bv or [])
    def takev(n):
        for _ in range(min(n,len(bv))): a(bv.pop(0))
    takev(10)
    u=V_T+4
    a(f"v_and_b32 v{u}, 15, v0"); a(f"v_cmp_gt_u32 vcc, 5, v{u}"); a(f"v_lshrrev_b32 v{u+1}, 4, v0"); a(f"v_mul_u32_u24 v{u+1}, 21, v{u+1}"); a(f"v_add_u32 v{u}, v{u}, v{u+1}"); a(f"v_lshlrev_b32 v{u}, 4, v{u}")
    a(f"s_lshl_b32 s{S_T0}, s{S_RT}, 5"); a(f"s_lshl_b32 s{S_T1}, s{S_CT}, 2"); a(f"s_add_u32 s{S_T0}, s{S_T0}, s{S_T1}"); a(f"s_add_u32 s{S_T0}, s{S_T0}, s{S_TG}")
    a(f"s_mul_i32 s{S_T0}, s{S_T0}, 3360"); a(f"s_add_u32 s{S_T0}, s{S_T0}, {WS_KVP}")
    FR=[64,84]
    for tb in range(4):
        a("s_waitcnt lgkmcnt(0)"); a("s_barrier")
        if tb in (1,2): a(wv(tb+1))
        for h in range(2):
            f=FR[h]; o=(tb&1)*64*KVROW
            for db in range(2):
                for rd in range(2): a(f"ds_read_b64_tr_b16 {vr(f+12+4*db+2*rd,2)}, v{t+h} offset:{o+rd*KVROW+80+32*db}")
            for fb in range(3):
                for rd in range(2): a(f"ds_read_b64_tr_b16 {vr(f+4*fb+2*rd,2)}, v{t+h} offset:{o+rd*KVROW+32*fb}")
        for h in range(2):
            f=FR[h]
            a(f"s_waitcnt lgkmcnt({10 if h==0 else 0})")
            for fb in range(3):
                for db in range(2):
                    ac=ACC+4*(2*fb+db)
                    a(f"v_mfma_f32_16x16x32_bf16 {vr(ac,4)}, {vr(f+4*fb,4)}, {vr(f+12+4*db,4)}, {vr(ac,4) if (tb or h) else 0}")
        if tb<3: takev(5)
    takev(99)
    if st: st(24)
    for db in range(2):
        for fb in range(3):
            if db==1 and fb==0: a("s_mov_b64 exec, vcc")
            if fb==2: a("s_mov_b32 exec_hi, 0")
            a(f"buffer_store_dwordx4 {vr(ACC+4*(2*fb+db),4)}, v{u}, s[{S_WS}:{S_WS+3}], s{S_T0} offen offset:{fb*4*21*16+db*256} sc1")
        a("s_mov_b64 exec, -1")
    a("s_branch KV_DONE")
    a.label("KV_KWAVE")
    if st: st(20)
    for t in range(4): a(f"v_rcp_f32 v{E_AB+2*t+1}, v{RS+2*t+1}")
    F=[E_T, 112, KV_F2]
    for f in F: a(f"v_mov_b32 v{f+10}, 0"); a(f"v_mov_b32 v{f+11}, 0")
    for t in range(4): a(f"v_mul_f32 v{E_AB+2*t}, {LOG2E}, v{E_AB+2*t+1}")
    a("s_waitcnt lgkmcnt(0)")
    a(center_pack(0, F[0], RS))
    a(interleave(phi_mf(0,F[0]), center_pack(1, F[1], RS)))
    a(interleave(phi_mf(1,F[1]), center_pack(2, F[2], RS)))
    a(interleave(phi_mf(2,F[2]), center_pack(3, F[0], RS)))
    T=E_CS
    P=lambda t: [ACC+4*(4*b+t)+e for b in range(5) for e in (0,2)]
    Q=[[112,116,120,124,128],[168,172,176,180,132]]
    D=[[q+e for q in qq for e in range(4)] for qq in Q]
    wr=lambda t,i0,i1: [f"ds_write_b128 v{vw}, {vr(Q[t&1][i],4)} offset:{(t&1)*64*KVROW+16*i}" for i in range(i0,i1)]
    bk=list(bk or [])
    def takek(n):
        r=bk[:n]; del bk[:n]; return r
    if st: st(21)
    softmax20(a, P(0), +1, T, D[0][:10], E_AB+0, phi_mf(3,F[0]))
    a("s_barrier")
    if st: st(22)
    for t in range(4):
        d=D[t&1]
        if t: softmax20(a, P(t), +1, T, d[:10], E_AB+2*t, wr(t-1,2,5)+["s_waitcnt lgkmcnt(0)","s_barrier"]+takek(4))
        softmax20(a, P(t), -1, T, d[10:], E_AB+2*t, wr(t,0,2)+takek(4 if t<3 else 99))
    a(wr(3,2,5)); a("s_waitcnt lgkmcnt(0)")
    if st: st(1)
    a("s_barrier")
    a.label("KV_DONE")
```

```python
from p1 import *
from p1e import *
S_DBG=4
S_OUT=16
S_B=12
S_CNT=81
SPIN_MAX=200000
SLEEP=[1]

def nonce_write(a):
    a(f"s_or_b32 s{S_T0}, s2, s{S_WAVE}"); a(f"s_cmp_eq_u32 s{S_T0}, 0"); a("s_cbranch_scc0 NONCE_SKIP")
    a(f"s_memrealtime s[{S_SAVE}:{S_SAVE+1}]"); a("s_waitcnt lgkmcnt(0)")
    a(f"s_lshl_b64 s[{S_SAVE}:{S_SAVE+1}], s[{S_SAVE}:{S_SAVE+1}], 3"); a(f"s_or_b32 s{S_SAVE}, s{S_SAVE}, 4")
    a(f"v_mov_b32 v{V_T}, s{S_SAVE}"); a(f"v_mov_b32 v{V_T+1}, s{S_SAVE+1}"); a(f"v_mov_b32 v{V_T+2}, 0")
    a("s_mov_b64 exec, 1")
    a(f"buffer_store_dwordx2 {vr(V_T,2)}, v{V_T+2}, s[{S_DBG}:{S_DBG+3}], 0 offen sc1")
    a("s_mov_b64 exec, -1")
    a.label("NONCE_SKIP")
def nonce_issue(R):
    return [f"v_mov_b32 v{R}, 0", f"buffer_load_dwordx2 {vr(R,2)}, v{R}, s[{S_DBG}:{S_DBG+3}], 0 offen sc1"]
def nonce_take(a, R, lab):
    a(f"v_readfirstlane_b32 s{S_TAG}, v{R}"); a(f"v_readfirstlane_b32 s{S_TAG+1}, v{R+1}")
    a(f"s_cmp_lg_u32 s{S_TAG}, 0"); a(f"s_cbranch_scc1 {lab}_OK")
    a(f"s_mov_b32 s{S_CNT}, 0")
    a.label(f"{lab}_SP")
    a("s_sleep 2"); a(nonce_issue(R)); a("s_waitcnt vmcnt(0)")
    a(f"v_readfirstlane_b32 s{S_TAG}, v{R}"); a(f"v_readfirstlane_b32 s{S_TAG+1}, v{R+1}")
    a(f"s_add_u32 s{S_CNT}, s{S_CNT}, 1"); a(f"s_cmp_ge_u32 s{S_CNT}, {SPIN_MAX}"); a(f"s_cbranch_scc1 {lab}_OK")
    a(f"s_cmp_eq_u32 s{S_TAG}, 0"); a(f"s_cbranch_scc1 {lab}_SP")
    a.label(f"{lab}_OK")
def publish(a, phase, T):
    a(f"s_add_u32 s{S_T0}, s{S_TAG}, {phase}"); a(f"v_mov_b32 v{T}, s{S_T0}"); a(f"v_mov_b32 v{T+1}, s{S_TAG+1}"); a(f"v_mov_b32 v{T+2}, 0")
    a(f"s_lshl_b32 s{S_T0}, s2, 7")
    a("s_mov_b64 exec, 1")
    a(f"buffer_store_dwordx2 {vr(T,2)}, v{T+2}, s[{S_WS}:{S_WS+3}], s{S_T0} offen sc1")
    a("s_mov_b64 exec, -1")
def pub_prep(a, phase, T):
    a(f"s_add_u32 s{S_T0}, s{S_TAG}, {phase}"); a(f"v_mov_b32 v{T}, s{S_T0}"); a(f"v_mov_b32 v{T+1}, s{S_TAG+1}"); a(f"s_lshl_b32 s{S_T0}, s2, 7"); a(f"v_mov_b32 v{T+2}, s{S_T0}")
def pub_fire(a, T, w, lab, more=None):
    a(f"s_cmp_eq_u32 s{S_WAVE}, {w}"); a("s_barrier"); a(f"s_cbranch_scc0 {lab}")
    a("s_mov_b64 exec, 1")
    a(f"buffer_store_dwordx2 {vr(T,2)}, v{T+2}, s[{S_WS}:{S_WS+3}], 0 offen sc1")
    a("s_mov_b64 exec, -1")
    if more: more()
    a.label(lab); a("s_barrier")
def poll_issue(VA, R):
    return [f"buffer_load_dwordx2 {vr(R,2)}, v{VA}, s[{S_WS}:{S_WS+3}], 0 offen sc1"]
def poll_test(a, R, T, need):
    a(f"v_subrev_u32 v{T}, s{S_TAG}, v{R}"); a(f"v_subrev_u32 v{T}, {need}, v{T}"); a(f"v_xor_b32 v{T+1}, s{S_TAG+1}, v{R+1}")
    a(f"v_cmp_ne_u32 s[{S_SAVE}:{S_SAVE+1}], 0, v{T+1}"); a(f"v_cmp_lt_u32 vcc, {3-need}, v{T}"); a(f"s_or_b64 vcc, vcc, s[{S_SAVE}:{S_SAVE+1}]")
def poll_wait(a, VA, R, T, need, lab, first_landed):
    if first_landed:
        poll_test(a, R, T, need); a(f"s_cbranch_vccz {lab}_OK")
    a(f"s_mov_b32 s{S_CNT}, 0")
    a.label(f"{lab}_SP")
    a(poll_issue(VA, R)); a("s_waitcnt vmcnt(0)")
    poll_test(a, R, T, need)
    a(f"s_add_u32 s{S_CNT}, s{S_CNT}, 1"); a(f"s_cmp_ge_u32 s{S_CNT}, {SPIN_MAX}"); a(f"s_cbranch_scc1 {lab}_OK")
    a(f"s_cbranch_vccz {lab}_OK"); a(f"s_sleep {SLEEP[0]}"); a(f"s_branch {lab}_SP")
    a.label(f"{lab}_OK")
def fa_stats(VA, T):
    return [f"s_and_b32 s{S_T0}, s{S_RT}, 3", f"s_lshl_b32 s{S_T0}, s{S_T0}, 1", f"s_lshr_b32 s{S_T1}, s{S_RT}, 2", f"s_add_u32 s{S_T0}, s{S_T0}, s{S_T1}",
            f"v_lshlrev_b32 v{VA}, 3, v0", f"v_add_u32 v{VA}, s{S_T0}, v{VA}", f"s_andn2_b32 s{S_T0}, s2, 25", f"v_and_b32 v{T}, 3, v0", f"v_lshlrev_b32 v{T}, 3, v{T}", f"v_bfe_u32 v{T+1}, v0, 2, 1", f"v_or3_b32 v{T}, s{S_T0}, v{T}, v{T+1}",
            f"v_cmp_gt_u32 vcc, 32, v0", f"v_cndmask_b32 v{VA}, v{T}, v{VA}, vcc", f"v_lshlrev_b32 v{VA}, 7, v{VA}"]
def fa_spare(VA, T):
    return [f"v_and_b32 v{VA}, 3, v0", f"v_bfe_u32 v{T}, v0, 2, 2", f"v_lshl_add_u32 v{VA}, v{T}, 3, v{VA}", f"v_add_u32 v{VA}, {28*8+4}, v{VA}", f"v_lshlrev_b32 v{VA}, 7, v{VA}"]
def fa_qkv(VA, T):
    return [f"s_lshr_b32 s{S_T0}, s2, 5", f"s_and_b32 s{S_T1}, s{S_T0}, 1", f"s_add_u32 s{S_T1}, s{S_T1}, 1", f"s_lshl_b32 s{S_T1}, s{S_T1}, 5", f"s_andn2_b32 s{S_T0}, s{S_T0}, 1", f"s_add_u32 s{S_T1}, s{S_T1}, s{S_T0}",
            f"v_and_b32 v{VA}, 3, v0", f"v_bfe_u32 v{T}, v0, 2, 1", f"v_lshl_add_u32 v{VA}, v{VA}, 3, v{T}", f"v_add_u32 v{VA}, s{S_T1}, v{VA}",
            f"s_and_b32 s{S_T1}, s2, 3", f"s_lshl_b32 s{S_T1}, s{S_T1}, 3", f"s_add_u32 s{S_T0}, s{S_T0}, s{S_T1}", f"s_bfe_u32 s{S_T1}, s2, 0x10002", f"s_add_u32 s{S_T0}, s{S_T0}, s{S_T1}",
            f"v_mov_b32 v{T}, s{S_T0}", f"v_and_b32 v{T+1}, 8, v0", f"v_cmp_eq_u32 vcc, 0, v{T+1}", f"v_cndmask_b32 v{VA}, v{T}, v{VA}, vcc", f"v_lshlrev_b32 v{VA}, 7, v{VA}"]
def fa_gemm2(VA, T):
    return [f"v_min_u32 v{T}, 2, v0", f"s_mul_i32 s{S_T0}, s{S_WAVE}, 3", f"v_add_u32 v{T}, s{S_T0}, v{T}",
            f"v_cmp_le_u32 vcc, 14, v{T}", f"v_addc_co_u32 v{T+1}, vcc, 0, v{T}, vcc",
            f"v_mul_u32_u24 v{VA}, 52, v{T+1}", f"v_lshrrev_b32 v{VA}, 8, v{VA}",
            f"v_mul_u32_u24 v{T}, 5, v{VA}", f"v_sub_u32 v{T}, v{T+1}, v{T}", f"v_add_u32 v{T}, 3, v{T}",
            f"v_lshlrev_b32 v{T}, 5, v{T}", f"v_lshl_add_u32 v{VA}, v{VA}, 1, v{T}",
            f"s_and_b32 s{S_T0}, s2, 3", f"s_lshl_b32 s{S_T0}, s{S_T0}, 3", f"s_bfe_u32 s{S_T1}, s2, 0x10002", f"s_add_u32 s{S_T0}, s{S_T0}, s{S_T1}", f"v_add_u32 v{VA}, s{S_T0}, v{VA}",
            f"v_and_b32 v{T}, 31, v0", f"v_lshlrev_b32 v{T}, 3, v{T}", f"s_and_b32 s{S_T0}, s2, 7", f"v_add_u32 v{T}, s{S_T0}, v{T}",
            f"s_cmp_ge_u32 s{S_WAVE}, 6", f"s_cselect_b64 vcc, -1, 0", f"v_cndmask_b32 v{VA}, v{VA}, v{T}, vcc", f"v_lshlrev_b32 v{VA}, 7, v{VA}"]

def relayout2(a, mid):
    t=V_T; VD=32; VR=40; VS=50; F=64
    SK=S_CT; SO=S_CTG
    a(f"s_and_b32 s{SK}, s2, 3"); a(f"s_lshl_b32 s{SK}, s{SK}, 2"); a(f"s_bfe_u32 s{S_T0}, s2, 0x20003"); a(f"s_add_u32 s{SK}, s{SK}, s{S_T0}")
    a(f"s_and_b32 s{S_T0}, s{S_WAVE}, 1"); a(f"s_lshl_b32 s{S_T0}, s{S_T0}, 2")
    for i in range(5):
        a(f"v_add_u32 v{t}, {64*i}, v0"); a(f"v_mul_u32_u24 v{t+1}, 205, v{t}"); a(f"v_lshrrev_b32 v{t+1}, 14, v{t+1}")
        a(f"v_mul_u32_u24 v{t+2}, 80, v{t+1}"); a(f"v_sub_u32 v{t}, v{t}, v{t+2}")
        a(f"v_add_u32 v{t+2}, s{S_T0}, v{t+1}"); a(f"v_lshlrev_b32 v{t+2}, 1, v{t+2}"); a(f"v_xor_b32 v{t}, v{t}, v{t+2}")
        a(f"v_mul_u32_u24 v{t+1}, 1280, v{t+1}"); a(f"v_lshl_add_u32 v{VD+i}, v{t}, 4, v{t+1}")
    a(f"s_mul_i32 s{S_M0W}, s{S_WAVE}, 5120")
    def dma(m, buf):
        lab=f"RL{m}"
        a(f"s_add_u32 s{S_T0}, s{SK}, {16*m}")
        a(f"s_bfe_u32 s{S_T1}, s{S_WAVE}, 0x10001"); a(f"s_and_b32 s{S_T2}, s{S_WAVE}, 1"); a(f"s_lshr_b32 s{S_T3}, s{S_WAVE}, 2")
        a(f"s_cmp_ge_u32 s{S_T0}, 54"); a(f"s_cbranch_scc1 {lab}_WO")
        srd(a, S_B, P(7), 1728*1280)
        a(f"s_mul_i32 s{S_ROW}, s{S_T0}, 86"); a(f"s_lshr_b32 s{S_ROW}, s{S_ROW}, 8"); a(f"s_mul_i32 s{S_ROW}, s{S_ROW}, 3"); a(f"s_sub_u32 s{S_ROW}, s{S_T0}, s{S_ROW}")
        a(f"s_cmp_eq_u32 s{S_ROW}, 1"); a(f"s_cselect_b32 s{S_ROW}, 4, 3"); a(f"s_lshl_b32 s{S_T1}, s{S_T1}, s{S_ROW}")
        a(f"s_cmp_eq_u32 s{S_ROW}, 4"); a(f"s_cselect_b32 s{S_ROW}, 3, 4"); a(f"s_lshl_b32 s{S_T3}, s{S_T3}, s{S_ROW}")
        a(f"s_lshl_b32 s{S_T2}, s{S_T2}, 2"); a(f"s_lshl_b32 s{SO}, s{S_T0}, 5")
        a(f"s_branch {lab}_GO")
        a.label(f"{lab}_WO")
        srd(a, S_B, P(3), 640*1280)
        a(f"s_sub_u32 s{S_T0}, s{S_T0}, 54"); a(f"s_mul_i32 s{S_ROW}, s{S_T0}, 52"); a(f"s_lshr_b32 s{S_ROW}, s{S_ROW}, 8")
        a(f"s_mul_i32 s{SO}, s{S_ROW}, 160"); a(f"s_mul_i32 s{S_ROW}, s{S_ROW}, 5"); a(f"s_sub_u32 s{S_T0}, s{S_T0}, s{S_ROW}")
        a(f"s_cmp_eq_u32 s{S_T0}, 4"); a(f"s_cbranch_scc1 {lab}_LO")
        a(f"s_mul_i32 s{S_T0}, s{S_T0}, 40"); a(f"s_add_u32 s{SO}, s{SO}, s{S_T0}")
        a(f"s_mul_i32 s{S_T1}, s{S_T1}, 20"); a(f"s_lshl_b32 s{S_T2}, s{S_T2}, 2"); a(f"s_lshl_b32 s{S_T3}, s{S_T3}, 3")
        a(f"s_branch {lab}_GO")
        a.label(f"{lab}_LO")
        a(f"s_add_u32 s{SO}, s{SO}, 16"); a(f"s_xor_b32 s{S_T3}, s{S_T3}, s{S_T2}"); a(f"s_mul_i32 s{S_T3}, s{S_T3}, 20")
        a(f"s_mul_i32 s{S_T1}, s{S_T1}, 80"); a(f"s_mul_i32 s{S_T2}, s{S_T2}, 40")
        a.label(f"{lab}_GO")
        a(f"s_add_u32 s{SO}, s{SO}, s{S_T1}"); a(f"s_add_u32 s{SO}, s{SO}, s{S_T2}"); a(f"s_add_u32 s{SO}, s{SO}, s{S_T3}"); a(f"s_mul_i32 s{SO}, s{SO}, 1280")
        for i in range(5):
            a(f"s_add_u32 m0, s{S_M0W}, {buf*40960+1024*i}"); a(f"buffer_load_dwordx4 v{VD+i}, s[{S_B}:{S_B+3}], s{SO} offen lds")
    for m in range(4): dma(m, m)
    a(f"s_mov_b32 s{S_ROW}, s{S_PHI}"); mid()
    a(f"v_lshrrev_b32 v{t}, 2, v0"); a(f"v_and_b32 v{t+1}, 7, v{t}"); a(f"v_mul_u32_u24 v{t}, 1280, v{t}"); a(f"v_and_b32 v{t+2}, 3, v0"); a(f"v_lshl_add_u32 v{t}, v{t+2}, 3, v{t}")
    for nb in range(5):
        a(f"s_mul_i32 s{S_T0}, s{S_WAVE}, 5"); a(f"s_add_u32 s{S_T0}, s{S_T0}, {nb}"); a(f"s_and_b32 s{S_T1}, s{S_T0}, 7"); a(f"s_lshr_b32 s{S_T0}, s{S_T0}, 3"); a(f"s_lshl_b32 s{S_T0}, s{S_T0}, 8")
        a(f"v_xor_b32 v{t+2}, s{S_T1}, v{t+1}"); a(f"v_lshl_add_u32 v{t+2}, v{t+2}, 5, v{t}"); a(f"v_add_u32 v{VR+nb}, s{S_T0}, v{t+2}"); a(f"v_add_u32 v{VR+5+nb}, 81920, v{VR+nb}")
    a(f"v_lshlrev_b32 v{VS}, 4, v0"); a(f"v_add_u32 v{VS+1}, 4096, v{VS}")
    a(f"s_mul_i32 s{S_WOFF}, s{S_WAVE}, 74"); a(f"s_add_u32 s{S_WOFF}, s{S_WOFF}, s{SK}"); a(f"s_mul_i32 s{S_WOFF}, s{S_WOFF}, 5120"); a(f"s_add_u32 s{S_WOFF}, s{S_WOFF}, {WS_WT}")
    def conv(m, buf, nwait):
        a(f"s_waitcnt vmcnt({nwait})"); a("s_barrier")
        f=F+20*(m%2)
        for nb in range(5):
            for rd in range(2): a(f"ds_read_b64_tr_b16 {vr(f+4*nb+2*rd,2)}, v{VR+nb+(5 if buf>=2 else 0)} offset:{(buf%2)*40960+rd*20480}")
        a("s_waitcnt lgkmcnt(0)")
        for nb in range(5): a(f"buffer_store_dwordx4 {vr(f+4*nb,4)}, v{VS+(nb==4)}, s[{S_WS}:{S_WS+3}], s{S_WOFF} offen offset:{1024*nb if nb<4 else 0} sc1")
        a(f"s_add_u32 s{S_WOFF}, s{S_WOFF}, {16*5120}")
    conv(0,0,18)
    conv(1,1,18)
    a(f"s_cmp_lt_u32 s{SK}, 10"); a("s_cbranch_scc0 RL_NO5")
    dma(4, 0)
    a.label("RL_NO5")
    conv(2,2,18)
    conv(3,3,18)
    a(f"s_cmp_lt_u32 s{SK}, 10"); a("s_cbranch_scc0 RL_DONE")
    conv(4,0,10)
    a.label("RL_DONE")

def relayout3(a, mid, early):
    t=V_T; VD=32; VR=40; VS=50; F=64
    SK=S_CT; SO=S_CTG
    a(f"s_and_b32 s{SK}, s2, 3"); a(f"s_lshl_b32 s{SK}, s{SK}, 2"); a(f"s_bfe_u32 s{S_T0}, s2, 0x20003"); a(f"s_add_u32 s{SK}, s{SK}, s{S_T0}")
    a(f"s_and_b32 s{S_T0}, s{S_WAVE}, 1"); a(f"s_lshl_b32 s{S_T0}, s{S_T0}, 2")
    for i in range(5):
        a(f"v_add_u32 v{t}, {64*i}, v0"); a(f"v_mul_u32_u24 v{t+1}, 205, v{t}"); a(f"v_lshrrev_b32 v{t+1}, 14, v{t+1}")
        a(f"v_mul_u32_u24 v{t+2}, 80, v{t+1}"); a(f"v_sub_u32 v{t}, v{t}, v{t+2}")
        a(f"v_add_u32 v{t+2}, s{S_T0}, v{t+1}"); a(f"v_lshlrev_b32 v{t+2}, 1, v{t+2}"); a(f"v_xor_b32 v{t}, v{t}, v{t+2}")
        a(f"v_mul_u32_u24 v{t+1}, 1280, v{t+1}"); a(f"v_lshl_add_u32 v{VD+i}, v{t}, 4, v{t+1}")
    a(f"s_mul_i32 s{S_M0W}, s{S_WAVE}, 5120")
    def ksof(m, d):
        if m<2:
            a(f"s_add_u32 s{d}, s{SK}, {16*m}"); a(f"s_lshr_b32 s{S_T1}, s{d}, 2"); a(f"s_and_b32 s{d}, s{d}, 3")
            a(f"s_mul_i32 s{S_T2}, s{S_T1}, 7"); a(f"s_cmp_eq_u32 s{S_T1}, 7"); a(f"s_cselect_b32 s{S_T2}, 48, s{S_T2}"); a(f"s_add_u32 s{d}, s{d}, s{S_T2}")
        else:
            a(f"s_add_u32 s{d}, s{SK}, {16*(m-2)}")
            a(f"s_mul_i32 s{S_T1}, s{d}, 86"); a(f"s_lshr_b32 s{S_T1}, s{S_T1}, 8"); a(f"s_lshl_b32 s{S_T1}, s{S_T1}, 2"); a(f"s_add_u32 s{S_T1}, s{S_T1}, 4")
            a(f"s_cmp_ge_u32 s{d}, 20"); a(f"s_cselect_b32 s{S_T1}, 32, s{S_T1}")
            a(f"s_add_u32 s{d}, s{d}, s{S_T1}")
    def dma(m, buf):
        lab=f"RL{m}"
        ksof(m, S_T0)
        a(f"s_bfe_u32 s{S_T1}, s{S_WAVE}, 0x10001"); a(f"s_and_b32 s{S_T2}, s{S_WAVE}, 1"); a(f"s_lshr_b32 s{S_T3}, s{S_WAVE}, 2")
        a(f"s_cmp_ge_u32 s{S_T0}, 54"); a(f"s_cbranch_scc1 {lab}_WO")
        srd(a, S_B, P(7), 1728*1280)
        a(f"s_mul_i32 s{S_ROW}, s{S_T0}, 86"); a(f"s_lshr_b32 s{S_ROW}, s{S_ROW}, 8"); a(f"s_mul_i32 s{S_ROW}, s{S_ROW}, 3"); a(f"s_sub_u32 s{S_ROW}, s{S_T0}, s{S_ROW}")
        a(f"s_cmp_eq_u32 s{S_ROW}, 1"); a(f"s_cselect_b32 s{S_ROW}, 4, 3"); a(f"s_lshl_b32 s{S_T1}, s{S_T1}, s{S_ROW}")
        a(f"s_cmp_eq_u32 s{S_ROW}, 4"); a(f"s_cselect_b32 s{S_ROW}, 3, 4"); a(f"s_lshl_b32 s{S_T3}, s{S_T3}, s{S_ROW}")
        a(f"s_lshl_b32 s{S_T2}, s{S_T2}, 2"); a(f"s_lshl_b32 s{SO}, s{S_T0}, 5")
        a(f"s_branch {lab}_GO")
        a.label(f"{lab}_WO")
        srd(a, S_B, P(3), 640*1280)
        a(f"s_sub_u32 s{S_T0}, s{S_T0}, 54"); a(f"s_mul_i32 s{S_ROW}, s{S_T0}, 52"); a(f"s_lshr_b32 s{S_ROW}, s{S_ROW}, 8")
        a(f"s_mul_i32 s{SO}, s{S_ROW}, 160"); a(f"s_mul_i32 s{S_ROW}, s{S_ROW}, 5"); a(f"s_sub_u32 s{S_T0}, s{S_T0}, s{S_ROW}")
        a(f"s_cmp_eq_u32 s{S_T0}, 4"); a(f"s_cbranch_scc1 {lab}_LO")
        a(f"s_mul_i32 s{S_T0}, s{S_T0}, 40"); a(f"s_add_u32 s{SO}, s{SO}, s{S_T0}")
        a(f"s_mul_i32 s{S_T1}, s{S_T1}, 20"); a(f"s_lshl_b32 s{S_T2}, s{S_T2}, 2"); a(f"s_lshl_b32 s{S_T3}, s{S_T3}, 3")
        a(f"s_branch {lab}_GO")
        a.label(f"{lab}_LO")
        a(f"s_add_u32 s{SO}, s{SO}, 16"); a(f"s_xor_b32 s{S_T3}, s{S_T3}, s{S_T2}"); a(f"s_mul_i32 s{S_T3}, s{S_T3}, 20")
        a(f"s_mul_i32 s{S_T1}, s{S_T1}, 80"); a(f"s_mul_i32 s{S_T2}, s{S_T2}, 40")
        a.label(f"{lab}_GO")
        a(f"s_add_u32 s{SO}, s{SO}, s{S_T1}"); a(f"s_add_u32 s{SO}, s{SO}, s{S_T2}"); a(f"s_add_u32 s{SO}, s{SO}, s{S_T3}"); a(f"s_mul_i32 s{SO}, s{SO}, 1280")
        for i in range(5):
            a(f"s_add_u32 m0, s{S_M0W}, {buf*40960+1024*i}"); a(f"buffer_load_dwordx4 v{VD+i}, s[{S_B}:{S_B+3}], s{SO} offen lds")
    for m in range(4): dma(m, m)
    a(f"s_mov_b32 s{S_ROW}, s{S_PHI}"); nmid=mid()
    a(f"v_lshrrev_b32 v{t}, 2, v0"); a(f"v_and_b32 v{t+1}, 7, v{t}"); a(f"v_mul_u32_u24 v{t}, 1280, v{t}"); a(f"v_and_b32 v{t+2}, 3, v0"); a(f"v_lshl_add_u32 v{t}, v{t+2}, 3, v{t}")
    for nb in range(5):
        a(f"s_mul_i32 s{S_T0}, s{S_WAVE}, 5"); a(f"s_add_u32 s{S_T0}, s{S_T0}, {nb}"); a(f"s_and_b32 s{S_T1}, s{S_T0}, 7"); a(f"s_lshr_b32 s{S_T0}, s{S_T0}, 3"); a(f"s_lshl_b32 s{S_T0}, s{S_T0}, 8")
        a(f"v_xor_b32 v{t+2}, s{S_T1}, v{t+1}"); a(f"v_lshl_add_u32 v{t+2}, v{t+2}, 5, v{t}"); a(f"v_add_u32 v{VR+nb}, s{S_T0}, v{t+2}"); a(f"v_add_u32 v{VR+5+nb}, 81920, v{VR+nb}")
    a(f"v_lshlrev_b32 v{VS}, 4, v0"); a(f"v_add_u32 v{VS+1}, 4096, v{VS}")
    def conv(m, buf, nwait, after=None):
        ksof(m, S_WOFF); a(f"s_mul_i32 s{S_T1}, s{S_WAVE}, 74"); a(f"s_add_u32 s{S_WOFF}, s{S_WOFF}, s{S_T1}"); a(f"s_mul_i32 s{S_WOFF}, s{S_WOFF}, 5120"); a(f"s_add_u32 s{S_WOFF}, s{S_WOFF}, {WS_WT}")
        a(f"s_waitcnt vmcnt({nwait})"); a("s_barrier")
        if after: after()
        f=F+20*(m%2)
        for nb in range(5):
            for rd in range(2): a(f"ds_read_b64_tr_b16 {vr(f+4*nb+2*rd,2)}, v{VR+nb+(5 if buf>=2 else 0)} offset:{(buf%2)*40960+rd*20480}")
        a("s_waitcnt lgkmcnt(0)")
        for nb in range(5): a(f"buffer_store_dwordx4 {vr(f+4*nb,4)}, v{VS+(nb==4)}, s[{S_WS}:{S_WS+3}], s{S_WOFF} offen offset:{1024*nb if nb<4 else 0} sc1")
    conv(0,0,15+nmid)
    conv(1,1,15+nmid)
    def aft():
        early()
        a(f"s_cmp_lt_u32 s{SK}, 10"); a("s_cbranch_scc0 RL_NO5")
        dma(4, 0)
        a.label("RL_NO5")
    conv(2,2,0,aft)
    conv(3,3,63)
    a(f"s_cmp_lt_u32 s{SK}, 10"); a("s_cbranch_scc0 RL_DONE")
    conv(4,0,10)
    a.label("RL_DONE")

def o_issue(a, RP, RQ, flags="sc1"):
    t=V_T
    a(f"s_lshr_b32 s{S_T0}, s2, 3")
    a(f"s_mul_i32 s{S_T1}, s{S_T0}, 81920"); a(f"s_add_u32 s{S_T1}, s{S_T1}, {WS_PQ}")
    a(f"s_and_b32 s{S_T2}, s2, 7"); a(f"s_lshl_b32 s{S_T2}, s{S_T2}, 3"); a(f"s_add_u32 s{S_T2}, s{S_T2}, s{S_WAVE}"); a(f"s_lshl_b32 s{S_T2}, s{S_T2}, 8")
    a(f"s_add_u32 s{S_T3}, s{S_T1}, s{S_T2}"); a(f"s_add_u32 s{S_T3}, s{S_T3}, 65536")
    a(f"s_lshl_b32 s{S_T2}, s{S_T2}, 1"); a(f"s_add_u32 s{S_T1}, s{S_T1}, s{S_T2}"); a(f"s_add_u32 s{S_T2}, s{S_T1}, 32768")
    a(f"v_and_b32 v{t}, 31, v0"); a(f"v_lshlrev_b32 v{t+1}, 3, v{t}"); a(f"v_lshlrev_b32 v{t}, 4, v{t}")
    a(f"buffer_load_dwordx4 {vr(RQ,4)}, v{t}, s[{S_WS}:{S_WS+3}], s{S_T1} offen {flags}")
    a(f"buffer_load_dwordx4 {vr(RQ+4,4)}, v{t}, s[{S_WS}:{S_WS+3}], s{S_T2} offen {flags}")
    a(f"buffer_load_dwordx2 {vr(RQ+8,2)}, v{t+1}, s[{S_WS}:{S_WS+3}], s{S_T3} offen {flags}")
    a(f"v_and_b32 v{t}, 31, v0"); a(f"s_mul_i32 s{S_T1}, s{S_WAVE}, 28"); a(f"v_add_u32 v{t+2}, s{S_T1}, v{t}"); a(f"v_min_u32 v{t+2}, 209, v{t+2}")
    a(f"v_lshrrev_b32 v{t+1}, 5, v0"); a(f"v_mul_u32_u24 v{t+1}, {4*32*3360}, v{t+1}"); a(f"v_lshl_add_u32 v{t}, v{t+2}, 4, v{t+1}")
    a(f"s_mul_i32 s{S_T0}, s{S_T0}, 3360"); a(f"s_add_u32 s{S_T0}, s{S_T0}, {WS_KVP}")
    for r in range(4):
        a(f"buffer_load_dwordx4 {vr(RP+4*r,4)}, v{t}, s[{S_WS}:{S_WS+3}], s{S_T0} offen {flags}")
        if r<3: a(f"s_add_u32 s{S_T0}, s{S_T0}, {32*3360}")
def o_kvz(a, RP, LB):
    t=V_T
    for e in (0,2):
        a(pk("v_pk_add_f32", RP+e, [RP+e, RP+4+e], "pp")); a(pk("v_pk_add_f32", RP+8+e, [RP+8+e, RP+12+e], "pp"))
    for e in (0,2): a(pk("v_pk_add_f32", RP+e, [RP+e, RP+8+e], "pp"))
    for e in range(4): a(f"v_mov_b32 v{RP+4+e}, v{RP+e}")
    for e in range(4): a(f"v_permlane32_swap_b32 v{RP+e}, v{RP+4+e}")
    for e in (0,2): a(pk("v_pk_add_f32", RP+e, [RP+e, RP+4+e], "pp"))
    a(f"v_cvt_pk_bf16_f32 v{RP+4}, v{RP}, v{RP+1}"); a(f"v_cvt_pk_bf16_f32 v{RP+5}, v{RP+2}, v{RP+3}")
    a(f"v_mov_b32 v{RP+6}, 0"); a(f"v_mov_b32 v{RP+7}, 0")
    a(f"v_and_b32 v{t}, 31, v0"); a(f"s_mul_i32 s{S_T1}, s{S_WAVE}, 28"); a(f"v_add_u32 v{t}, s{S_T1}, v{t}"); a(f"v_min_u32 v{t}, 209, v{t}")
    a(f"v_mul_u32_u24 v{t+1}, 3121, v{t}"); a(f"v_lshrrev_b32 v{t+1}, 16, v{t+1}")
    a(f"v_mul_u32_u24 v{t+2}, 21, v{t+1}"); a(f"v_sub_u32 v{t+2}, v{t}, v{t+2}")
    a(f"v_cmp_le_u32 vcc, 5, v{t+1}"); a(f"v_cndmask_b32 v{t+3}, 0, 1, vcc")
    a(f"v_mul_u32_u24 v{t+4}, 5, v{t+3}"); a(f"v_sub_u32 v{t+1}, v{t+1}, v{t+4}")
    a(f"v_cmp_eq_u32 vcc, 20, v{t+2}"); a(f"v_cndmask_b32 v{t+4}, 0, 4, vcc"); a(f"v_lshrrev_b32 v{t+5}, 5, v0"); a(f"v_mad_u32_u24 v{t+2}, v{t+4}, v{t+5}, v{t+2}")
    a(f"v_lshl_add_u32 v{t+3}, v{t+3}, 5, v{t+2}"); a(f"v_lshlrev_b32 v{t+3}, 4, v{t+3}")
    a(f"v_lshrrev_b32 v{t+4}, 1, v{t+1}"); a(f"v_lshl_add_u32 v{t+3}, v{t+4}, 10, v{t+3}")
    a(f"v_and_b32 v{t+4}, 1, v{t+1}"); a(f"v_lshl_add_u32 v{t+3}, v{t+4}, 3, v{t+3}"); a(f"v_add_u32 v{t+3}, {LB}, v{t+3}")
    a(f"ds_write_b64 v{t+3}, {vr(RP+4,2)}")
    a(f"v_cmp_eq_u32 vcc, 4, v{t+1}"); a(f"s_mov_b64 exec, vcc")
    a(f"ds_write_b64 v{t+3}, {vr(RP+6,2)} offset:8")
    a("s_mov_b64 exec, -1")
def o_softmax(a, RQ, T, F):
    t=V_T
    a(f"v_lshrrev_b32 v{t}, 5, v0"); a(f"v_mul_u32_u24 v{t}, 0x8000, v{t}"); a(f"v_lshl_add_u32 v{t}, v{t}, 16, v{t}")
    for k in range(10): a(f"v_xor_b32 v{RQ+k}, v{RQ+k}, v{t}")
    for k in range(10): a(f"v_lshlrev_b32 v{T+2*k}, 16, v{RQ+k}"); a(f"v_and_b32 v{T+2*k+1}, 0xffff0000, v{RQ+k}")
    softmax20(a, [T+2*i for i in range(10)], +1, T+20, F)
    a(f"v_mov_b32 v{F+10}, 0"); a(f"v_mov_b32 v{F+11}, 0")
def o_finish(a, LB, AF, F, D, flags="sc1"):
    t=V_T
    a(f"v_lshlrev_b32 v{t}, 4, v0"); a(f"v_add_u32 v{t}, {LB}, v{t}")
    for s in range(3): a(f"ds_read_b128 {vr(AF+4*s,4)}, v{t} offset:{1024*s}")
    a(f"s_lshr_b32 s{S_T0}, s2, 3")
    a(f"s_and_b32 s{S_T1}, s2, 7"); a(f"s_lshl_b32 s{S_T1}, s{S_T1}, 3"); a(f"s_add_u32 s{S_T1}, s{S_T1}, s{S_WAVE}"); a(f"s_mul_i32 s{S_T1}, s{S_T1}, 40")
    a(f"s_lshr_b32 s{S_T2}, s{S_T0}, 3"); a(f"s_mul_i32 s{S_T2}, s{S_T2}, 5"); a(f"s_add_u32 s{S_T1}, s{S_T1}, s{S_T2}")
    a(f"s_lshl_b32 s{S_T1}, s{S_T1}, 10"); a(f"s_add_u32 s{S_T1}, s{S_T1}, {WS_O}")
    a(f"s_and_b32 s{S_T0}, s{S_T0}, 7")
    a(f"s_lshl_b32 s{S_T2}, s{S_T0}, 9"); a(f"s_add_u32 s{S_T2}, s{S_T2}, s{S_T1}")
    a(f"s_lshr_b32 s{S_T3}, s{S_T0}, 1"); a(f"s_xor_b32 s{S_T0}, s{S_T0}, s{S_T3}"); a(f"s_and_b32 s{S_T0}, s{S_T0}, 1"); a(f"s_lshl_b32 s{S_T0}, s{S_T0}, 3")
    a(f"s_lshl_b32 s{S_T3}, s{S_T3}, 8"); a(f"s_add_u32 s{S_T0}, s{S_T0}, s{S_T3}"); a(f"s_add_u32 s{S_T0}, s{S_T0}, s{S_T1}"); a(f"s_add_u32 s{S_T0}, s{S_T0}, 4096")
    a(f"v_bfe_u32 v{t}, v0, 4, 1"); a(f"v_mul_u32_u24 v{t}, 20480, v{t}"); a(f"v_and_b32 v{t+1}, 15, v0"); a(f"v_lshl_add_u32 v{t}, v{t+1}, 4, v{t}")
    a(f"v_lshrrev_b32 v{t+1}, 5, v0"); a(f"v_lshl_add_u32 v{t+1}, v{t+1}, 8, v{t}")
    a(f"v_cmp_gt_u32 vcc, 32, v0")
    a("s_waitcnt lgkmcnt(0)")
    for s in range(3): a(f"v_mfma_f32_32x32x16_bf16 {vr(D,16)}, {vr(AF+4*s,4)}, {vr(F+4*s,4)}, {vr(D,16) if s else 0}")
    a(f"v_cndmask_b32 v{D+14}, v{D+8}, v{D+12}, vcc"); a(f"v_add_f32 v{D+14}, 0x358637bd, v{D+14}"); a(f"v_rcp_f32 v{D+14}, v{D+14}")
    for i in range(0,12,2): a(pk("v_pk_mul_f32", D+i, [D+i, D+14], "pl"))
    for k in range(6): a(f"v_cvt_pk_bf16_f32 v{AF+k}, v{D+2*k}, v{D+2*k+1}")
    a(f"buffer_store_dwordx4 {vr(AF,4)}, v{t+1}, s[{S_WS}:{S_WS+3}], s{S_T2} offen {flags}")
    a("s_mov_b32 exec_hi, 0")
    a(f"buffer_store_dwordx2 {vr(AF+4,2)}, v{t}, s[{S_WS}:{S_WS+3}], s{S_T0} offen {flags}")
    a("s_mov_b64 exec, -1")

S_BO=39; S_AO=40; S_LB=41; S_ROT=44; S_NS=49; S_IX=50
G_A=1
G_B=5
G_L=7
G_X=8
G_F=11
def g2_addr_b(a, rot=1):
    a(f"v_lshlrev_b32 v{G_B}, 4, v0"); a(f"v_add_u32 v{G_B+1}, 4096, v{G_B}")
    a(f"s_mul_i32 s{S_LB}, s{S_WAVE}, 20480"); a(f"v_add_u32 v{G_L}, s{S_LB}, v{G_B}")
    a(f"s_mul_i32 s{S_T0}, s{S_WAVE}, 9"); a(f"s_cmp_eq_u32 s{S_WAVE}, 7"); a(f"s_cselect_b32 s{S_T0}, 64, s{S_T0}")
    a(f"s_bfe_u32 s{S_T1}, s2, 0x30003"); a(f"s_mul_i32 s{S_T1}, s{S_T1}, 74"); a(f"s_add_u32 s{S_BO}, s{S_T0}, s{S_T1}"); a(f"s_mul_i32 s{S_BO}, s{S_BO}, 5120"); a(f"s_add_u32 s{S_BO}, s{S_BO}, {WS_WT}")
    a(f"s_bfe_u32 s{S_ROT}, s2, 0x30003"); a(f"s_lshr_b32 s{S_T0}, s2, 6"); a(f"s_lshl_b32 s{S_T0}, s{S_T0}, 1"); a(f"s_add_u32 s{S_ROT}, s{S_ROT}, s{S_T0}")
    a(f"s_cmp_ge_u32 s{S_ROT}, 9"); a(f"s_cselect_b32 s{S_T0}, 9, 0"); a(f"s_sub_u32 s{S_ROT}, s{S_ROT}, s{S_T0}")
    if not rot: a(f"s_mov_b32 s{S_ROT}, 0")
    a(f"s_cmp_ge_u32 s{S_WAVE}, 6"); a(f"s_cselect_b32 s{S_NS}, 10, 9")
def ix(s, dst, base, mul):
    return [f"s_add_u32 s{S_IX}, s{S_ROT}, {s}", f"s_sub_u32 s{dst}, s{S_IX}, s{S_NS}", f"s_min_u32 s{S_IX}, s{S_IX}, s{dst}", f"s_mul_i32 s{S_IX}, s{S_IX}, {mul}", f"s_add_u32 s{dst}, s{base}, s{S_IX}"]
def g2_addr_a(a):
    a(f"s_and_b32 s{S_T0}, s2, 7"); a(f"s_lshl_b32 s{S_T0}, s{S_T0}, 4"); a(f"s_lshr_b32 s{S_T1}, s2, 6"); a(f"s_lshl_b32 s{S_T1}, s{S_T1}, 2"); a(f"s_add_u32 s{S_T0}, s{S_T0}, s{S_T1}")
    a(f"s_mul_i32 s{S_T1}, s{S_WAVE}, 9"); a(f"s_mul_i32 s{S_T2}, s{S_WAVE}, 10"); a(f"s_sub_u32 s{S_T2}, s{S_T2}, 60")
    a(f"s_cmp_ge_u32 s{S_WAVE}, 6"); a(f"s_cselect_b32 s{S_T1}, s{S_T2}, s{S_T1}"); a(f"s_cselect_b32 s{S_T2}, 20, 54"); a(f"s_mov_b32 s{S_T3}, {WS_H}"); a(f"s_cselect_b32 s{S_T3}, {WS_O}, s{S_T3}")
    a(f"s_mul_i32 s{S_AO}, s{S_T0}, s{S_T2}"); a(f"s_add_u32 s{S_AO}, s{S_AO}, s{S_T1}"); a(f"s_lshl_b32 s{S_AO}, s{S_AO}, 10"); a(f"s_add_u32 s{S_AO}, s{S_AO}, s{S_T3}")
    a(f"s_lshl_b32 s{S_T2}, s{S_T2}, 10"); a(f"v_lshlrev_b32 v{G_A}, 4, v0")
    for i in range(1,4): a(f"v_add_u32 v{G_A+i}, s{S_T2}, v{G_A+i-1}")
def g2_bdma(s, slot):
    L=[]
    for nb in range(5):
        it=[f"s_add_u32 m0, s{S_LB}, {slot*5120+(4096 if nb==4 else 0)}"]
        if nb==0: it=ix(s, S_T3, S_BO, 5120)+it
        it.append(f"buffer_load_dwordx4 v{G_B+(nb==4)}, s[{S_WS}:{S_WS+3}], s{S_T3} offen offset:{1024*nb if nb<4 else 0} sc1 lds")
        L.append(it)
    return L
def g2_bload(s, R):
    L=[]
    for nb in range(5):
        it=[]
        if nb==0: it+=ix(s, S_T3, S_BO, 5120)
        it.append(f"buffer_load_dwordx4 {vr(R+4*nb,4)}, v{G_B+(nb==4)}, s[{S_WS}:{S_WS+3}], s{S_T3} offen offset:{1024*nb if nb<4 else 0} sc1")
        L.append(it)
    return L
def g2_aload(s, R):
    L=[]
    for t in range(4):
        it=[]
        if t==0: it+=ix(s, S_T2, S_AO, 1024)
        it.append(f"buffer_load_dwordx4 {vr(R+4*t,4)}, v{G_A+t}, s[{S_WS}:{S_WS+3}], s{S_T2} offen sc1")
        L.append(it)
    return L
def g2_lread(slot, R):
    return [f"ds_read_b128 {vr(R+4*nb,4)}, v{G_L} offset:{slot*5120+nb*1024}" for nb in range(5)]
def g2_mfma(Wf, Af, first):
    return [f"v_mfma_f32_16x16x32_bf16 {vr(ACC+4*(4*nb+t),4)}, {vr(Wf+4*nb,4)}, {vr(Af+4*t,4)}, {0 if first else vr(ACC+4*(4*nb+t),4)}" for t in range(4) for nb in range(5)]
def g2_x_issue(a, R):
    t=V_T
    a(f"s_and_b32 s{S_T0}, s2, 7"); a(f"s_lshl_b32 s{S_T0}, s{S_T0}, 8"); a(f"s_lshr_b32 s{S_T1}, s2, 6"); a(f"s_lshl_b32 s{S_T1}, s{S_T1}, 6"); a(f"s_add_u32 s{S_T0}, s{S_T0}, s{S_T1}")
    a(f"s_lshl_b32 s{S_T1}, s{S_WAVE}, 3"); a(f"s_add_u32 s{S_T0}, s{S_T0}, s{S_T1}"); a(f"s_mul_i32 s{S_T0}, s{S_T0}, 1280")
    a(f"s_bfe_u32 s{S_T1}, s2, 0x30003"); a(f"s_mul_i32 s{S_T1}, s{S_T1}, 160"); a(f"s_add_u32 s{S_T0}, s{S_T0}, s{S_T1}")
    for r in range(3):
        a(f"v_add_u32 v{t}, {64*r}, v0"); a(f"v_mul_u32_u24 v{t+1}, 205, v{t}"); a(f"v_lshrrev_b32 v{t+1}, 12, v{t+1}")
        a(f"v_mul_u32_u24 v{t+2}, {1280-160}, v{t+1}"); a(f"v_lshl_add_u32 v{t+2}, v{t}, 3, v{t+2}"); a(f"v_add_u32 v{G_X+r}, s{S_T0}, v{t+2}")
        if r==2:
            a(f"v_cmp_gt_u32 vcc, 32, v0"); a(f"v_mov_b32 v{t}, 0x7ffffff0"); a(f"v_cndmask_b32 v{G_X+r}, v{t}, v{G_X+r}, vcc")
        a(f"buffer_load_dwordx2 {vr(R+2*r,2)}, v{G_X+r}, s[{S_XALL}:{S_XALL+3}], 0 offen")
def g2_reduce_final(a, RX):
    t=V_T
    a(f"v_and_b32 v{t}, 15, v0"); a(f"v_mul_u32_u24 v{t}, 320, v{t}"); a(f"v_lshrrev_b32 v{t+1}, 4, v0"); a(f"v_lshrrev_b32 v{t+2}, 1, v0"); a(f"v_xor_b32 v{t+1}, v{t+1}, v{t+2}")
    a(f"v_and_b32 v{t+1}, 3, v{t+1}"); a(f"v_lshl_add_u32 v{t}, v{t+1}, 4, v{t}"); a(f"v_add_u32 v{t}, s{S_LB}, v{t}")
    for nb in range(5):
        for tb in range(4): a(f"ds_write_b128 v{t}, {vr(ACC+4*(4*nb+tb),4)} offset:{tb*5120+nb*64}")
    RA=t+1
    for r in range(3):
        a(f"v_add_u32 v{t+4}, {64*r}, v0"); a(f"v_mul_u32_u24 v{t+5}, 205, v{t+4}"); a(f"v_lshrrev_b32 v{t+5}, 13, v{t+5}")
        a(f"v_and_b32 v{t+5}, 3, v{t+5}"); a(f"v_xor_b32 v{t+4}, v{t+4}, v{t+5}")
        a(f"v_lshlrev_b32 v{RA+r}, 4, v{t+4}")
    a(f"s_mul_i32 s{S_T0}, s{S_WAVE}, 2560")
    for r in range(3): a(f"v_add_u32 v{RA+r}, s{S_T0}, v{RA+r}")
    V2=t+4
    for r in range(3): a(f"v_add_u32 v{V2+r}, 81920, v{RA+r}")
    a(f"v_cmp_gt_u32 vcc, 32, v0"); a(f"v_cndmask_b32 v{V2+2}, 0, v{V2+2}, vcc")
    a("s_waitcnt lgkmcnt(0)"); a("s_barrier")
    B=128
    for r in range(3):
        for w in range(8): a(f"ds_read_b128 {vr(B+32*r+4*w,4)}, v{(RA if w<4 else V2)+r} offset:{(w%4)*20480}")
    a(f"s_mov_b32 s{S_L2E}, {LOG2E|0x80000000}")
    for r in range(3):
        a(f"s_waitcnt lgkmcnt({min(15,8*(2-r))})" + (" vmcnt(0)" if r==0 else ""))
        b=B+32*r
        for w in (1,2):
            for e in (0,2): a(pk("v_pk_add_f32", b+e, [b+e, b+4*w+e], "pp")); a(pk("v_pk_add_f32", b+12+e, [b+12+e, b+12+4*w+e], "pp"))
        for e in (0,2): a(pk("v_pk_add_f32", b+e, [b+e, b+12+e], "pp")); a(pk("v_pk_add_f32", b+24+e, [b+24+e, b+28+e], "pp"))
        for e in range(4): a(f"v_mul_f32 v{b+4+e}, s{S_L2E}, v{b+e}")
        for e in range(4): a(f"v_exp_f32 v{b+4+e}, v{b+4+e}")
        for e in (0,2): a(pk("v_pk_mul_f32", b+e, [b+e, b+24+e], "pp"))
        for e in range(4): a(f"v_add_f32 v{b+4+e}, 1.0, v{b+4+e}")
        for e in range(4): a(f"v_rcp_f32 v{b+4+e}, v{b+4+e}")
        for e in range(2): a(f"v_lshlrev_b32 v{b+8+2*e}, 16, v{RX+2*r+e}"); a(f"v_and_b32 v{b+9+2*e}, 0xffff0000, v{RX+2*r+e}")
        for e in (0,2): a(pk("v_pk_fma_f32", b+8+e, [b+e, b+4+e, b+8+e], "ppp"))
        a(f"v_cvt_pk_bf16_f32 v{b}, v{b+8}, v{b+9}"); a(f"v_cvt_pk_bf16_f32 v{b+1}, v{b+10}, v{b+11}")
        a(f"buffer_store_dwordx2 {vr(b,2)}, v{G_X+r}, s[{S_OUT}:{S_OUT+3}], 0 offen")
```

```python
from p1 import *
from p1e import *
from p2 import *
H1=81920; L_CS3=0; L_KVZ=77824; L_SYNC=L_KVZ+3072
S_BO=28; S_LB=29; S_LB1=30; S_PRE=31; S_AO=40
G_A=1
G_X=5
G_B=8
G_L=10
G_F=12; G_F2=13
AB=[112,128,144]; BR=[184,204,224,164]
PS=[0,1,4,5,2,3,6,7,8,9]
def addr_b():
    return [f"v_lshlrev_b32 v{G_B}, 4, v0", f"v_add_u32 v{G_B+1}, 4096, v{G_B}",
            f"s_mul_i32 s{S_LB}, s{S_WAVE}, 10240", f"s_add_u32 s{S_LB1}, s{S_LB}, {H1}",
            [f"s_mul_i32 s{S_T0}, s{S_WAVE}, 9", f"s_cmp_eq_u32 s{S_WAVE}, 7", f"s_cselect_b32 s{S_T0}, 64, s{S_T0}",
             f"s_bfe_u32 s{S_T1}, s2, 0x30003", f"s_mul_i32 s{S_T1}, s{S_T1}, 74", f"s_add_u32 s{S_BO}, s{S_T0}, s{S_T1}", f"s_mul_i32 s{S_BO}, s{S_BO}, 5120", f"s_add_u32 s{S_BO}, s{S_BO}, {WS_WT}"]]
def bload(s, R):
    L=[]
    for nb in range(5):
        it=[f"s_add_u32 s{S_T3}, s{S_BO}, {s*5120}"] if nb==0 else []
        it.append(f"buffer_load_dwordx4 {vr(R+4*nb,4)}, v{G_B+(nb==4)}, s[{S_WS}:{S_WS+3}], s{S_T3} offen offset:{1024*nb if nb<4 else 0} sc1")
        L.append(it)
    return L
def bdma(s, slot):
    L=[]; base=S_LB1 if slot<2 else S_LB
    for nb in range(5):
        it=[f"s_add_u32 s{S_T3}, s{S_BO}, {s*5120}"] if nb==0 else []
        it+=[f"s_add_u32 m0, s{base}, {(slot%2)*5120+(4096 if nb==4 else 0)}",
             f"buffer_load_dwordx4 v{G_B+(nb==4)}, s[{S_WS}:{S_WS+3}], s{S_T3} offen offset:{1024*nb if nb<4 else 0} sc1 lds"]
        L.append(it)
    return L
def bstep(s):
    return {0:lambda:bload(0,BR[0]),1:lambda:bload(1,BR[1]),2:lambda:bdma(2,0),3:lambda:bdma(3,1),4:lambda:bload(4,BR[2]),5:lambda:bload(5,BR[3]),6:lambda:bdma(6,2),7:lambda:bdma(7,3)}[s]()
def lread(slot, R):
    return [f"ds_read_b128 {vr(R+4*nb,4)}, v{G_L+(slot<2)} offset:{(slot%2)*5120+nb*1024}" for nb in range(5)]
def addr_a(a, wo):
    nk=20 if wo else 54
    a(f"s_and_b32 s{S_T0}, s2, 7"); a(f"s_lshl_b32 s{S_T0}, s{S_T0}, 4"); a(f"s_lshr_b32 s{S_T1}, s2, 6"); a(f"s_lshl_b32 s{S_T1}, s{S_T1}, 2"); a(f"s_add_u32 s{S_T0}, s{S_T0}, s{S_T1}")
    a(f"s_mul_i32 s{S_AO}, s{S_T0}, {nk}"); a(f"s_mul_i32 s{S_T1}, s{S_WAVE}, {10 if wo else 9}"); a(f"s_add_u32 s{S_AO}, s{S_AO}, s{S_T1}")
    a(f"s_lshl_b32 s{S_AO}, s{S_AO}, 10"); a(f"s_add_u32 s{S_AO}, s{S_AO}, {(WS_O-60*1024) if wo else WS_H}")
    a(f"v_lshlrev_b32 v{G_A}, 4, v0")
    for i in range(1,4): a(f"v_add_u32 v{G_A+i}, {nk*1024*i}, v{G_A}")
    a(f"v_add_u32 v{G_L}, s{S_LB}, v{G_A}"); a(f"v_add_u32 v{G_L+1}, s{S_LB1}, v{G_A}")
def aload(s, R):
    L=[]
    for t in range(4):
        it=[f"s_add_u32 s{S_T2}, s{S_AO}, {s*1024}"] if t==0 else []
        it.append(f"buffer_load_dwordx4 {vr(R+4*t,4)}, v{G_A+t}, s[{S_WS}:{S_WS+3}], s{S_T2} offen sc1")
        L.append(it)
    return L
def fa_q(VA):
    return [f"s_lshr_b32 s{S_T0}, s2, 6", f"s_lshl_b32 s{S_T0}, s{S_T0}, 1", f"s_and_b32 s{S_T1}, s2, 3", f"s_lshl_b32 s{S_T1}, s{S_T1}, 3", f"s_add_u32 s{S_T0}, s{S_T0}, s{S_T1}",
            f"s_bfe_u32 s{S_T1}, s2, 0x10002", f"s_add_u32 s{S_T0}, s{S_T0}, s{S_T1}", f"s_lshl_b32 s{S_T0}, s{S_T0}, 7", f"v_mov_b32 v{VA}, s{S_T0}"]
def fa_kv(VA, T):
    return [f"s_lshr_b32 s{S_T0}, s2, 5", f"s_and_b32 s{S_T1}, s{S_T0}, 1", f"s_add_u32 s{S_T1}, s{S_T1}, 1", f"s_lshl_b32 s{S_T1}, s{S_T1}, 5", f"s_andn2_b32 s{S_T0}, s{S_T0}, 1", f"s_add_u32 s{S_T1}, s{S_T1}, s{S_T0}",
            f"v_and_b32 v{VA}, 3, v0", f"v_bfe_u32 v{T}, v0, 2, 1", f"v_lshl_add_u32 v{VA}, v{VA}, 3, v{T}", f"v_add_u32 v{VA}, s{S_T1}, v{VA}", f"v_lshlrev_b32 v{VA}, 7, v{VA}"]
def fa_h(VA, T):
    return [f"v_min_u32 v{T}, 2, v0", f"s_mul_i32 s{S_T0}, s{S_WAVE}, 3", f"v_add_u32 v{T}, s{S_T0}, v{T}",
            f"v_cmp_le_u32 vcc, 14, v{T}", f"v_addc_co_u32 v{T+1}, vcc, 0, v{T}, vcc",
            f"v_mul_u32_u24 v{VA}, 52, v{T+1}", f"v_lshrrev_b32 v{VA}, 8, v{VA}",
            f"v_mul_u32_u24 v{T}, 5, v{VA}", f"v_sub_u32 v{T}, v{T+1}, v{T}", f"v_add_u32 v{T}, 3, v{T}",
            f"v_lshlrev_b32 v{T}, 5, v{T}", f"v_lshl_add_u32 v{VA}, v{VA}, 1, v{T}",
            f"s_and_b32 s{S_T0}, s2, 3", f"s_lshl_b32 s{S_T0}, s{S_T0}, 3", f"s_bfe_u32 s{S_T1}, s2, 0x10002", f"s_add_u32 s{S_T0}, s{S_T0}, s{S_T1}", f"v_add_u32 v{VA}, s{S_T0}, v{VA}", f"v_lshlrev_b32 v{VA}, 7, v{VA}"]
def fa_o(VA):
    return [f"v_and_b32 v{VA}, 31, v0", f"v_lshlrev_b32 v{VA}, 3, v{VA}", f"s_and_b32 s{S_T0}, s2, 7", f"v_add_u32 v{VA}, s{S_T0}, v{VA}", f"v_lshlrev_b32 v{VA}, 7, v{VA}"]
def flag_ok_items(R, T, need, val):
    return [f"v_subrev_u32 v{T}, s{S_TAG}, v{R}", f"v_subrev_u32 v{T}, {need}, v{T}", f"v_xor_b32 v{T+1}, s{S_TAG+1}, v{R+1}",
            [f"v_cmp_ne_u32 s[{S_SAVE}:{S_SAVE+1}], 0, v{T+1}", f"v_cmp_lt_u32 vcc, {4-need}, v{T}", "s_nop 1", f"s_or_b64 vcc, vcc, s[{S_SAVE}:{S_SAVE+1}]", f"s_cmp_eq_u64 vcc, 0", f"s_cselect_b32 s{S_PRE}, {val}, s{S_PRE}"]]
def guard(items, val, lab):
    flat=[]
    for x in items: flat+= x if isinstance(x,list) else [x]
    return [f"s_cmp_eq_u32 s{S_PRE}, {val}", f"s_cbranch_scc0 {lab}"]+flat+[f"{lab}:"]

O_RQ=32; O_T=72; O_F=116; O_RP=32; O_AF=96; O_PK=108
def o_pq_issue(a):
    t=V_T
    a(f"s_lshr_b32 s{S_T0}, s2, 3"); a(f"s_mul_i32 s{S_T1}, s{S_T0}, 81920"); a(f"s_add_u32 s{S_T1}, s{S_T1}, {WS_PQ}")
    a(f"s_and_b32 s{S_T2}, s2, 7"); a(f"s_lshl_b32 s{S_T2}, s{S_T2}, 1"); a(f"s_add_u32 s{S_T2}, s{S_T2}, s{S_WAVE}"); a(f"s_sub_u32 s{S_T2}, s{S_T2}, 6"); a(f"s_lshl_b32 s{S_T2}, s{S_T2}, 10")
    a(f"s_add_u32 s{S_T0}, s{S_T1}, s{S_T2}"); a(f"s_add_u32 s{S_T0}, s{S_T0}, 65536")
    a(f"s_lshl_b32 s{S_T2}, s{S_T2}, 1"); a(f"s_add_u32 s{S_T1}, s{S_T1}, s{S_T2}"); a(f"s_add_u32 s{S_T2}, s{S_T1}, 32768")
    a(f"v_and_b32 v{t}, 31, v0"); a(f"v_lshlrev_b32 v{t+1}, 3, v{t}"); a(f"v_lshlrev_b32 v{t}, 4, v{t}")
    for b in range(4):
        R=O_RQ+10*b
        a(f"buffer_load_dwordx4 {vr(R,4)}, v{t}, s[{S_WS}:{S_WS+3}], s{S_T1} offen offset:{512*b} sc1")
        a(f"buffer_load_dwordx4 {vr(R+4,4)}, v{t}, s[{S_WS}:{S_WS+3}], s{S_T2} offen offset:{512*b} sc1")
        a(f"buffer_load_dwordx2 {vr(R+8,2)}, v{t+1}, s[{S_WS}:{S_WS+3}], s{S_T0} offen offset:{256*b} sc1")
def o_phi(a, b):
    t=V_T+2; RQ=O_RQ+10*b; T=O_T; F=O_F+12*b
    if b==0: a(f"v_lshrrev_b32 v{t}, 5, v0"); a(f"v_mul_u32_u24 v{t}, 0x8000, v{t}"); a(f"v_lshl_add_u32 v{t}, v{t}, 16, v{t}")
    for k in range(10): a(f"v_xor_b32 v{RQ+k}, v{RQ+k}, v{t}")
    for k in range(10): a(f"v_lshlrev_b32 v{T+2*k}, 16, v{RQ+k}"); a(f"v_and_b32 v{T+2*k+1}, 0xffff0000, v{RQ+k}")
    softmax20(a, [T+2*i for i in range(10)], +1, T+20, F)
    a(f"v_mov_b32 v{F+10}, 0"); a(f"v_mov_b32 v{F+11}, 0")
def o_item(r, d):
    return [f"s_mul_i32 s{S_T1}, s{S_WAVE}, 105", f"s_sub_u32 s{S_T1}, s{S_T1}, {630-53*r}", f"v_min_u32 v{d}, 52, v0", f"v_add_u32 v{d}, s{S_T1}, v{d}", f"v_min_u32 v{d}, 209, v{d}"]
def o_part_issue(a):
    t=V_T
    for r in range(2):
        a(o_item(r, t+r)); a(f"v_lshlrev_b32 v{t+r}, 4, v{t+r}")
    a(f"s_lshr_b32 s{S_T0}, s2, 3"); a(f"s_mul_i32 s{S_T0}, s{S_T0}, 3360"); a(f"s_add_u32 s{S_T0}, s{S_T0}, {WS_KVP}")
    for p in range(8):
        for r in range(2): a(f"buffer_load_dwordx4 {vr(O_RP+32*r+4*p,4)}, v{t+r}, s[{S_WS}:{S_WS+3}], s{S_T0} offen sc1")
        if p<7: a(f"s_add_u32 s{S_T0}, s{S_T0}, {32*3360}")
def o_kvz_addr(a):
    t=V_T
    for r in range(2):
        A=t+4+r
        a(o_item(r, t))
        a(f"v_mul_u32_u24 v{t+1}, 3121, v{t}"); a(f"v_lshrrev_b32 v{t+1}, 16, v{t+1}")
        a(f"v_mul_u32_u24 v{t+2}, 21, v{t+1}"); a(f"v_sub_u32 v{t+2}, v{t}, v{t+2}")
        a(f"v_cmp_le_u32 vcc, 5, v{t+1}"); a(f"v_cndmask_b32 v{t+3}, 0, 1, vcc")
        a(f"v_mul_u32_u24 v{A}, 5, v{t+3}"); a(f"v_sub_u32 v{t+1}, v{t+1}, v{A}")
        a(f"v_lshl_add_u32 v{t+3}, v{t+3}, 5, v{t+2}"); a(f"v_lshlrev_b32 v{t+3}, 4, v{t+3}")
        a(f"v_lshrrev_b32 v{A}, 1, v{t+1}"); a(f"v_lshl_add_u32 v{t+3}, v{A}, 10, v{t+3}")
        a(f"v_and_b32 v{A}, 1, v{t+1}"); a(f"v_lshl_add_u32 v{t+3}, v{A}, 3, v{t+3}"); a(f"v_add_u32 v{A}, {L_KVZ}, v{t+3}")
        a(f"v_cmp_eq_u32 s[{8+4*r}:{9+4*r}], 4, v{t+1}"); a(f"v_cmp_eq_u32 s[{10+4*r}:{11+4*r}], 20, v{t+2}")
def o_kvz_write(a):
    t=V_T
    for r in range(2):
        R=O_RP+32*r; A=t+4+r
        for st in (4,8,16):
            for p in range(0,32,2*st):
                for e in (0,2): a(pk("v_pk_add_f32", R+p+e, [R+p+e, R+p+st+e], "pp"))
        a(f"v_cvt_pk_bf16_f32 v{R+4}, v{R}, v{R+1}"); a(f"v_cvt_pk_bf16_f32 v{R+5}, v{R+2}, v{R+3}"); a(f"v_mov_b32 v{R+6}, 0"); a(f"v_mov_b32 v{R+7}, 0")
        a(f"ds_write_b64 v{A}, {vr(R+4,2)}")
        a(f"s_mov_b64 exec, s[{8+4*r}:{9+4*r}]"); a(f"ds_write_b64 v{A}, {vr(R+6,2)} offset:8")
        a(f"s_mov_b64 exec, s[{10+4*r}:{11+4*r}]"); a(f"ds_write_b64 v{A}, {vr(R+4,2)} offset:64")
        a(f"s_and_b64 exec, s[{8+4*r}:{9+4*r}], s[{10+4*r}:{11+4*r}]"); a(f"ds_write_b64 v{A}, {vr(R+6,2)} offset:72")
        a("s_mov_b64 exec, -1")
def lds_signal(a, k):
    t=V_T
    a(f"s_and_b32 s{S_T0}, s{S_WAVE}, 1"); a(f"s_lshl_b32 s{S_T0}, s{S_T0}, 2"); a(f"s_add_u32 s{S_T0}, s{S_T0}, {L_SYNC+8*k}")
    a(f"v_mov_b32 v{t}, s{S_T0}"); a(f"v_mov_b32 v{t+1}, s{S_TAG}"); a(f"ds_write_b32 v{t}, v{t+1}"); a(f"v_xor_b32 v{t}, 4, v{t}")
def lds_wait(a, lab):
    t=V_T
    a(f"s_mov_b32 s{S_CNT}, 0")
    a.label(f"{lab}_SP")
    a(f"ds_read_b32 v{t+1}, v{t}"); a("s_waitcnt lgkmcnt(0)"); a(f"v_readfirstlane_b32 s{S_T0}, v{t+1}")
    a(f"s_add_u32 s{S_CNT}, s{S_CNT}, 1"); a(f"s_cmp_ge_u32 s{S_CNT}, {4*SPIN_MAX}"); a(f"s_cbranch_scc1 {lab}_OK")
    a(f"s_cmp_lg_u32 s{S_T0}, s{S_TAG}"); a(f"s_cbranch_scc1 {lab}_SP")
    a.label(f"{lab}_OK")
def o_out_addr(a):
    t=V_T+6
    a(f"s_lshr_b32 s{S_T0}, s2, 3")
    a(f"s_and_b32 s{S_T1}, s2, 7"); a(f"s_lshl_b32 s{S_T1}, s{S_T1}, 1"); a(f"s_add_u32 s{S_T1}, s{S_T1}, s{S_WAVE}"); a(f"s_sub_u32 s{S_T1}, s{S_T1}, 6"); a(f"s_mul_i32 s{S_T1}, s{S_T1}, 160")
    a(f"s_lshr_b32 s{S_T2}, s{S_T0}, 3"); a(f"s_mul_i32 s{S_T2}, s{S_T2}, 5"); a(f"s_add_u32 s{S_T1}, s{S_T1}, s{S_T2}")
    a(f"s_lshl_b32 s{S_T1}, s{S_T1}, 10"); a(f"s_add_u32 s{S_T1}, s{S_T1}, {WS_O}")
    a(f"s_and_b32 s{S_T0}, s{S_T0}, 7")
    a(f"s_lshl_b32 s76, s{S_T0}, 9"); a(f"s_add_u32 s76, s76, s{S_T1}")
    a(f"s_lshr_b32 s{S_T2}, s{S_T0}, 1"); a(f"s_xor_b32 s{S_T0}, s{S_T0}, s{S_T2}"); a(f"s_and_b32 s{S_T0}, s{S_T0}, 1"); a(f"s_lshl_b32 s{S_T0}, s{S_T0}, 3")
    a(f"s_lshl_b32 s{S_T2}, s{S_T2}, 8"); a(f"s_add_u32 s{S_T0}, s{S_T0}, s{S_T2}"); a(f"s_add_u32 s{S_T0}, s{S_T0}, s{S_T1}"); a(f"s_add_u32 s77, s{S_T0}, 4096")
    a(f"v_bfe_u32 v{t+1}, v0, 4, 1"); a(f"v_mul_u32_u24 v{t+1}, 20480, v{t+1}"); a(f"v_and_b32 v{t}, 15, v0"); a(f"v_lshl_add_u32 v{t+1}, v{t}, 4, v{t+1}")
    a(f"v_lshrrev_b32 v{t}, 5, v0"); a(f"v_lshl_add_u32 v{t}, v{t}, 8, v{t+1}")
def o_finish4(a):
    t=V_T
    a(f"v_lshlrev_b32 v{t}, 4, v0"); a(f"v_add_u32 v{t}, {L_KVZ}, v{t}")
    for s in range(3): a(f"ds_read_b128 {vr(O_AF+4*s,4)}, v{t} offset:{1024*s}")
    a(f"v_cmp_gt_u32 vcc, 32, v0")
    a("s_waitcnt lgkmcnt(0)")
    for b in range(4):
        D=32+16*b
        for s in range(3): a(f"v_mfma_f32_32x32x16_bf16 {vr(D,16)}, {vr(O_AF+4*s,4)}, {vr(O_F+12*b+4*s,4)}, {vr(D,16) if s else 0}")
    for b in range(4):
        D=32+16*b; K=O_F+12*b
        a(f"v_cndmask_b32 v{D+14}, v{D+8}, v{D+12}, vcc"); a(f"v_add_f32 v{D+14}, 0x358637bd, v{D+14}"); a(f"v_rcp_f32 v{D+14}, v{D+14}")
        for i in range(0,12,2): a(pk("v_pk_mul_f32", D+i, [D+i, D+14], "pl"))
        for k in range(6): a(f"v_cvt_pk_bf16_f32 v{K+k}, v{D+2*k}, v{D+2*k+1}")
        a(f"buffer_store_dwordx4 {vr(K,4)}, v{t+6}, s[{S_WS}:{S_WS+3}], s76 offen sc1")
        a("s_mov_b32 exec_hi, 0")
        a(f"buffer_store_dwordx2 {vr(K+4,2)}, v{t+7}, s[{S_WS}:{S_WS+3}], s77 offen sc1")
        a("s_mov_b64 exec, -1")
        if b<3: a(f"s_add_u32 s76, s76, 40960"); a(f"s_add_u32 s77, s77, 40960")
def x_issue(a, R):
    t=V_T
    a(f"s_and_b32 s{S_T0}, s2, 7"); a(f"s_lshl_b32 s{S_T0}, s{S_T0}, 8"); a(f"s_lshr_b32 s{S_T1}, s2, 6"); a(f"s_lshl_b32 s{S_T1}, s{S_T1}, 6"); a(f"s_add_u32 s{S_T0}, s{S_T0}, s{S_T1}")
    a(f"s_lshl_b32 s{S_T1}, s{S_WAVE}, 3"); a(f"s_add_u32 s{S_T0}, s{S_T0}, s{S_T1}"); a(f"s_mul_i32 s{S_T0}, s{S_T0}, 1280")
    a(f"s_bfe_u32 s{S_T1}, s2, 0x30003"); a(f"s_mul_i32 s{S_T1}, s{S_T1}, 160"); a(f"s_add_u32 s{S_T0}, s{S_T0}, s{S_T1}")
    for r in range(3):
        a(f"v_add_u32 v{t}, {64*r}, v0"); a(f"v_mul_u32_u24 v{t+1}, 205, v{t}"); a(f"v_lshrrev_b32 v{t+1}, 12, v{t+1}")
        a(f"v_mul_u32_u24 v{t+2}, {1280-160}, v{t+1}"); a(f"v_lshl_add_u32 v{t+2}, v{t}, 3, v{t+2}"); a(f"v_add_u32 v{G_X+r}, s{S_T0}, v{t+2}")
        if r==2:
            a(f"v_cmp_gt_u32 vcc, 32, v0"); a(f"v_mov_b32 v{t}, 0x7ffffff0"); a(f"v_cndmask_b32 v{G_X+r}, v{t}, v{G_X+r}, vcc")
        a(f"buffer_load_dwordx2 {vr(R+2*r,2)}, v{G_X+r}, s[{S_XALL}:{S_XALL+3}], 0 offen")
def red_addr(a, WA, RA, t=V_T):
    if WA is not None:
        a(f"v_and_b32 v{t}, 15, v0"); a(f"v_mul_u32_u24 v{t}, 320, v{t}"); a(f"v_lshrrev_b32 v{t+1}, 4, v0"); a(f"v_lshrrev_b32 v{t+2}, 1, v0"); a(f"v_xor_b32 v{t+1}, v{t+1}, v{t+2}")
        a(f"v_and_b32 v{t+1}, 3, v{t+1}"); a(f"v_lshl_add_u32 v{t}, v{t+1}, 4, v{t}"); a(f"v_add_u32 v{WA}, s{S_LB}, v{t}"); a(f"v_add_u32 v{WA+1}, s{S_LB1}, v{t}")
        return
    a(f"s_mul_i32 s{S_T0}, s{S_TG}, 2560"); a(f"s_mul_i32 s{S_T1}, s{S_FG}, {H1}"); a(f"s_add_u32 s{S_T0}, s{S_T0}, s{S_T1}")
    for r in range(3):
        a(f"v_add_u32 v{t}, {64*r}, v0")
        if r==2: a(f"v_and_b32 v{t}, 159, v{t}")
        a(f"v_mul_u32_u24 v{t+1}, 205, v{t}"); a(f"v_bfe_u32 v{t+1}, v{t+1}, 13, 2"); a(f"v_xor_b32 v{t}, v{t}, v{t+1}")
        a(f"v_lshlrev_b32 v{t}, 4, v{t}"); a(f"v_add_u32 v{RA+r}, s{S_T0}, v{t}"); a(f"v_add_u32 v{RA+3+r}, 40960, v{RA+r}")
def red_write(a, WA, tbs=(0,1,2,3)):
    for nb in range(5):
        for tb in tbs: a(f"ds_write_b128 v{WA+(tb>>1)}, {vr(ACC+4*(4*nb+tb),4)} offset:{(tb&1)*5120+nb*64}")
def reduce_final(a, RX, RA):
    a(f"s_mov_b32 s{S_L2E}, {LOG2E|0x80000000}")
    a("s_waitcnt lgkmcnt(0)"); a("s_barrier")
    B=128
    for r in range(3):
        for w in range(8): a(f"ds_read_b128 {vr(B+32*r+4*w,4)}, v{RA+r+(3 if w>=4 else 0)} offset:{(w%4)*10240}")
    for r in range(3):
        a(f"s_waitcnt lgkmcnt({min(15,8*(2-r))})" + (" vmcnt(0)" if r==0 else ""))
        b=B+32*r
        for w in (1,2):
            for e in (0,2): a(pk("v_pk_add_f32", b+e, [b+e, b+4*w+e], "pp")); a(pk("v_pk_add_f32", b+12+e, [b+12+e, b+12+4*w+e], "pp"))
        for e in (0,2): a(pk("v_pk_add_f32", b+e, [b+e, b+12+e], "pp")); a(pk("v_pk_add_f32", b+24+e, [b+24+e, b+28+e], "pp"))
        for e in range(4): a(f"v_mul_f32 v{b+4+e}, s{S_L2E}, v{b+e}")
        for e in range(4): a(f"v_exp_f32 v{b+4+e}, v{b+4+e}")
        for e in (0,2): a(pk("v_pk_mul_f32", b+e, [b+e, b+24+e], "pp"))
        for e in range(4): a(f"v_add_f32 v{b+4+e}, 1.0, v{b+4+e}")
        for e in range(4): a(f"v_rcp_f32 v{b+4+e}, v{b+4+e}")
        for e in range(2): a(f"v_lshlrev_b32 v{b+8+2*e}, 16, v{RX+2*r+e}"); a(f"v_and_b32 v{b+9+2*e}, 0xffff0000, v{RX+2*r+e}")
        for e in (0,2): a(pk("v_pk_fma_f32", b+8+e, [b+e, b+4+e, b+8+e], "ppp"))
        a(f"v_cvt_pk_bf16_f32 v{b}, v{b+8}, v{b+9}"); a(f"v_cvt_pk_bf16_f32 v{b+1}, v{b+10}, v{b+11}")
        a(f"buffer_store_dwordx2 {vr(b,2)}, v{G_X+r}, s[{S_OUT}:{S_OUT+3}], 0 offen")

def o1_pq(a, RQ):
    t=V_T
    a(f"s_lshr_b32 s{S_T0}, s2, 3"); a(f"s_mul_i32 s{S_T1}, s{S_T0}, 81920"); a(f"s_add_u32 s{S_T1}, s{S_T1}, {WS_PQ}")
    a(f"s_and_b32 s{S_T2}, s2, 7"); a(f"s_lshl_b32 s{S_T2}, s{S_T2}, 3"); a(f"s_add_u32 s{S_T2}, s{S_T2}, s{S_WAVE}"); a(f"s_lshl_b32 s{S_T2}, s{S_T2}, 8")
    a(f"s_add_u32 s{S_T0}, s{S_T1}, s{S_T2}"); a(f"s_add_u32 s{S_T0}, s{S_T0}, 65536")
    a(f"s_lshl_b32 s{S_T2}, s{S_T2}, 1"); a(f"s_add_u32 s{S_T1}, s{S_T1}, s{S_T2}"); a(f"s_add_u32 s{S_T2}, s{S_T1}, 32768")
    a(f"v_and_b32 v{t}, 31, v0"); a(f"v_lshlrev_b32 v{t+1}, 3, v{t}"); a(f"v_lshlrev_b32 v{t}, 4, v{t}")
    a(f"buffer_load_dwordx4 {vr(RQ,4)}, v{t}, s[{S_WS}:{S_WS+3}], s{S_T1} offen sc1")
    a(f"buffer_load_dwordx4 {vr(RQ+4,4)}, v{t}, s[{S_WS}:{S_WS+3}], s{S_T2} offen sc1")
    a(f"buffer_load_dwordx2 {vr(RQ+8,2)}, v{t+1}, s[{S_WS}:{S_WS+3}], s{S_T0} offen sc1")
def o1_addr0(a, O1):
    t=V_T
    a(f"v_and_b32 v{t}, 31, v0"); a(f"s_mul_i32 s{S_T1}, s{S_WAVE}, 28"); a(f"v_add_u32 v{t}, s{S_T1}, v{t}"); a(f"v_min_u32 v{t}, 209, v{t}")
    a(f"v_lshrrev_b32 v{O1+3}, 5, v0"); a(f"v_mul_u32_u24 v{t+1}, {4*32*3360}, v{O1+3}"); a(f"v_lshl_add_u32 v{O1}, v{t}, 4, v{t+1}")
    a(f"s_lshr_b32 s{S_T0}, s2, 3"); a(f"s_mul_i32 s78, s{S_T0}, 3360"); a(f"s_add_u32 s78, s78, {WS_KVP}")
def o1_addr(a, O1):
    t=V_T
    a(f"v_mul_u32_u24 v{t+1}, 3121, v{t}"); a(f"v_lshrrev_b32 v{t+1}, 16, v{t+1}")
    a(f"v_mul_u32_u24 v{t+2}, 21, v{t+1}"); a(f"v_sub_u32 v{t+2}, v{t}, v{t+2}")
    a(f"v_cmp_le_u32 vcc, 5, v{t+1}"); a(f"v_cndmask_b32 v{t+3}, 0, 1, vcc")
    a(f"v_mul_u32_u24 v{O1+2}, 5, v{t+3}"); a(f"v_sub_u32 v{t+1}, v{t+1}, v{O1+2}")
    a(f"v_cmp_eq_u32 vcc, 20, v{t+2}"); a(f"v_cndmask_b32 v{O1+2}, 0, 4, vcc"); a(f"v_mad_u32_u24 v{t+2}, v{O1+2}, v{O1+3}, v{t+2}")
    a(f"v_lshl_add_u32 v{t+3}, v{t+3}, 5, v{t+2}"); a(f"v_lshlrev_b32 v{t+3}, 4, v{t+3}")
    a(f"v_lshrrev_b32 v{O1+2}, 1, v{t+1}"); a(f"v_lshl_add_u32 v{t+3}, v{O1+2}, 10, v{t+3}")
    a(f"v_and_b32 v{O1+2}, 1, v{t+1}"); a(f"v_lshl_add_u32 v{t+3}, v{O1+2}, 3, v{t+3}"); a(f"v_add_u32 v{O1+1}, {L_KVZ}, v{t+3}")
    a(f"v_cmp_eq_u32 s[8:9], 4, v{t+1}")
    a(f"v_lshlrev_b32 v{O1+2}, 4, v0"); a(f"v_add_u32 v{O1+2}, {L_KVZ}, v{O1+2}")
    a(f"s_lshr_b32 s{S_T0}, s2, 3")
    a(f"s_and_b32 s{S_T1}, s2, 7"); a(f"s_lshl_b32 s{S_T1}, s{S_T1}, 3"); a(f"s_add_u32 s{S_T1}, s{S_T1}, s{S_WAVE}"); a(f"s_mul_i32 s{S_T1}, s{S_T1}, 40")
    a(f"s_lshr_b32 s{S_T2}, s{S_T0}, 3"); a(f"s_mul_i32 s{S_T2}, s{S_T2}, 5"); a(f"s_add_u32 s{S_T1}, s{S_T1}, s{S_T2}")
    a(f"s_lshl_b32 s{S_T1}, s{S_T1}, 10"); a(f"s_add_u32 s{S_T1}, s{S_T1}, {WS_O}")
    a(f"s_and_b32 s{S_T0}, s{S_T0}, 7")
    a(f"s_lshl_b32 s76, s{S_T0}, 9"); a(f"s_add_u32 s76, s76, s{S_T1}")
    a(f"s_lshr_b32 s{S_T2}, s{S_T0}, 1"); a(f"s_xor_b32 s{S_T0}, s{S_T0}, s{S_T2}"); a(f"s_and_b32 s{S_T0}, s{S_T0}, 1"); a(f"s_lshl_b32 s{S_T0}, s{S_T0}, 3")
    a(f"s_lshl_b32 s{S_T2}, s{S_T2}, 8"); a(f"s_add_u32 s{S_T0}, s{S_T0}, s{S_T2}"); a(f"s_add_u32 s{S_T0}, s{S_T0}, s{S_T1}"); a(f"s_add_u32 s77, s{S_T0}, 4096")
    a(f"v_bfe_u32 v{O1}, v0, 4, 1"); a(f"v_mul_u32_u24 v{O1}, 20480, v{O1}"); a(f"v_and_b32 v{t}, 15, v0"); a(f"v_lshl_add_u32 v{O1}, v{t}, 4, v{O1}")
    a(f"v_lshl_add_u32 v{O1+3}, v{O1+3}, 8, v{O1}")
def o1_part(a, RP, O1):
    for r in range(4):
        a(f"buffer_load_dwordx4 {vr(RP+4*r,4)}, v{O1}, s[{S_WS}:{S_WS+3}], s78 offen sc1")
        if r<3: a(f"s_add_u32 s78, s78, {32*3360}")
def o1_kvz(a, RP, O1):
    for e in (0,2):
        a(pk("v_pk_add_f32", RP+e, [RP+e, RP+4+e], "pp")); a(pk("v_pk_add_f32", RP+8+e, [RP+8+e, RP+12+e], "pp"))
    for e in (0,2): a(pk("v_pk_add_f32", RP+e, [RP+e, RP+8+e], "pp"))
    for e in range(4): a(f"v_mov_b32 v{RP+4+e}, v{RP+e}")
    a(f"v_mov_b32 v{RP+10}, 0"); a(f"v_mov_b32 v{RP+11}, 0")
    for e in range(4): a(f"v_permlane32_swap_b32 v{RP+e}, v{RP+4+e}")
    for e in (0,2): a(pk("v_pk_add_f32", RP+e, [RP+e, RP+4+e], "pp"))
    a(f"v_cvt_pk_bf16_f32 v{RP+8}, v{RP}, v{RP+1}"); a(f"v_cvt_pk_bf16_f32 v{RP+9}, v{RP+2}, v{RP+3}")
    a(f"ds_write_b64 v{O1+1}, {vr(RP+8,2)}")
    a(f"s_mov_b64 exec, s[8:9]"); a(f"ds_write_b64 v{O1+1}, {vr(RP+10,2)} offset:8"); a("s_mov_b64 exec, -1")
def o1_finish(a, AF, F, D, O1):
    for s in range(3): a(f"ds_read_b128 {vr(AF+4*s,4)}, v{O1+2} offset:{1024*s}")
    a(f"v_cmp_gt_u32 vcc, 32, v0")
    for s in range(3):
        a(f"s_waitcnt lgkmcnt({2-s})"); a(f"v_mfma_f32_32x32x16_bf16 {vr(D,16)}, {vr(AF+4*s,4)}, {vr(F+4*s,4)}, {vr(D,16) if s else 0}")
    a(f"v_cndmask_b32 v{D+14}, v{D+8}, v{D+12}, vcc"); a(f"v_add_f32 v{D+14}, 0x358637bd, v{D+14}"); a(f"v_rcp_f32 v{D+14}, v{D+14}")
    for i in range(0,12,2): a(pk("v_pk_mul_f32", D+i, [D+i, D+14], "pl"))
    for k in range(6): a(f"v_cvt_pk_bf16_f32 v{F+k}, v{D+2*k}, v{D+2*k+1}")
    a(f"buffer_store_dwordx4 {vr(F,4)}, v{O1+3}, s[{S_WS}:{S_WS+3}], s76 offen sc1")
    a("s_mov_b32 exec_hi, 0")
    a(f"buffer_store_dwordx2 {vr(F+4,2)}, v{O1}, s[{S_WS}:{S_WS+3}], s77 offen sc1")
    a("s_mov_b64 exec, -1")

S_PF=50; V_PF=25
def wpf_addr():
    return [[f"s_lshr_b32 s{S_T0}, s2, 3", f"s_lshl_b32 s{S_T0}, s{S_T0}, 1", f"s_lshr_b32 s{S_T1}, s{S_TG}, 1", f"s_add_u32 s{S_T0}, s{S_T0}, s{S_T1}",
             f"s_and_b32 s{S_T1}, s{S_T0}, 7", f"s_lshr_b32 s{S_T0}, s{S_T0}, 3", f"s_mul_i32 s{S_T0}, s{S_T0}, 74", f"s_mul_i32 s{S_T2}, s{S_T1}, 9", f"s_cmp_eq_u32 s{S_T1}, 7", f"s_cselect_b32 s{S_T2}, 64, s{S_T2}",
             f"s_add_u32 s{S_T0}, s{S_T0}, s{S_T2}", f"s_mul_i32 s{S_T0}, s{S_T0}, 5120", f"s_add_u32 s{S_T0}, s{S_T0}, {WS_WT}", f"v_lshlrev_b32 v{V_PF}, 7, v0", f"v_add_u32 v{V_PF}, s{S_T0}, v{V_PF}"],
            f"s_mov_b32 s{S_PF}, 0"]
def wpf_ok(R, T, need):
    return [f"v_subrev_u32 v{T}, s{S_TAG}, v{R}", f"v_subrev_u32 v{T}, {need}, v{T}", f"v_xor_b32 v{T+1}, s{S_TAG+1}, v{R+1}",
            [f"v_cmp_ne_u32 s[{S_SAVE}:{S_SAVE+1}], 0, v{T+1}", f"v_cmp_lt_u32 vcc, {4-need}, v{T}", "s_nop 1", f"s_or_b64 vcc, vcc, s[{S_SAVE}:{S_SAVE+1}]", f"s_cmp_eq_u64 vcc, 0", f"s_cselect_b32 s{S_PF}, {need}, s{S_PF}"]]
def wpf_load(late, b, D, lab):
    half = 120 if late else 80
    return [f"s_cmp_ge_u32 s{S_PF}, {2 if late else 1}", f"s_cbranch_scc0 {lab}", f"s_and_b32 s{S_T0}, s{S_TG}, 1", f"s_mul_i32 s{S_T0}, s{S_T0}, {half*128}", f"s_add_u32 s{S_T0}, s{S_T0}, {(20480 if late else 0)+b*40*128}",
            "s_mov_b32 exec_hi, 0xff", f"buffer_load_dword v{D}, v{V_PF}, s[{S_WS}:{S_WS+3}], s{S_T0} offen sc1", "s_mov_b32 exec_hi, -1", f"{lab}:"]
def wpf_spare(a, D):
    a(f"s_lshr_b32 s{S_T0}, s2, 3"); a(f"s_lshl_b32 s{S_T0}, s{S_T0}, 1"); a(f"s_add_u32 s{S_T0}, s{S_T0}, s{S_FG}")
    a(f"s_and_b32 s{S_T1}, s{S_T0}, 7"); a(f"s_lshr_b32 s{S_T0}, s{S_T0}, 3"); a(f"s_mul_i32 s{S_T0}, s{S_T0}, 74"); a(f"s_mul_i32 s{S_T2}, s{S_T1}, 9"); a(f"s_cmp_eq_u32 s{S_T1}, 7"); a(f"s_cselect_b32 s{S_T2}, 64, s{S_T2}")
    a(f"s_add_u32 s{S_T0}, s{S_T0}, s{S_T2}"); a(f"s_mul_i32 s{S_T0}, s{S_T0}, 5120"); a(f"s_mul_i32 s{S_T1}, s{S_TG}, {100*128}"); a(f"s_add_u32 s{S_T0}, s{S_T0}, s{S_T1}"); a(f"s_add_u32 s{S_T0}, s{S_T0}, {WS_WT}")
    a(f"v_lshlrev_b32 v{V_PF}, 7, v0"); a("s_mov_b32 exec_hi, 0x3ffff")
    a(f"buffer_load_dword v{D}, v{V_PF}, s[{S_WS}:{S_WS+3}], s{S_T0} offen sc1"); a(f"s_add_u32 s{S_T0}, s{S_T0}, {50*128}")
    a(f"buffer_load_dword v{D}, v{V_PF}, s[{S_WS}:{S_WS+3}], s{S_T0} offen sc1"); a("s_mov_b32 exec_hi, -1")
```

```python
from p1 import *
from p1e import *
from p2 import *
from p3 import *
BR4=144
S_BW=79
def ks0(src, dst):
    return [f"s_mul_i32 s{dst}, s{src}, 7", f"s_cmp_eq_u32 s{src}, 7", f"s_cselect_b32 s{dst}, 48, s{dst}"]
def addr_b():
    return [f"v_lshlrev_b32 v{G_B}, 4, v0", f"v_add_u32 v{G_B+1}, 4096, v{G_B}",
            f"s_mul_i32 s{S_LB}, s{S_WAVE}, 10240", f"s_add_u32 s{S_LB1}, s{S_LB}, {H1}",
            ks0(S_WAVE, S_T0)+[f"s_bfe_u32 s{S_T1}, s2, 0x30003", f"s_mul_i32 s{S_T1}, s{S_T1}, 74", f"s_add_u32 s{S_BO}, s{S_T0}, s{S_T1}", f"s_mul_i32 s{S_BO}, s{S_BO}, 5120", f"s_add_u32 s{S_BO}, s{S_BO}, {WS_WT}"]]
def bstep(s):
    return {0:lambda:bload(0,BR[0]),1:lambda:bload(1,BR[1]),2:lambda:bdma(2,0),3:lambda:bdma(3,1),4:lambda:bload(4,BR[2]),5:lambda:bload(5,BR[3]),6:lambda:bload(6,BR4)}[s]()
def addr_a(a, wo):
    nk=20 if wo else 54
    a(f"s_and_b32 s{S_T0}, s2, 7"); a(f"s_lshl_b32 s{S_T0}, s{S_T0}, 4"); a(f"s_lshr_b32 s{S_T1}, s2, 6"); a(f"s_lshl_b32 s{S_T1}, s{S_T1}, 2"); a(f"s_add_u32 s{S_T0}, s{S_T0}, s{S_T1}")
    a(f"s_mul_i32 s{S_AO}, s{S_T0}, {nk}")
    if wo: a(f"s_mul_i32 s{S_T1}, s{S_TG}, 5")
    else: a(ks0(S_WAVE, S_T1))
    a(f"s_add_u32 s{S_AO}, s{S_AO}, s{S_T1}"); a(f"s_lshl_b32 s{S_AO}, s{S_AO}, 10"); a(f"s_add_u32 s{S_AO}, s{S_AO}, {WS_O if wo else WS_H}")
    a(f"v_lshlrev_b32 v{G_A}, 4, v0")
    for i in range(1,4): a(f"v_add_u32 v{G_A+i}, {nk*1024*i}, v{G_A}")
    if wo:
        a(f"s_bfe_u32 s{S_T0}, s2, 0x30003"); a(f"s_mul_i32 s{S_T0}, s{S_T0}, 74"); a(f"s_add_u32 s{S_T0}, s{S_T0}, s{S_T1}"); a(f"s_add_u32 s{S_T0}, s{S_T0}, 54")
        a(f"s_mul_i32 s{S_BO}, s{S_T0}, 5120"); a(f"s_add_u32 s{S_BO}, s{S_BO}, {WS_WT}")
    else: a(f"v_add_u32 v{G_L+1}, s{S_LB1}, v{G_A}")
def fa_h(VA, T):
    return ks0(S_WAVE, S_T0)+[f"s_add_u32 s{S_T1}, s{S_T0}, 6", f"s_min_u32 s{S_T1}, s{S_T1}, 53", f"s_cmp_eq_u32 s{S_WAVE}, 6", f"s_cselect_b32 s{S_T1}, 47, s{S_T1}",
            f"s_mul_i32 s{S_T0}, s{S_T0}, 86", f"s_lshr_b32 s{S_T0}, s{S_T0}, 8", f"s_mul_i32 s{S_T1}, s{S_T1}, 86", f"s_lshr_b32 s{S_T1}, s{S_T1}, 8",
            f"v_add_u32 v{T}, s{S_T0}, v0", f"v_min_u32 v{T}, s{S_T1}, v{T}",
            f"v_cmp_le_u32 vcc, 14, v{T}", f"v_addc_co_u32 v{T+1}, vcc, 0, v{T}, vcc",
            f"v_mul_u32_u24 v{VA}, 52, v{T+1}", f"v_lshrrev_b32 v{VA}, 8, v{VA}",
            f"v_mul_u32_u24 v{T}, 5, v{VA}", f"v_sub_u32 v{T}, v{T+1}, v{T}", f"v_add_u32 v{T}, 3, v{T}",
            f"v_lshlrev_b32 v{T}, 5, v{T}", f"v_lshl_add_u32 v{VA}, v{VA}, 1, v{T}",
            f"s_and_b32 s{S_T0}, s2, 3", f"s_lshl_b32 s{S_T0}, s{S_T0}, 3", f"s_bfe_u32 s{S_T1}, s2, 0x10002", f"s_add_u32 s{S_T0}, s{S_T0}, s{S_T1}", f"v_add_u32 v{VA}, s{S_T0}, v{VA}", f"v_lshlrev_b32 v{VA}, 7, v{VA}"]
def fa_o(VA):
    return [f"v_and_b32 v{VA}, 7, v0", f"s_lshl_b32 s{S_T0}, s{S_TG}, 3", f"v_add_u32 v{VA}, s{S_T0}, v{VA}", f"v_lshlrev_b32 v{VA}, 3, v{VA}", f"s_and_b32 s{S_T0}, s2, 7", f"v_add_u32 v{VA}, s{S_T0}, v{VA}", f"v_lshlrev_b32 v{VA}, 7, v{VA}"]
DG=112
def d_reduce(a, RA, B, G):
    a(f"s_mov_b32 s{S_L2E}, {LOG2E|0x80000000}")
    rd=lambda r: [f"ds_read_b128 {vr(B+32*(r&1)+4*w,4)}, v{RA+r+(3 if w>=4 else 0)} offset:{(w%4)*10240}" for w in range(8)]
    a(rd(0)); a(rd(1))
    for r in range(3):
        a(f"s_waitcnt lgkmcnt({8 if r<2 else 0})")
        b=B+32*(r&1)
        for st in (4,8,16):
            for p in range(0,32,2*st):
                for e in (0,2): a(pk("v_pk_add_f32", b+p+e if st<16 else G+4*r+e, [b+p+e, b+p+st+e], "pp"))
        if r==0: a(rd(2))
        g=G+4*r; t=V_T
        for e in range(4): a(f"v_mul_f32 v{t+e}, s{S_L2E}, v{g+e}")
        for e in range(4): a(f"v_exp_f32 v{t+e}, v{t+e}")
        for e in range(4): a(f"v_add_f32 v{t+e}, 1.0, v{t+e}")
        for e in range(4): a(f"v_rcp_f32 v{t+e}, v{t+e}")
        for e in (0,2): a(pk("v_pk_mul_f32", g+e, [g+e, t+e], "pp"))
def s_final(a, RX, RA, B, G):
    for r in range(3):
        for w in range(4): a(f"ds_read_b128 {vr(B+16*r+4*w,4)}, v{RA+3+r} offset:{w*10240}")
    for r in range(3):
        for e in range(2): a(f"v_lshlrev_b32 v{B+48+4*r+2*e}, 16, v{RX+2*r+e}"); a(f"v_and_b32 v{B+49+4*r+2*e}, 0xffff0000, v{RX+2*r+e}")
    for r in range(3):
        a(f"s_waitcnt lgkmcnt({4*(2-r)})")
        b=B+16*r; x=B+48+4*r
        for e in (0,2): a(pk("v_pk_add_f32", b+e, [b+e, b+4+e], "pp")); a(pk("v_pk_add_f32", b+8+e, [b+8+e, b+12+e], "pp"))
        for e in (0,2): a(pk("v_pk_add_f32", b+e, [b+e, b+8+e], "pp"))
        for e in (0,2): a(pk("v_pk_fma_f32", x+e, [b+e, G+4*r+e, x+e], "ppp"))
        a(f"v_cvt_pk_bf16_f32 v{b}, v{x}, v{x+1}"); a(f"v_cvt_pk_bf16_f32 v{b+1}, v{x+2}, v{x+3}")
        a(f"buffer_store_dwordx2 {vr(b,2)}, v{G_X+r}, s[{S_OUT}:{S_OUT+3}], 0 offen")
```

```python
from gen_m import *
t=Gen("main_kernel", timing=False).build()
def w(path, pre, pad=0):
    out=HDR
    if pre: out+="; @launch kernel=e1_kernel grid=(256,1,1) block=(64,1,1) lds=0\n"
    out+="; @launch kernel=main_kernel grid=(256,1,1) block=(512,1,1) lds=163840\n"
    out+='.amdgcn_target "amdgcn-amd-amdhsa--gfx950"\n.text\n'+t+"\n"
    if pad: out+=f".rept {pad}\n s_nop 0\n.endr\n s_endpgm\n"
    out+=kernel_header("e1_kernel")+"\n    s_endpgm\n"
    out+='.section .rodata,"a"\n'+kernel_desc("main_kernel",256)+kernel_desc("e1_kernel",32)
    open(path,"w").write(out)
w("q0.s", False)
w("q1.s", True)
w("q2.s", False, 100000)
```

```python
import sys
from asmlib import *
from p1 import *
from p1e import *
from p2 import *
from p3 import *
from p4 import *
from p5 import *
KS0[0]=ks0
import hazard
KN="recurrent_scan__linear_kernel_hedgehog__swiglu_ffn__prompt_kernel"
HDR = open("recurrent_scan__linear_kernel_hedgehog__swiglu_ffn__prompt.s.ref").read().split("; Override launch")[0]
S_ST=84
A_CS=200; R_ST=244; R_RS=244; R_D=252; R_FL=254; R_NON=242; V_FA=31; V_FB=30; R_FS=28; V_WP=25
SBUF=[128]; RPK=108; VST=26; VST2=27; S_ROT2=S_PHI; L_CSX=163072
def split(L, n):
    k=len(L); return [L[(k*i)//n:(k*(i+1))//n] for i in range(n)]
class Gen:
    def __init__(self, name=KN, timing=False, opts=None):
        self.a=Asm(); self.name=name; self.timing=timing; self.o=opts or {}
    def stamp(self, i, a=None):
        a=a or self.a
        if self.o.get("diag")==i or self.o.get("dpt")==i: a("s_memrealtime s[96:97]"); a("s_waitcnt lgkmcnt(0)")
        if self.timing:
            a(f"s_memrealtime s[{S_ST}:{S_ST+1}]"); a("s_waitcnt lgkmcnt(0)"); a(f"v_writelane_b32 v{VST if i<16 else VST2}, s{S_ST}, {i if i<16 else i-10}")
    def gst(self, p):
        if self.timing:
            self.a(f"s_memrealtime s[{S_ST}:{S_ST+1}]"); self.a("s_waitcnt lgkmcnt(0)"); self.a(f"v_writelane_b32 v{VST2}, s{S_ST}, {p}")
    def only(self, w, lab):
        self.a(f"s_cmp_eq_u32 s{S_WAVE}, {w}"); self.a(f"s_cbranch_scc0 {lab}")
    def codepf(self):
        a=self.a
        if not self.o.get("codepf",1): return
        self.only(7, "CPF_SKIP")
        a(f"s_getpc_b64 s[{S_SAVE}:{S_SAVE+1}]")
        a.label("CPF_BASE")
        a(f"s_lshr_b32 s{S_T0}, s2, 3"); a(f"s_lshl_b32 s{S_T0}, s{S_T0}, 4"); a(f"v_add_u32 v{V_T}, s{S_T0}, v0"); a(f"v_lshlrev_b32 v{V_T}, 7, v{V_T}")
        a(f"v_min_u32 v{V_T}, K_LAST-CPF_BASE, v{V_T}"); a("s_mov_b64 exec, 0xffff")
        a(f"global_load_dword v{R_D+1}, v{V_T}, s[{S_SAVE}:{S_SAVE+1}]")
        a("s_mov_b64 exec, -1")
        a.label("CPF_SKIP")
    def wtpf_items(self, tag):
        t=V_T
        pre=[f"s_lshr_b32 s{S_T0}, s2, 3", f"s_mul_i32 s{S_T0}, s{S_T0}, 740", f"s_mul_i32 s{S_T1}, s{S_WAVE}, 93", f"s_add_u32 s{S_T0}, s{S_T0}, s{S_T1}",
             f"v_add_u32 v{V_WP}, s{S_T0}, v0", f"v_lshlrev_b32 v{V_WP}, 7, v{V_WP}", f"v_add_u32 v{V_WP}, {WS_WT}, v{V_WP}"]
        test=[f"v_subrev_u32 v{t}, s{S_TAG}, v{R_FS}", f"v_subrev_u32 v{t}, 2, v{t}", f"v_xor_b32 v{t+1}, s{S_TAG+1}, v{R_FS+1}", f"v_lshl_or_b32 v{t}, v{t+1}, 1, v{t}", f"v_or_b32 v{t}, v{t}, v{t+1}",
              [f"v_cmp_lt_u32 vcc, 1, v{t}", "s_nop 1", f"s_cmp_eq_u64 vcc, 0", f"s_cselect_b32 s{S_ROW}, 1, 0"]]
        def ld(i, lanes):
            it=[f"s_cmp_eq_u32 s{S_ROW}, 1", f"s_cbranch_scc0 {tag}_WP{i}"]
            if lanes<64: it+=[f"s_mov_b64 exec, {(1<<lanes)-1}"]
            if i: it+=[f"v_add_u32 v{V_WP}, 8192, v{V_WP}"]
            it+=[f"buffer_load_dword v{R_D}, v{V_WP}, s[{S_WS}:{S_WS+3}], 0 offen sc1", "s_mov_b64 exec, -1", f"{tag}_WP{i}:"]
            return ("cond", "wpf", it)
        return pre, test, ld(0,64), ld(1,29)
    def phase1(self, gu):
        a=self.a; o=self.o; tag="GU" if gu else "QKV"; vm0=VM(); lp=Loop(gu, vm0, o)
        (w_dma_addr_gu if gu else w_dma_addr_qkv)(a)
        if self.timing: a("s_memrealtime s[90:91]")
        if o.get("dpt")=="addr": a("s_memrealtime s[96:97]")
        a("s_waitcnt lgkmcnt(0)")
        if o.get("dpt")=="karg": a("s_memrealtime s[96:97]")
        if self.timing: a("s_memrealtime s[92:93]")
        srds_common(a); (srds_gu if gu else srds_qkv)(a); a(f"s_mov_b32 s{S_XHI}, {128*1280}")
        RC=[184,192,216,224,232]
        a(f"s_cmp_lg_u32 s{S_FG}, 0"); a(f"s_cbranch_scc1 {tag}_ROLEP")
        for loader in (1,0):
            vm=VM(); vm.ops=list(vm0.ops); lp.vm=vm; rt_=f"{tag}{'L' if loader else 'P'}"
            sch={}
            def add(c,h,items): sch.setdefault((c,h),[]).extend(items)
            def over(phases, L):
                for ph,part in zip(phases, split(L,len(phases))): add(ph[0],ph[1],part)
            if not loader: a.label(f"{tag}_ROLEP")
            npre=0; xl=1
            for ch in o.get("ordL","sWXr") if loader else o.get("ordP","sacWXrc"):
                if ch=="a": (cs_addr_gu if gu else cs_addr_qkv)(a)
                if ch=="c": lp.put(a, [("vm",f"c{npre}", colsum_issue(RC[npre], npre), 2)]); npre+=1
                if ch=="x": lp.put(a, [("vm","xpf", xpf2_item(V_T, R_D, xl, 4))]); xl+=4
                if ch=="y": lp.put(a, [("vm","xpf", xpf2_item(V_T, R_D, xl, 2))]); xl+=2
                if ch=="X": lp.put(a, lp.dma_x(0))
                if ch=="W": lp.put(a, lp.dma_w(0))
                if ch=="A": lp.put(a, lp.dma_x_all(0)+lp.dma_w_all(0))
                if ch=="s": stats_issue(a, R_ST, vm)
                if ch=="r":
                    if self.timing: a("s_memrealtime s[94:95]")
                    srd(a, S_DBG, P(9), 256)
                    if not gu:
                        if loader: nonce_write(a); vm.add("nonce", False)
                        phi_dma(a, vm, rt_)
                    lp.read_addr(a)
                    if not gu and not loader: lds_zero_init(a)
            if not any(t in ("W0","X0") for t,_ in vm.ops): vm.add("W0", False); vm.ops.insert(0, vm.ops.pop())
            a(f"s_waitcnt vmcnt({vm.n_after({'W0','X0'})}) lgkmcnt(0)"); a("s_barrier")
            self.stamp(2)
            if self.timing: a("s_memtime s[98:99]")
            tmp=Asm(); st=stats_compute(tmp, R_ST, 200 if loader else 200, "ret", "sc1", S_L2E)
            stl=[x.strip() for x in tmp.lines]+[("vm","statst",st)]
            if loader:
                if o.get("prioL",1): a("s_setprio 1")
                lp.put(a, lp.dma_w_all(1)+lp.dma_x_all(1))
                x2=lp.dma_x_all(2); add(0,1,x2[:4]); add(1,0,x2[4:])
                over([(1,1),(2,0),(2,1),(3,0),(3,1),(4,0)], stl)
            else:
                for r in range(npre,5): add(*o.get("cat",[(0,0),(0,0),(1,1),(2,0),(2,1)])[r], [("vm",f"c{r}", colsum_issue(RC[r], r), 2)])
                if o.get("xpf",0) and xl<10: add(0,1, [("vm","xpf", xpf2_item(V_T, R_D, xl, min(8,10-xl)))])
                over([(1,1),(2,0),(2,1),(3,0)], [("wait","stats")]+stl)
                ph=[(c,h) for c in range(3,8) for h in range(2)][1:-1]
                L=[]
                for r in range(5): L+=[("wait",f"c{r}")]+colsum_acc(RC[r], A_CS, V_T, r==0, gu)
                L+=colsum_fold(A_CS, V_T, gu)
                over(ph, L)
            add(3,0, [("vm","non", nonce_issue(R_NON))])
            over([(8,0),(8,1),(9,0)], fa_spare(V_FB, V_T)+([] if loader else fa_stats(V_FA, V_T)))
            if not loader and o.get("wpf",0):
                w0,w1=o.get("wpf_at",(9,13))
                add(9,0, wpf_addr())
                add(w0,0, [("vm","pw1", poll_issue(V_FB, R_FS))]); add(w0+1,0, [("wait","pw1")]+wpf_ok(R_FS, V_T, 1)+wpf_ok(R_FS, V_T, 2))
                add(w0+1,1, [("cond","wpf", wpf_load(0,0,R_D,f"{rt_}_WA0"))]); add(w0+3,1, [("cond","wpf", wpf_load(0,1,R_D,f"{rt_}_WA1"))])
                add(w1+1,0, [("wait","psp")]+wpf_ok(R_FS, V_T, 2))
                for b in range(3): add(w1+1+2*b,1, [("cond","wpf", wpf_load(1,b,R_D,f"{rt_}_WB{b}"))])
                if not gu: add(13,0, [("vm","psp", poll_issue(V_FB, R_FS))])
            over([(11,1),(12,0),(12,1)], addr_b()+[f"s_mov_b32 s{S_PRE}, 0"])
            if gu and o.get("inloopb",1):
                add(*o.get("psp1",(13,0)), [("vm","psp", poll_issue(V_FB, R_FS))])
                chk=[("wait","psp")]+flag_ok_items(R_FS, V_T, 1, 1)
                gi=lambda s_,k: ("cond", f"B{s_}", guard(bstep(s_)[k[0]:k[1]], 1, f"{rt_}_B{s_}_{k[0]}"))
                if loader:
                    add(16,0, chk)
                    add(16,1, [gi(0,(0,3)), gi(0,(3,5))]); add(17,0, [gi(1,(0,3)), gi(1,(3,5))])
                    add(18,0, [gi(2,(0,3)), gi(2,(3,5))]); add(18,1, [gi(3,(0,3)), gi(3,(3,5))])
                else:
                    add(16,0, chk)
                    w7=("cond","B3",[f"s_cmp_eq_u32 s{S_WAVE}, 7", f"s_cbranch_scc1 {rt_}_W7"]+guard(bstep(3)[4:5], 1, f"{rt_}_B3_4")+[f"{rt_}_W7:"])
                    add(18,0, [gi(2,(0,3)), gi(2,(3,5))]); add(18,1, [gi(3,(0,3)), gi(3,(3,4)), w7])
                    add(19,0, [gi(0,(0,3)), gi(0,(3,5))]); add(19,1, [gi(1,(0,3)), gi(1,(3,5))])
            add(*((17,1) if gu else (15,1)), [("vm","psp2", poll_issue(V_FB, R_FS))])
            if not gu:
                tmp=Asm(); rds=phi_frags(tmp, V_T+6)
                add(15,1, [x.strip() for x in tmp.lines]); over([(15,1),(16,0),(16,1),(17,0)], rds)
                add(17,0, [("wait","psp2")]+flag_ok_items(R_FS, V_T, 2, 3))
                def qg(s_,k0,k1,w7=False):
                    it=[f"s_cmp_eq_u32 s{S_TYPE}, {T_Q}", f"s_cbranch_scc0 {rt_}_Q{s_}{k0}"]
                    if w7: it+=[f"s_cmp_eq_u32 s{S_WAVE}, 7", f"s_cbranch_scc1 {rt_}_Q{s_}{k0}"]
                    return ("cond", f"B{s_}", it+guard(bstep(s_)[k0:k1], 3, f"{rt_}_QB{s_}{k0}")+[f"{rt_}_Q{s_}{k0}:"])
                add(18,0, [qg(2,0,3), qg(2,3,5)]); add(18,1, [qg(3,0,3), qg(3,3,4), qg(3,4,5,True)])
            if not loader: add(12,0, [("cond","pst", [f"s_cmp_eq_u32 s{S_WAVE}, 6", f"s_cbranch_scc0 {rt_}_NPS"]+poll_issue(V_FA, R_FL)+[f"{rt_}_NPS:"])])
            def extra(c, half):
                out=[]
                for x in sch.get((c,half),[]):
                    out.append(("lazy", x[1]) if (isinstance(x,tuple) and x[0]=="wait") else x)
                return out
            def post_bar(a, S):
                if self.timing and o.get("lstamp"): a(f"s_memtime s[{86}:{87}]"); a("s_waitcnt lgkmcnt(0)"); a("s_sub_u32 s86, s86, s98"); a(f"v_writelane_b32 v{VST2}, s86, {S}")
                if S==2:
                    a(f"s_waitcnt vmcnt({vm.n_after({'non'})})"); nonce_take(a, R_NON, f"{rt_}_NON")
                if loader:
                    if S==7:
                        epi_load_rs(a, R_RS)
                        for _ in range(4): vm.add("rs")
                    return
                if S==3:
                    self.only(4, f"{rt_}_NCS"); colsum_store(a, 184, V_T); a.label(f"{rt_}_NCS"); vm.add("csst", False)
                if S==4:
                    self.only(5, f"{rt_}_NP1"); publish(a, 1, V_T); a.label(f"{rt_}_NP1"); vm.add("pub", False)
                if S==6:
                    self.only(6, f"{rt_}_NG")
                    a(f"s_waitcnt vmcnt({vm.n_after({'pst'})})"); poll_wait(a, V_FA, R_FL, V_T, 1, f"{rt_}_PS", True)
                    colsum_gather_issue(a, 184, V_T); a.label(f"{rt_}_NG")
                    for _ in range(8): vm.add("gat", False)
                if S==7:
                    epi_load_rs(a, R_RS)
                    for _ in range(4): vm.add("rs")
                    self.only(6, f"{rt_}_NG2"); a("s_waitcnt vmcnt(4)"); a(colsum_gather_sum(184, V_T, L_CSX)); a.label(f"{rt_}_NG2")
            pre=lambda S: (["statst"] if S==3 else [])+(["csst"] if (S==4 and not loader) else [])
            lp.emit2(a, loader, extra, post_bar, pre)
            if gu:
                a(f"s_cmp_eq_u32 s{S_PRE}, 1"); a(f"s_cbranch_scc1 {rt_}_WB"); a("s_waitcnt vmcnt(0)"); a.label(f"{rt_}_WB"); a(f"s_waitcnt vmcnt({10 if loader else 19})")
            if loader:
                a("s_setprio 0"); a(f"s_branch {tag}_LOOPEND")
        a.label(f"{tag}_LOOPEND")
        a("s_nop 7")
        self.stamp(3)
        if self.timing: a("s_memtime s[100:101]"); a("s_waitcnt lgkmcnt(0)"); a(f"s_sub_u32 s100, s100, s98"); a(f"v_writelane_b32 v{VST}, s100, 14")
        epi_read_cs(a, gu, L_CSX)
        if gu:
            a(f"s_cmp_eq_u32 s{S_PRE}, 1"); a("s_cbranch_scc0 GU_NO3"); a(flag_ok_items(R_FS, V_T+4, 2, 3)); a.label("GU_NO3")
            a("s_waitcnt lgkmcnt(0)")
            b4=bstep(4)
            def hook(i):
                if i<5: a(guard([b4[i]], 3, f"GU_B4_{i}"))
            epi_gu(a, R_RS, hook=hook)
        else:
            gl=lambda pre: [guard([x], 3, f"{pre}_{s_}_{k}") for s_ in (0,1,4,2,3) for k,x in enumerate(bstep(s_))]
            a(f"s_cmp_eq_u32 s{S_TYPE}, {T_KV}"); a("s_cbranch_scc1 EKV")
            epi_q2(a, R_RS)
            a(f"s_cmp_eq_u32 s{S_PRE}, 3"); a("s_cbranch_scc0 Q_NOB")
            a(fa_q(G_F)); a(poll_issue(G_F, 20))
            for s_ in (0,1,4): a(bstep(s_))
            a("s_waitcnt vmcnt(15)"); a("s_branch P1_FIN2")
            a.label("Q_NOB"); a("s_branch P1_FIN")
            a.label("EKV"); epi_kv5(a, R_RS, st=(lambda i: self.stamp(i) if i>15 else None), bk=gl("KVK"), bv=gl("KVV"))
    def phase2(self):
        a=self.a; o=self.o; vm=VM()
        RPL=20; RPL2=22; RPL3=24; WA=14; G_F3=31
        BH={6:BR4,0:BR[0],1:BR[1],4:BR[2],5:BR[3],2:BR[0],3:BR[1],7:BR[2]}; BW=[224,164,184,204]; G=184
        def put(items, tag):
            for x in items: a(x); vm.add(tag)
        def head_b(L):
            self.only(7, f"P2{L}_W7"); a(f"s_or_b32 s{S_T0}, s{S_TYPE}, 2"); a(f"s_cmp_eq_u32 s{S_T0}, 2"); a(f"s_cbranch_scc0 P2{L}_W7"); a(f"s_cmp_eq_u32 s{S_PRE}, 0"); a(f"s_cbranch_scc1 P2{L}_W7")
            a(f"s_add_u32 s{S_T3}, s{S_BO}, {3*5120}"); a(bstep(3)[4]); a.label(f"P2{L}_W7")
            a(f"s_cmp_eq_u32 s{S_PRE}, 3"); a(f"s_cbranch_scc1 P2{L}_HAVE")
            poll_wait(a, V_FB, R_FS, V_T, 2, f"P2{L}_PSP", True)
            a(guard(sum((bstep(s) for s in (0,1,2,3)), []), 0, f"P2{L}_E"))
            a(bstep(4))
            a.label(f"P2{L}_HAVE")
        def gemm(ORD, bufs, late=None, hook=None):
            n=len(ORD); nb=len(bufs); n0=nb-(1 if late else 0)
            for p in range(min(n0,n)): put(aload(ORD[p], bufs[p]), f"A{ORD[p]}")
            for p,s in enumerate(ORD):
                a(f"s_waitcnt vmcnt({vm.n_after({f'A{s}', f'B{s}'})})" + (" lgkmcnt(0)" if s in (2,3,7) else ""))
                if o.get("gstamp"): self.gst(p)
                a(g2_mfma(BH[s], bufs[p%nb], p==0))
                if p==0 and late: put(aload(ORD[nb-1], bufs[nb-1]), f"A{ORD[nb-1]}")
                if p+nb<n: put(aload(ORD[p+nb], bufs[p%nb]), f"A{ORD[p+nb]}")
                nx={0:(2,0),1:(3,1),4:(7,2)}.get(s)
                if nx and nx[0] in ORD:
                    a(f"s_waitcnt vmcnt({vm.n_after({f'B{nx[0]}'})})"); a(lread(nx[1], BH[s]))
                if hook: hook(p)
        for s in range(5): vm.add(f"B{s}", False)
        pub_prep(a, 2, V_T); pub_fire(a, V_T, 0, "P2_NP2", lambda: cnt_zero(a)); vm.add("pub", False)
        self.stamp(5)
        top=list(vm.ops)
        a(f"s_cmp_eq_u32 s{S_FG}, 0"); a("s_cbranch_scc0 P2_S")
        head_b("D")
        for s in (6,5,7): put(bstep(s), f"B{s}")
        a(fa_h(G_F3, V_T)); put([poll_issue(G_F3, RPL3)], "pg")
        srd(a, S_OUT, P(8), 2048*1280); addr_a(a, 0); a(f"v_add_u32 v{G_L}, s{S_LB}, v{G_A}"); red_addr(a, WA, None)
        a("s_waitcnt vmcnt(0)")
        poll_wait(a, G_F3, RPL3, V_T, 2, f"P2D_PH", True)
        self.stamp(8)
        def hookd(p):
            if p==3: x5_issue(a, 244, 164, V_T); ra5(a, 164+5, V_T); [vm.add("x") for _ in range(5)]
        gemm([6,4,5,0,1,7,2,3], AB, True, hookd)
        a("s_nop 7"); self.stamp(9)
        red_write(a, WA)
        a("s_waitcnt lgkmcnt(0)"); a("s_barrier")
        d_reduce5(a, 169, 32, G)
        self.stamp(1)
        a("s_barrier")
        a("s_waitcnt vmcnt(0)"); x5_unpack(a, 244, 204)
        a("s_barrier")
        s_final5(a, 204, 164, 169, 32, G)
        a("s_branch P2_END")
        a.label("P2_S"); vm.ops=list(top)
        a(f"s_setprio {o.get('sprio',2)}")
        poll_wait(a, G_F, RPL, V_T, 2, "P2_PQ", True)
        o2_pq(a, 32)
        for b in range(2):
            for _ in range(3): vm.add(f"q{b}")
        a(fa_kv(G_F2, V_T)); a(fa_h(G_F3, V_T)); addr_a(a, 0); red_addr(a, WA, None); a(f"v_add_u32 v{G_L}, s{S_LB}, v{G_A}")
        SB=[112,128,144,240]; top2=list(vm.ops)
        def sb(L):
            head_b(L)
            a(f"s_cmp_ge_u32 s{S_WAVE}, 6"); a(f"s_cbranch_scc1 P2{L}_N5"); a(bstep(5)); a.label(f"P2{L}_N5"); vm.add("B5", False)
            put([poll_issue(G_F3, RPL3)], "pg")
        def sgemm(L, samp):
            poll_wait(a, G_F3, RPL3, V_T, 2, f"P2{L}_PH", True)
            self.stamp(8)
            mid=list(vm.ops)
            def hooks(n):
                def h(p):
                    if samp and p==n-2: put([poll_issue(G_F2, RPL2)], "pk")
                return h
            a(f"s_cmp_ge_u32 s{S_WAVE}, 6"); a(f"s_cbranch_scc1 P2{L}_G5")
            gemm([4,5,0,1,2,3], SB, True, hooks(6)); a(f"s_branch P2{L}_GD")
            a.label(f"P2{L}_G5"); vm.ops=list(mid); gemm([4,0,1,2,3], SB, True, hooks(5))
            a.label(f"P2{L}_GD")
        def fire(L, w1, wn):
            pub_prep(a, 3, V_T)
            self.only(7, f"P2{L}_N7")
            a(f"s_waitcnt vmcnt({wn})"); cnt_wait(a, 1, 3, V_T+4, f"P2{L}_CB")
            a("s_mov_b64 exec, 1"); a(f"buffer_store_dwordx2 {vr(V_T,2)}, v{V_T+2}, s[{S_WS}:{S_WS+3}], 0 offen sc1"); a("s_mov_b64 exec, -1")
            if w1: red_write(a, WA, (1,))
            a(f"s_branch P2{L}_N7b")
            a.label(f"P2{L}_N7")
            if w1: red_write(a, WA, (1,))
            a(f"s_waitcnt vmcnt({wn})"); cnt_add(a, 1, V_T+4)
            a.label(f"P2{L}_N7b")
        a(f"s_cmp_eq_u32 s{S_TYPE}, {T_KV}"); a("s_cbranch_scc1 P2_SK")
        sb("S")
        for b in range(2):
            a(f"s_waitcnt vmcnt({vm.n_after({f'q{b}'})})"); o_softmax(a, 32+10*b, 60, 112)
            for i in range(3): a(f"ds_write_b128 v{G_L}, {vr(112+4*i,4)} offset:{3072*b+1024*i}")
        a("s_waitcnt vmcnt(0)")
        sgemm("S", True)
        O1=112; RP=116; F=148; D=172; AF=116
        o2_addr0(a, O1)
        a("s_waitcnt vmcnt(0)"); self.stamp(9)
        poll_wait(a, G_F2, RPL2, V_T+2, 2, f"P2_PK", True)
        self.stamp(6)
        o2_part(a, RP, O1)
        for i in range(6): a(f"ds_read_b128 {vr(F+4*i,4)}, v{G_L} offset:{1024*i}")
        o2_addr(a, O1)
        a("s_waitcnt lgkmcnt(0)")
        red_write(a, WA, (2,3))
        a("s_waitcnt vmcnt(0)")
        o2_kvz(a, RP, O1); a("s_waitcnt lgkmcnt(0)")
        cnt_add(a, 0, V_T); cnt_wait(a, 0, 4, V_T, "P2_CA")
        o2_finish(a, AF, F, D, O1)
        red_write(a, WA, (0,))
        fire("S", True, 0)
        self.stamp(7)
        a("s_branch P2_SJ")
        a.label("P2_SK"); vm.ops=list(top2)
        O1=52; RP=112; F=140; D=60; AF=112
        o2_addr0(a, 56)
        a(f"v_mov_b32 v{O1}, v{V_T}")
        put([poll_issue(G_F2, RPL2)], "pk")
        a(f"s_waitcnt vmcnt({vm.n_after({'q0'})})"); o_softmax(a, 32, 60, F)
        a("s_waitcnt vmcnt(0)")
        poll_wait(a, G_F2, RPL2, V_T+2, 2, f"P2K_PK", True)
        self.stamp(6)
        o2_part(a, RPK, 56)
        o_softmax(a, 42, 60, F+12)
        a(f"v_mov_b32 v{V_T}, v{O1}"); o2_addr(a, O1)
        a("s_waitcnt vmcnt(0)")
        o2_kvz(a, RPK, O1); a("s_waitcnt lgkmcnt(0)")
        cnt_add(a, 0, V_T); cnt_wait(a, 0, 4, V_T, "P2K_CA")
        o2_finish(a, RPK, F, D, O1)
        vm.ops=[(t,False) for t,_ in vm.ops]
        fire("K", False, 0)
        self.stamp(7)
        sb("K")
        a("s_waitcnt vmcnt(0)")
        sgemm("K", False)
        a("s_nop 7"); self.stamp(9)
        red_write(a, WA)
        a.label("P2_SJ")
        addr_bw(a); a(fa_o(G_F3))
        for s_ in range(4): a(bload(s_, BW[s_]))
        addr_a(a, 1)
        a("s_waitcnt lgkmcnt(0)"); a("s_barrier")
        poll_wait(a, G_F3, 250, V_T, 3, "P2_PO", False)
        self.stamp(11)
        vm.ops=[]
        AS=[112,128,144]
        for p in range(3): put(aload(p, AS[p]), f"A{p}")
        for p in range(5):
            a(f"s_waitcnt vmcnt({vm.n_after({f'A{p}'} | ({'B4'} if p==4 else set()))})")
            a(g2_mfma(BW[p%4], AS[p%3], p==0))
            if p<2: put(aload(p+3, AS[p]), f"A{p+3}")
            if p==0: put(bload(4, BW[0]), "B4")
        self.stamp(12)
        a("s_barrier")
        red_write(a, WA)
        a("s_waitcnt lgkmcnt(0)"); a("s_barrier")
        a.label("P2_END")
    def build(self):
        a=self.a; a.raw(kernel_header(self.name)); SLEEP[0]=self.o.get('sleep',2)
        a("s_cmp_ge_u32 s2, 256"); a("s_cbranch_scc1 K_END")
        if self.timing or self.o.get("diag") is not None: a("s_memrealtime s[88:89]")
        load_ptrs(a)
        decode_ids(a); self.codepf(); x_dma_addr(a)
        a(f"s_mov_b32 s{S_WOFF}, 0")
        a(f"s_cmp_eq_u32 s{S_TYPE}, {T_SP}"); a("s_cbranch_scc1 SPARE")
        a(f"s_cmp_eq_u32 s{S_TYPE}, {T_GU}"); a("s_cbranch_scc0 P1_QKV")
        self.phase1(1); a("s_branch P1_FIN")
        a.label("P1_QKV"); self.phase1(0); a("s_branch P1_FIN")
        a.label("SPARE")
        if self.o.get("dpt") in ("addr","karg"): a("s_mov_b32 s96, s88")
        a("s_waitcnt lgkmcnt(0)"); srds_common(a); srd(a, S_DBG, P(9), 256)
        def mid():
            a(nonce_issue(R_NON)); a(fa_spare(V_FB, V_T))
            a("s_waitcnt vmcnt(21)"); self.stamp(1); stats_compute(a, R_ST, XB[0]); self.stamp(2)
            return 2
        def early():
            nonce_take(a, R_NON, "SP_NON")
            self.only(1, "SP_NP1"); publish(a, 1, V_T); a.label("SP_NP1")
        stats_issue(a, R_ST); a(f"s_mov_b32 s{S_ROT2}, s{S_ROW}")
        relayout3(a, mid, early)
        self.stamp(3)
        a("s_waitcnt vmcnt(0)"); a("s_barrier")
        self.only(1, "SP_NP2"); publish(a, 2, V_T); a.label("SP_NP2")
        a(addr_b()); poll_wait(a, V_FB, R_FS, V_T, 2, "SP_PSP", False)
        for s in (0,1,4,2,3): a(bstep(s))
        a(f"s_mov_b32 s{S_PRE}, 3")
        a.label("P1_FIN")
        a(fa_q(G_F)); a(poll_issue(G_F, 20))
        a("s_waitcnt vmcnt(0)")
        a.label("P1_FIN2")
        self.stamp(4)
        self.phase2()
        if self.timing:
            a("s_waitcnt vmcnt(0)"); self.stamp(10)
            a(f"v_writelane_b32 v{VST}, s{S_TYPE}, 15"); a(f"v_writelane_b32 v{VST}, s88, 0"); a(f"v_writelane_b32 v{VST}, s94, 13")
            a(f"s_lshl_b32 s{S_T0}, s2, 3"); a(f"s_add_u32 s{S_T0}, s{S_T0}, s{S_WAVE}"); a(f"s_lshl_b32 s{S_T0}, s{S_T0}, 6"); a(f"s_add_u32 s{S_T0}, s{S_T0}, {WS_DBG}")
            a("v_lshlrev_b32 v3, 2, v0"); a("s_mov_b64 exec, 0xffff")
            a(f"buffer_store_dword v{VST}, v3, s[{S_WS}:{S_WS+3}], s{S_T0} offen")
            a(f"s_add_u32 s{S_T0}, s{S_T0}, 0x20000")
            a(f"buffer_store_dword v{VST2}, v3, s[{S_WS}:{S_WS+3}], s{S_T0} offen")
        if self.o.get("diag") is not None:
            a("s_waitcnt vmcnt(0)"); a("s_memrealtime s[90:91]"); a("s_waitcnt lgkmcnt(0)")
            if self.o["diag"]==0: a("s_mov_b32 s96, s90")
            if self.o["diag"]<0:
                a("s_sub_u32 s92, s96, s88"); a(f"s_mul_i32 s92, s92, {-self.o['diag']}")
            else: a(f"s_lshr_b32 s92, s{S_TAG}, 3"); a("s_sub_u32 s92, s96, s92")
            pass; a("s_and_b32 s92, s92, 0x1fffffff"); a("s_min_u32 s92, s92, 20000")
            a.label("DIAG_SP"); a("s_memrealtime s[94:95]"); a("s_waitcnt lgkmcnt(0)"); a("s_sub_u32 s94, s94, s90"); a("s_cmp_lt_u32 s94, s92"); a("s_cbranch_scc1 DIAG_SP")
        a.label("K_END")
        a.label("K_LAST"); a("s_endpgm")
        return hazard.fix(a.text())
def fusedfile(path, opts=None, timing=False):
    t=Gen(KN, timing=timing, opts=opts).build()
    out=HDR+"; @launch grid=(256,1,1) block=(512,1,1) lds=163840\n"+'.amdgcn_target "amdgcn-amd-amdhsa--gfx950"\n.text\n'+t+"\n"+'.section .rodata,"a"\n'+kernel_desc(KN,256)
    open(path,"w").write(out)
if __name__=="__main__":
    opts=eval(sys.argv[1]) if len(sys.argv)>1 else {}
    fusedfile("o_t.s", dict(opts,lstamp=1), True)
    fusedfile("o.s", opts, False)
```

```python
from p1 import *
E_RS=128
E_AB=136
E_CS=144
E_T=168
E_PHI=184
LO="op_sel:[{}] op_sel_hi:[{}]"
def pk(op, d, srcs, sel, neg=None):
    assert 'h' not in sel
    lo=",".join("1" if c=='h' else "0" for c in sel); hi=",".join("0" if c=='l' else "1" for c in sel)
    s=f"{op} {vr(d,2)}, " + ", ".join(x if isinstance(x,str) else vr(x,2) for x in srcs)
    if 'l' in sel or 'h' in sel: s+=f" op_sel:[{lo}] op_sel_hi:[{hi}]"
    if neg: n=",".join(str(x) for x in neg); s+=f" neg_lo:[{n}] neg_hi:[{n}]"
    return s
def epi_load_rs(a, RS=E_RS, flags="sc1"):
    a(f"s_lshl_b32 s{S_T0}, s{S_RT}, 8"); a(f"s_lshl_b32 s{S_T1}, s{S_TG}, 6"); a(f"s_add_u32 s{S_T0}, s{S_T0}, s{S_T1}"); a(f"s_lshl_b32 s{S_T0}, s{S_T0}, 3"); a(f"s_add_u32 s{S_T0}, s{S_T0}, {WS_RS}")
    a(f"v_and_b32 v{V_T}, 15, v0"); a(f"v_lshlrev_b32 v{V_T}, 3, v{V_T}")
    for t in range(4): a(f"buffer_load_dwordx2 {vr(RS+2*t,2)}, v{V_T}, s[{S_WS}:{S_WS+3}], s{S_T0} offen offset:{128*t} {flags}")
def epi_read_cs(a, gu, L_CS2=L_CS2):
    t=V_T
    a(f"v_lshrrev_b32 v{t}, 4, v0"); a(f"v_mul_u32_u24 v{t}, {16 if gu else 80}, v{t}")
    a(f"s_mul_i32 s{S_T0}, s{S_FG}, {192 if gu else 320}"); a(f"s_add_u32 s{S_T0}, s{S_T0}, {L_CS2}"); a(f"v_add_u32 v{t}, s{S_T0}, v{t}")
    for b in range(6 if gu else 5):
        off = ((b%3)*64 + (b//3)*384) if gu else b*16
        a(f"ds_read_b128 {vr(E_CS+4*b,4)}, v{t} offset:{off}")

def epi_gu(a, RS=E_RS, flags="sc1", hook=None, vm=None, var=0):
    for t in range(4):
        a(f"v_rcp_f32 v{E_AB+2*t}, v{RS+2*t+1}"); a(f"v_mul_f32 v{E_RS+2*t}, v{RS+2*t+1}, v{RS+2*t+1}")
    for t in range(4): a(f"v_mul_f32 v{E_AB+2*t}, {LOG2E|0x80000000}, v{E_AB+2*t}")
    vo=V_T; vmid=V_T+1
    a(f"v_lshlrev_b32 v{vo}, 4, v0")
    a(f"v_lshrrev_b32 v{vmid}, 5, v0"); a(f"v_mul_u32_u24 v{vmid}, {54*1024-512}, v{vmid}"); a(f"v_add_u32 v{vmid}, v{vmid}, v{vo}")
    a(f"s_lshl_b32 s{S_T0}, s{S_FG}, 9"); a(f"v_add_u32 v{vmid}, s{S_T0}, v{vmid}")
    sf, sm = S_EXC, S_EXC+1
    a(f"s_lshl_b32 s{sf}, s{S_RT}, 4"); a(f"s_lshl_b32 s{S_T1}, s{S_TG}, 2"); a(f"s_add_u32 s{sf}, s{sf}, s{S_T1}"); a(f"s_mul_i32 s{sf}, s{sf}, 54")
    a(f"s_mul_i32 s{S_T1}, s{S_CT}, 3"); a(f"s_add_u32 s{sf}, s{sf}, s{S_T1}"); a(f"s_lshl_b32 s{sf}, s{sf}, 10"); a(f"s_add_u32 s{sf}, s{sf}, {WS_H}")
    a(f"s_add_u32 s{sm}, s{sf}, 1024"); a(f"s_lshl_b32 s{S_T2}, s{S_FG}, 11"); a(f"s_add_u32 s{sf}, s{sf}, s{S_T2}")
    def hblock(pts, dst):
        el=[(ACC+4*(4*p+t)+e, ACC+4*(4*(3+p)+t)+e, E_CS+4*p+e, E_CS+4*(3+p)+e, t) for (p,t) in pts for e in (0,2)]
        X=E_T
        for g,u,cg,cu,t in el: a(pk("v_pk_fma_f32", g, [RS+2*t, cg, g], "lpp", [1,0,0]))
        for i,(g,u,cg,cu,t) in enumerate(el): a(pk("v_pk_mul_f32", X+2*i, [g, E_AB+2*t], "pl"))
        for i,(g,u,cg,cu,t) in enumerate(el):
            a(f"v_exp_f32 v{X+2*i}, v{X+2*i}"); a(f"v_exp_f32 v{X+2*i+1}, v{X+2*i+1}"); a(pk("v_pk_fma_f32", u, [RS+2*t, cu, u], "lpp", [1,0,0]))
        for i,(g,u,cg,cu,t) in enumerate(el): a(pk("v_pk_fma_f32", X+2*i, [X+2*i, E_RS+2*t, E_RS+2*t], "pll"))
        for i,(g,u,cg,cu,t) in enumerate(el):
            a(f"v_rcp_f32 v{X+2*i}, v{X+2*i}"); a(f"v_rcp_f32 v{X+2*i+1}, v{X+2*i+1}"); a(pk("v_pk_mul_f32", g, [g, u], "pp"))
        for i,(g,u,cg,cu,t) in enumerate(el): a(pk("v_pk_mul_f32", g, [g, X+2*i], "pp"))
        for i,(g,u,cg,cu,t) in enumerate(el): a(f"v_cvt_pk_bf16_f32 v{dst+i}, v{g}, v{g+1}")
    D=[E_T+8, E_T+12]
    nst=0
    for t in range(4):
        d=D[nst%2]; hblock([(0,t),(1,t)], d)
        a(f"buffer_store_dwordx4 {vr(d,4)}, v{vo}, s[{S_WS}:{S_WS+3}], s{sf} offen {flags}")
        if vm: vm.add("est")
        if t<3: a(f"s_add_u32 s{sf}, s{sf}, {54*1024}")
        if hook: hook(nst)
        nst+=1
        if t&1:
            d=D[nst%2]; hblock([(2,t-1),(2,t)], d)
            a(f"v_permlane32_swap_b32 v{d}, v{d+2}"); a(f"v_permlane32_swap_b32 v{d+1}, v{d+3}")
            a(f"buffer_store_dwordx4 {vr(d,4)}, v{vmid}, s[{S_WS}:{S_WS+3}], s{sm} offen {flags}")
            if vm: vm.add("est")
            if t<3: a(f"s_add_u32 s{sm}, s{sm}, {2*54*1024}")
            if hook: hook(nst)
            nst+=1

def phi_dma(a, vm=None, lab=""):
    a(f"s_lshl_b32 s{S_T0}, s{S_WAVE}, 10"); a(f"s_add_u32 m0, s{S_T0}, {L_WPHI}"); a(f"v_lshlrev_b32 v{V_T}, 4, v0")
    a(f"v_add_u32 v{V_T}, s{S_T0}, v{V_T}"); a(f"v_cmp_gt_u32 vcc, 6400, v{V_T}"); a(f"s_and_b64 exec, vcc, -1")
    a(f"s_cbranch_execz PHI_SKIP{lab}")
    a(f"buffer_load_dwordx4 v{V_T}, s[{S_PHI}:{S_PHI+3}], 0 offen lds")
    a.label(f"PHI_SKIP{lab}")
    a("s_mov_b64 exec, -1")
    if vm: vm.add("phi", False)
def lds_zero_init(a):
    t=V_T
    a(f"s_lshl_b32 s{S_T0}, s{S_WAVE}, 6"); a(f"v_add_u32 v{t+4}, s{S_T0}, v0"); a(f"v_subrev_u32 v{t+4}, 448, v{t+4}")
    for i in range(4): a(f"v_mov_b32 v{t+i}, 0")
    a(f"v_cmp_gt_u32 vcc, 50, v{t+4}"); a(f"v_lshlrev_b32 v{t+4}, 4, v{t+4}"); a(f"v_add_u32 v{t+4}, {L_ZERO}, v{t+4}")
    a(f"s_and_b64 exec, vcc, -1")
    a(f"ds_write_b128 v{t+4}, {vr(t,4)}")
    a("s_mov_b64 exec, -1")
def phi_frags(a, t=V_T):
    a(f"v_lshrrev_b32 v{t}, 4, v0"); a(f"v_and_b32 v{t+1}, 3, v0"); a(f"v_cmp_eq_u32 vcc, v{t}, v{t+1}")
    a(f"v_mul_u32_u24 v{t}, 800, v{t}"); a(f"v_bfe_u32 v{t+1}, v0, 2, 2"); a(f"v_mul_u32_u24 v{t+1}, 40, v{t+1}"); a(f"v_add_u32 v{t}, v{t}, v{t+1}")
    a(f"s_mul_i32 s{S_T0}, s{S_FG}, 3200"); a(f"s_cmp_eq_u32 s{S_TYPE}, {T_KV}"); a(f"s_cselect_b32 s{S_T0}, 0, s{S_T0}"); a(f"s_add_u32 s{S_T0}, s{S_T0}, {L_WPHI}"); a(f"v_add_u32 v{t}, s{S_T0}, v{t}")
    a(f"v_mov_b32 v{t+1}, {L_ZERO}"); a(f"v_cndmask_b32 v{t}, v{t+1}, v{t}, vcc")
    L=[]
    for b in range(5):
        for s in range(3):
            for rd in range(2):
                r=E_PHI+4*(3*b+s)+2*rd
                if s==2 and rd==1: a(f"v_mov_b32 v{r}, 0"); a(f"v_mov_b32 v{r+1}, 0")
                else: L.append(f"ds_read_b64_tr_b16 {vr(r,2)}, v{t} offset:{(8*s+4*rd)*40+b*8}")
    return L
def ln_pack(a, t, dst, RS):
    el=[(ACC+4*(4*b+t)+e, E_CS+4*b+e) for b in range(5) for e in (0,2)]
    for g,c in el: a(pk("v_pk_fma_f32", g, [RS+2*t, c, g], "lpp", [1,0,0]))
    for g,c in el: a(pk("v_pk_mul_f32", g, [g, E_AB+2*t], "pl"))
    for k,(g,c) in enumerate(el): a(f"v_cvt_pk_bf16_f32 v{dst+k}, v{g}, v{g+1}")
def phi_mfma(a, t, F):
    for s in range(3):
        for b in range(5):
            ac=ACC+4*(4*b+t)
            a(f"v_mfma_f32_16x16x32_bf16 {vr(ac,4)}, {vr(E_PHI+4*(3*b+s),4)}, {vr(F+4*s,4)}, {vr(ac,4) if s else 0}")
def epi_rstd(a, RS):
    for t in range(4): a(f"v_rcp_f32 v{E_AB+2*t}, v{RS+2*t+1}")
def epi_q(a, RS=E_RS, flags="sc1", vm=None):
    epi_rstd(a, RS)
    F=[E_T, 112]
    for f in F: a(f"v_mov_b32 v{f+10}, 0"); a(f"v_mov_b32 v{f+11}, 0")
    for t in range(4):
        ln_pack(a, t, F[t&1], RS); phi_mfma(a, t, F[t&1])
    v16=V_T; v8=V_T+1; t_=V_T+2
    a(f"v_lshrrev_b32 v{t_}, 4, v0"); a(f"v_mul_u32_u24 v{t_}, 81920, v{t_}"); a(f"v_and_b32 v{v8}, 15, v0")
    a(f"v_lshl_add_u32 v{v16}, v{v8}, 4, v{t_}"); a(f"v_lshl_add_u32 v{v8}, v{v8}, 3, v{t_}")
    a(f"s_lshl_b32 s{S_T0}, s{S_CT}, 1"); a(f"s_add_u32 s{S_T0}, s{S_T0}, s{S_FG}"); a(f"s_mul_i32 s{S_T0}, s{S_T0}, {4*81920}"); a(f"s_add_u32 s{S_T0}, s{S_T0}, {WS_PQ}")
    a(f"s_lshl_b32 s{S_T1}, s{S_RT}, 8"); a(f"s_lshl_b32 s{S_T2}, s{S_TG}, 6"); a(f"s_add_u32 s{S_T1}, s{S_T1}, s{S_T2}")
    a(f"s_lshl_b32 s{S_T2}, s{S_T1}, 3"); a(f"s_add_u32 s{S_T2}, s{S_T2}, s{S_T0}"); a(f"s_add_u32 s{S_T2}, s{S_T2}, 65536")
    a(f"s_lshl_b32 s{S_T1}, s{S_T1}, 4"); a(f"s_add_u32 s{S_T0}, s{S_T0}, s{S_T1}"); a(f"s_add_u32 s{S_T1}, s{S_T0}, 32768")
    for t in range(4):
        D=E_CS+12*(t&1)
        el=[ACC+4*(4*b+t)+e for b in range(5) for e in range(4)]
        for k in range(10): a(f"v_cvt_pk_bf16_f32 v{D+k}, v{el[2*k]}, v{el[2*k+1]}")
        a(f"buffer_store_dwordx4 {vr(D,4)}, v{v16}, s[{S_WS}:{S_WS+3}], s{S_T0} offen offset:{256*t} {flags}")
        a(f"buffer_store_dwordx4 {vr(D+4,4)}, v{v16}, s[{S_WS}:{S_WS+3}], s{S_T1} offen offset:{256*t} {flags}")
        a(f"buffer_store_dwordx2 {vr(D+8,2)}, v{v8}, s[{S_WS}:{S_WS+3}], s{S_T2} offen offset:{128*t} {flags}")
        if vm:
            for _ in range(3): vm.add("est")

def softmax20(a, p, sign, T, dst, sc=None, mid=None):
    out=[]
    q=[r+e for r in p for e in (0,1)]
    m=T+20; s=T+22
    op = "v_max3_f32" if sign>0 else "v_min3_f32"
    out+=[f"{op} v{m}, v{q[0]}, v{q[1]}, v{q[2]}", f"{op} v{m+1}, v{q[3]}, v{q[4]}, v{q[5]}"]
    for i in range(6,18,4): out+=[f"{op} v{m}, v{m}, v{q[i]}, v{q[i+1]}", f"{op} v{m+1}, v{m+1}, v{q[i+2]}, v{q[i+3]}"]
    out+=[f"{op} v{m}, v{m}, v{q[18]}, v{q[19]}", f"{'v_max_f32' if sign>0 else 'v_min_f32'} v{m}, v{m}, v{m+1}"]
    if sc is None:
        out+=[f"v_mov_b32 v{s}, {LOG2E if sign>0 else LOG2E|0x80000000}", f"v_mul_f32 v{m}, v{m}, v{s}"]
        for i,r in enumerate(p): out.append(pk("v_pk_fma_f32", T+2*i, [r, s, m], "pll", [0,0,1]))
    else:
        out+=[f"v_mul_f32 v{m}, v{m}, v{sc}"]
        for i,r in enumerate(p): out.append(pk("v_pk_fma_f32", T+2*i, [r, sc, m], "pll", [0,0,1] if sign>0 else [0,1,0]))
    for i in range(20): out.append(f"v_exp_f32 v{T+i}, v{T+i}")
    out+=[pk("v_pk_add_f32", s, [T, T+2], "pp"), pk("v_pk_add_f32", m, [T+4, T+6], "pp")]
    for i in range(8,20,4): out+=[pk("v_pk_add_f32", s, [s, T+i], "pp"), pk("v_pk_add_f32", m, [m, T+i+2], "pp")]
    out+=[pk("v_pk_add_f32", s, [s, m], "pp"), f"v_add_f32 v{s}, v{s}, v{s+1}", f"v_rcp_f32 v{s}, v{s}"]
    if sc is not None: out+=[f"v_mul_f32 v{s}, v{s}, v{sc+1}"]
    for i in range(10): out.append(pk("v_pk_mul_f32", T+2*i, [T+2*i, s], "pl"))
    for k in range(10): out.append(f"v_cvt_pk_bf16_f32 v{dst[k] if isinstance(dst,list) else dst+k}, v{T+2*k}, v{T+2*k+1}")
    if mid: out=interleave(out[:40], mid)+out[40:]
    if a is None: return out
    a(out)

def epi_kv(a, RS=E_RS, flags="sc1", vm=None):
    epi_rstd(a, RS)
    vw=V_T
    a(f"v_and_b32 v{vw}, 15, v0"); a(f"v_mul_u32_u24 v{vw}, {KVROW}, v{vw}"); a(f"v_lshrrev_b32 v{vw+1}, 4, v0"); a(f"v_lshl_add_u32 v{vw}, v{vw+1}, 7, v{vw}")
    a(f"s_mul_i32 s{S_T0}, s{S_TG}, {64*KVROW}"); a(f"v_add_u32 v{vw}, s{S_T0}, v{vw}")
    a(f"s_cmp_eq_u32 s{S_FG}, 0"); a("s_cbranch_scc1 KV_KWAVE")
    for t in range(4):
        F=E_PHI+12*t
        ln_pack(a, t, F, RS); a(f"v_mov_b32 v{F+10}, 0x3f803f80"); a(f"v_mov_b32 v{F+11}, 0x3f803f80")
        for i in range(3): a(f"ds_write_b128 v{vw}, {vr(F+4*i,4)} offset:{t*16*KVROW+80+16*i}")
    a("s_branch KV_JOIN")
    a.label("KV_KWAVE")
    F=[E_T, 112]
    for f in F: a(f"v_mov_b32 v{f+10}, 0"); a(f"v_mov_b32 v{f+11}, 0")
    for t in range(4):
        ln_pack(a, t, F[t&1], RS); phi_mfma(a, t, F[t&1])
    T=E_CS
    for t in range(4):
        D=E_PHI+20*(t&1)
        p=[ACC+4*(4*b+t)+e for b in range(5) for e in (0,2)]
        softmax20(a, p, +1, T, D); softmax20(a, p, -1, T, D+10)
        for i in range(5): a(f"ds_write_b128 v{vw}, {vr(D+4*i,4)} offset:{t*16*KVROW+16*i}")
    a.label("KV_JOIN")
    kv_stage(a, flags, vm)
def kv_stage(a, flags, vm, stp=None):
    a("s_waitcnt lgkmcnt(0)"); a("s_barrier")
    if stp: stp(23)
    t=V_T
    a(f"v_bfe_u32 v{t}, v0, 2, 3"); a(f"v_lshrrev_b32 v{t+1}, 5, v0"); a(f"v_lshl_add_u32 v{t}, v{t+1}, 3, v{t}"); a(f"v_mul_u32_u24 v{t}, {2*KVROW}, v{t}")
    a(f"v_and_b32 v{t+1}, 3, v0"); a(f"v_lshl_add_u32 v{t}, v{t+1}, 3, v{t}")
    a(f"s_lshr_b32 s{S_T0}, s{S_WAVE}, 1"); a(f"s_lshl_b32 s{S_T0}, s{S_T0}, 7"); a(f"v_add_u32 v{t}, s{S_T0}, v{t}")
    a(f"s_and_b32 s{S_T1}, s{S_WAVE}, 1"); a(f"s_lshl_b32 s{S_T1}, s{S_T1}, 5"); a(f"s_add_u32 s{S_T1}, s{S_T1}, 80"); a(f"v_add_u32 v{t+1}, s{S_T1}, v{t}")
    a(f"v_add_u32 v{t+2}, {128*KVROW}, v{t}"); a(f"v_add_u32 v{t+3}, {128*KVROW}, v{t+1}")
    FR=[48,64,80,96]
    for st in range(8):
        va=t+(2 if st>=4 else 0); o=(st%4)*32*KVROW; f=FR[st%4]
        for rd in range(2): a(f"ds_read_b64_tr_b16 {vr(f+12+2*rd,2)}, v{va+1} offset:{o+rd*KVROW}")
        for fb in range(3):
            for rd in range(2): a(f"ds_read_b64_tr_b16 {vr(f+4*fb+2*rd,2)}, v{va} offset:{o+rd*KVROW+32*fb}")
        if st>=1:
            a("s_waitcnt lgkmcnt(8)"); g=FR[(st-1)%4]
            for fb in range(3): a(f"v_mfma_f32_16x16x32_bf16 {vr(ACC+4*fb,4)}, {vr(g+4*fb,4)}, {vr(g+12,4)}, {vr(ACC+4*fb,4) if st>1 else 0}")
    a("s_waitcnt lgkmcnt(0)"); g=FR[3]
    for fb in range(3): a(f"v_mfma_f32_16x16x32_bf16 {vr(ACC+4*fb,4)}, {vr(g+4*fb,4)}, {vr(g+12,4)}, {vr(ACC+4*fb,4)}")
    if stp: stp(24)
    a(f"v_and_b32 v{t}, 15, v0"); a(f"s_and_b32 s{S_T1}, s{S_WAVE}, 1"); a(f"s_lshl_b32 s{S_T1}, s{S_T1}, 4"); a(f"v_add_u32 v{t}, s{S_T1}, v{t}")
    a(f"v_cmp_gt_u32 vcc, 21, v{t}"); a(f"v_lshrrev_b32 v{t+1}, 4, v0"); a(f"v_mul_u32_u24 v{t+1}, 21, v{t+1}"); a(f"v_add_u32 v{t}, v{t}, v{t+1}"); a(f"v_lshlrev_b32 v{t}, 4, v{t}")
    a(f"s_lshl_b32 s{S_T0}, s{S_RT}, 5"); a(f"s_lshl_b32 s{S_T1}, s{S_CT}, 2"); a(f"s_add_u32 s{S_T0}, s{S_T0}, s{S_T1}"); a(f"s_lshr_b32 s{S_T1}, s{S_WAVE}, 1"); a(f"s_add_u32 s{S_T0}, s{S_T0}, s{S_T1}")
    a(f"s_mul_i32 s{S_T0}, s{S_T0}, 3360"); a(f"s_add_u32 s{S_T0}, s{S_T0}, {WS_KVP}")
    a(f"s_mov_b64 exec, vcc")
    for fb in range(3):
        if fb==2: a("s_mov_b32 exec_hi, 0")
        a(f"buffer_store_dwordx4 {vr(ACC+4*fb,4)}, v{t}, s[{S_WS}:{S_WS+3}], s{S_T0} offen offset:{fb*4*21*16} {flags}")
        if vm: vm.add("est")
    a("s_mov_b64 exec, -1")

def epi_kv2(a, RS=E_RS, flags="sc1", vm=None):
    epi_rstd(a, RS)
    vw=V_T
    a(f"v_and_b32 v{vw}, 15, v0"); a(f"v_mul_u32_u24 v{vw}, {KVROW}, v{vw}"); a(f"v_lshrrev_b32 v{vw+1}, 4, v0"); a(f"v_lshl_add_u32 v{vw}, v{vw+1}, 7, v{vw}")
    a(f"s_mul_i32 s{S_T0}, s{S_TG}, {64*KVROW}"); a(f"v_add_u32 v{vw}, s{S_T0}, v{vw}")
    T=E_CS
    def sm(t, D):
        p=[ACC+4*(4*b+t)+e for b in range(5) for e in (0,2)]
        softmax20(a, p, +1, T, D); softmax20(a, p, -1, T, D+10)
        for i in range(5): a(f"ds_write_b128 v{vw}, {vr(D+4*i,4)} offset:{t*16*KVROW+16*i}")
    a(f"s_cmp_eq_u32 s{S_FG}, 0"); a("s_cbranch_scc1 KV_KWAVE")
    for t in range(4):
        F=E_PHI+12*t
        ln_pack(a, t, F, RS); a(f"v_mov_b32 v{F+10}, 0x3f803f80"); a(f"v_mov_b32 v{F+11}, 0x3f803f80")
        for i in range(3): a(f"ds_write_b128 v{vw}, {vr(F+4*i,4)} offset:{t*16*KVROW+80+16*i}")
    a("s_barrier")
    for t in (2,3):
        for b in range(5): a(f"ds_read_b128 {vr(ACC+4*(4*b+t),4)}, v{vw} offset:{t*16*KVROW+16*b}")
    a("s_waitcnt lgkmcnt(5)"); sm(2, E_PHI)
    a("s_waitcnt lgkmcnt(5)"); sm(3, E_PHI+20)
    a("s_branch KV_JOIN")
    a.label("KV_KWAVE")
    F=[E_T, 112]
    for f in F: a(f"v_mov_b32 v{f+10}, 0"); a(f"v_mov_b32 v{f+11}, 0")
    for t in (2,3):
        ln_pack(a, t, F[t&1], RS); phi_mfma(a, t, F[t&1])
    ln_pack(a, 0, F[0], RS)
    for b in range(5): a(f"ds_write_b128 v{vw}, {vr(ACC+4*(4*b+2),4)} offset:{2*16*KVROW+16*b}")
    phi_mfma(a, 0, F[0])
    for b in range(5): a(f"ds_write_b128 v{vw}, {vr(ACC+4*(4*b+3),4)} offset:{3*16*KVROW+16*b}")
    ln_pack(a, 1, F[1], RS)
    a("s_waitcnt lgkmcnt(0)"); a("s_barrier")
    phi_mfma(a, 1, F[1])
    sm(0, KV_D); sm(1, KV_D2)
    a.label("KV_JOIN")
    kv_stage(a, flags, vm)
KV_D=E_PHI+0; KV_D2=E_PHI+20

def center_pack(t, dst, RS):
    el=[(ACC+4*(4*b+t)+e, E_CS+4*b+e) for b in range(5) for e in (0,2)]
    return [pk("v_pk_fma_f32", g, [RS+2*t, c, g], "lpp", [1,0,0]) for g,c in el]+[f"v_cvt_pk_bf16_f32 v{dst+k}, v{g}, v{g+1}" for k,(g,c) in enumerate(el)]
def phi_mf(t, F):
    return [f"v_mfma_f32_16x16x32_bf16 {vr(ACC+4*(4*b+t),4)}, {vr(E_PHI+4*(3*b+s),4)}, {vr(F+4*s,4)}, {vr(ACC+4*(4*b+t),4) if s else 0}" for s in range(3) for b in range(5)]
def epi_kv3(a, RS=E_RS, flags="sc1", vm=None, st=None):
    if st: st(20)
    for t in range(4): a(f"v_rcp_f32 v{E_AB+2*t+1}, v{RS+2*t+1}")
    vw=V_T
    a(f"v_and_b32 v{vw}, 15, v0"); a(f"v_mul_u32_u24 v{vw}, {KVROW}, v{vw}"); a(f"v_lshrrev_b32 v{vw+1}, 4, v0"); a(f"v_lshl_add_u32 v{vw}, v{vw+1}, 7, v{vw}")
    a(f"s_mul_i32 s{S_T0}, s{S_TG}, {64*KVROW}"); a(f"v_add_u32 v{vw}, s{S_T0}, v{vw}")
    for t in range(4): a(f"v_mul_f32 v{E_AB+2*t}, {LOG2E}, v{E_AB+2*t+1}")
    T=E_CS
    P=lambda t: [ACC+4*(4*b+t)+e for b in range(5) for e in (0,2)]
    wr=lambda t,D,i0,i1: [f"ds_write_b128 v{vw}, {vr(D+4*i,4)} offset:{t*16*KVROW+16*i}" for i in range(i0,i1)]
    a(f"s_cmp_eq_u32 s{S_FG}, 0"); a("s_cbranch_scc1 KV_KWAVE")
    for t in range(4):
        F=E_PHI+12*t
        a(center_pack(t, F, RS)); a(f"v_cvt_pk_bf16_f32 v{F+10}, v{RS+2*t+1}, v{RS+2*t+1}"); a(f"v_mov_b32 v{F+11}, 0")
        for i in range(3): a(f"ds_write_b128 v{vw}, {vr(F+4*i,4)} offset:{t*16*KVROW+80+16*i}")
    if st: st(21)
    a("s_barrier")
    if st: st(22)
    for t in (2,3):
        for b in range(5): a(f"ds_read_b128 {vr(ACC+4*(4*b+t),4)}, v{vw} offset:{t*16*KVROW+16*b}")
    a("s_waitcnt lgkmcnt(5)")
    softmax20(a, P(2), +1, T, E_PHI, E_AB+4); softmax20(a, P(2), -1, T, E_PHI+10, E_AB+4, wr(2,E_PHI,0,2))
    a("s_waitcnt lgkmcnt(2)")
    softmax20(a, P(3), +1, T, E_PHI+20, E_AB+6, wr(2,E_PHI,2,5)); softmax20(a, P(3), -1, T, E_PHI+30, E_AB+6, wr(3,E_PHI+20,0,2))
    a(wr(3,E_PHI+20,2,5))
    a("s_branch KV_JOIN")
    a.label("KV_KWAVE")
    F=[E_T, 112]
    for f in F: a(f"v_mov_b32 v{f+10}, 0"); a(f"v_mov_b32 v{f+11}, 0")
    a(center_pack(2, F[0], RS))
    a(interleave(phi_mf(2,F[0]), center_pack(3, F[1], RS)))
    F2=KV_F2
    a(f"v_mov_b32 v{F2+10}, 0"); a(f"v_mov_b32 v{F2+11}, 0")
    a(interleave(phi_mf(3,F[1]), center_pack(0, F2, RS)))
    ex=lambda t: [f"ds_write_b128 v{vw}, {vr(ACC+4*(4*b+t),4)} offset:{t*16*KVROW+16*b}" for b in range(5)]
    a(ex(2))
    a(interleave(phi_mf(0,F2), center_pack(1, F[0], RS)))
    a(ex(3))
    a(phi_mf(1,F[0])[:5])
    a("s_waitcnt lgkmcnt(0)")
    if st: st(21)
    a("s_barrier")
    if st: st(22)
    D0=KV_D0; D1=E_PHI
    softmax20(a, P(0), +1, T, D0, E_AB+0, phi_mf(1,F[0])[5:]); softmax20(a, P(0), -1, T, D0+10, E_AB+0, wr(0,D0,0,2))
    softmax20(a, P(1), +1, T, D1, E_AB+2, wr(0,D0,2,5)); softmax20(a, P(1), -1, T, D1+10, E_AB+2, wr(1,D1,0,2))
    a(wr(1,D1,2,5))
    a.label("KV_JOIN")
    if st: st(1)
    kv_stage(a, flags, vm, st)
KV_F2=124
KV_D0=E_PHI+20

def epi_kv4(a, RS, st=None):
    vw=V_T
    a(f"v_and_b32 v{vw}, 15, v0"); a(f"v_mul_u32_u24 v{vw}, {KVROW}, v{vw}"); a(f"v_lshrrev_b32 v{vw+1}, 4, v0"); a(f"v_lshl_add_u32 v{vw}, v{vw+1}, 7, v{vw}")
    a(f"s_mul_i32 s{S_T0}, s{S_TG}, {64*KVROW}"); a(f"v_add_u32 v{vw}, s{S_T0}, v{vw}")
    a(f"s_cmp_eq_u32 s{S_FG}, 0"); a("s_cbranch_scc1 KV_KWAVE")
    a("s_waitcnt lgkmcnt(0)")
    for t in range(4):
        F=E_PHI+12*t
        a(center_pack(t, F, RS)); a(f"v_cvt_pk_bf16_f32 v{F+10}, v{RS+2*t+1}, v{RS+2*t+1}"); a(f"v_mov_b32 v{F+11}, 0")
    t=V_T+2
    a(f"v_bfe_u32 v{t}, v0, 2, 3"); a(f"v_lshrrev_b32 v{t+1}, 5, v0"); a(f"v_lshl_add_u32 v{t}, v{t+1}, 5, v{t}"); a(f"v_mul_u32_u24 v{t}, {2*KVROW}, v{t}")
    a(f"v_and_b32 v{t+1}, 3, v0"); a(f"v_lshl_add_u32 v{t}, v{t+1}, 3, v{t}")
    a(f"s_lshl_b32 s{S_T0}, s{S_TG}, 7"); a(f"v_add_u32 v{t}, s{S_T0}, v{t}"); a(f"v_add_u32 v{t+1}, {128*KVROW}, v{t}")
    a("s_barrier")
    for tb in range(4):
        F=E_PHI+12*tb
        for i in range(3): a(f"ds_write_b128 v{vw}, {vr(F+4*i,4)} offset:{tb*16*KVROW+80+16*i}")
    u=V_T+4
    a(f"v_and_b32 v{u}, 15, v0"); a(f"v_cmp_gt_u32 vcc, 5, v{u}"); a(f"v_lshrrev_b32 v{u+1}, 4, v0"); a(f"v_mul_u32_u24 v{u+1}, 21, v{u+1}"); a(f"v_add_u32 v{u}, v{u}, v{u+1}"); a(f"v_lshlrev_b32 v{u}, 4, v{u}")
    a(f"s_lshl_b32 s{S_T0}, s{S_RT}, 5"); a(f"s_lshl_b32 s{S_T1}, s{S_CT}, 2"); a(f"s_add_u32 s{S_T0}, s{S_T0}, s{S_T1}"); a(f"s_add_u32 s{S_T0}, s{S_T0}, s{S_TG}")
    a(f"s_mul_i32 s{S_T0}, s{S_T0}, 3360"); a(f"s_add_u32 s{S_T0}, s{S_T0}, {WS_KVP}")
    FR=[64,84]
    for tb in range(4):
        a("s_waitcnt lgkmcnt(0)"); a("s_barrier")
        for h in range(2):
            f=FR[h]; o=tb*16*KVROW
            for db in range(2):
                for rd in range(2): a(f"ds_read_b64_tr_b16 {vr(f+12+4*db+2*rd,2)}, v{t+h} offset:{o+rd*KVROW+80+32*db}")
            for fb in range(3):
                for rd in range(2): a(f"ds_read_b64_tr_b16 {vr(f+4*fb+2*rd,2)}, v{t+h} offset:{o+rd*KVROW+32*fb}")
        for h in range(2):
            f=FR[h]
            a(f"s_waitcnt lgkmcnt({10 if h==0 else 0})")
            for fb in range(3):
                for db in range(2):
                    ac=ACC+4*(2*fb+db)
                    a(f"v_mfma_f32_16x16x32_bf16 {vr(ac,4)}, {vr(f+4*fb,4)}, {vr(f+12+4*db,4)}, {vr(ac,4) if (tb or h) else 0}")
    if st: st(24)
    for db in range(2):
        for fb in range(3):
            if db==1 and fb==0: a("s_mov_b64 exec, vcc")
            if fb==2: a("s_mov_b32 exec_hi, 0")
            a(f"buffer_store_dwordx4 {vr(ACC+4*(2*fb+db),4)}, v{u}, s[{S_WS}:{S_WS+3}], s{S_T0} offen offset:{fb*4*21*16+db*256} sc1")
        a("s_mov_b64 exec, -1")
    a("s_branch KV_DONE")
    a.label("KV_KWAVE")
    if st: st(20)
    for t in range(4): a(f"v_rcp_f32 v{E_AB+2*t+1}, v{RS+2*t+1}")
    F=[E_T, 112, KV_F2]
    for f in F: a(f"v_mov_b32 v{f+10}, 0"); a(f"v_mov_b32 v{f+11}, 0")
    for t in range(4): a(f"v_mul_f32 v{E_AB+2*t}, {LOG2E}, v{E_AB+2*t+1}")
    a("s_waitcnt lgkmcnt(0)")
    a(center_pack(0, F[0], RS))
    a(interleave(phi_mf(0,F[0]), center_pack(1, F[1], RS)))
    a(interleave(phi_mf(1,F[1]), center_pack(2, F[2], RS)))
    a(interleave(phi_mf(2,F[2]), center_pack(3, F[0], RS)))
    T=E_CS
    P=lambda t: [ACC+4*(4*b+t)+e for b in range(5) for e in (0,2)]
    wr=lambda t,D,i0,i1: [f"ds_write_b128 v{vw}, {vr(D+4*i,4)} offset:{t*16*KVROW+16*i}" for i in range(i0,i1)]
    D=[112, E_PHI+0]
    if st: st(21)
    softmax20(a, P(0), +1, T, D[0], E_AB+0, phi_mf(3,F[0]))
    a("s_barrier")
    if st: st(22)
    for t in range(4):
        d=D[t&1]
        if t: softmax20(a, P(t), +1, T, d, E_AB+2*t, wr(t-1,D[(t-1)&1],2,5)+["s_waitcnt lgkmcnt(0)","s_barrier"])
        softmax20(a, P(t), -1, T, d+10, E_AB+2*t, wr(t,d,0,2))
    a(wr(3,D[1],2,5)); a("s_waitcnt lgkmcnt(0)")
    if st: st(1)
    a("s_barrier")
    a.label("KV_DONE")

def epi_kv5(a, RS, st=None, bk=None, bv=None):
    vw=V_T
    a(f"v_and_b32 v{vw}, 15, v0"); a(f"v_mul_u32_u24 v{vw}, {KVROW}, v{vw}"); a(f"v_lshrrev_b32 v{vw+1}, 4, v0"); a(f"v_lshl_add_u32 v{vw}, v{vw+1}, 7, v{vw}")
    a(f"s_mul_i32 s{S_T0}, s{S_TG}, {16*KVROW}"); a(f"v_add_u32 v{vw}, s{S_T0}, v{vw}")
    a(f"s_cmp_eq_u32 s{S_FG}, 0"); a("s_cbranch_scc1 KV_KWAVE")
    a("s_waitcnt lgkmcnt(0)")
    for t in range(4):
        F=[112,124,168,136][t]
        a(center_pack(t, F, RS)); a(f"v_cvt_pk_bf16_f32 v{F+10}, v{RS+2*t+1}, v{RS+2*t+1}"); a(f"v_mov_b32 v{F+11}, 0")
    t=V_T+2
    a(f"v_bfe_u32 v{t}, v0, 2, 3"); a(f"v_lshrrev_b32 v{t+1}, 5, v0"); a(f"v_lshl_add_u32 v{t}, v{t+1}, 3, v{t}"); a(f"v_mul_u32_u24 v{t}, {2*KVROW}, v{t}")
    a(f"v_and_b32 v{t+1}, 3, v0"); a(f"v_lshl_add_u32 v{t}, v{t+1}, 3, v{t}")
    a(f"s_lshl_b32 s{S_T0}, s{S_TG}, 7"); a(f"v_add_u32 v{t}, s{S_T0}, v{t}"); a(f"v_add_u32 v{t+1}, {32*KVROW}, v{t}")
    a("s_barrier")
    VF=[112,124,168,136]
    wv=lambda tb: [f"ds_write_b128 v{vw}, {vr(VF[tb]+4*i,4)} offset:{(tb&1)*64*KVROW+80+16*i}" for i in range(3)]
    a(wv(0)); a(wv(1))
    bv=list(bv or [])
    def takev(n):
        for _ in range(min(n,len(bv))): a(bv.pop(0))
    takev(10)
    u=V_T+4
    a(f"v_and_b32 v{u}, 15, v0"); a(f"v_cmp_gt_u32 vcc, 5, v{u}"); a(f"v_lshrrev_b32 v{u+1}, 4, v0"); a(f"v_mul_u32_u24 v{u+1}, 21, v{u+1}"); a(f"v_add_u32 v{u}, v{u}, v{u+1}"); a(f"v_lshlrev_b32 v{u}, 4, v{u}")
    a(f"s_lshl_b32 s{S_T0}, s{S_RT}, 5"); a(f"s_lshl_b32 s{S_T1}, s{S_CT}, 2"); a(f"s_add_u32 s{S_T0}, s{S_T0}, s{S_T1}"); a(f"s_add_u32 s{S_T0}, s{S_T0}, s{S_TG}")
    a(f"s_mul_i32 s{S_T0}, s{S_T0}, 3360"); a(f"s_add_u32 s{S_T0}, s{S_T0}, {WS_KVP}")
    FR=[64,84]
    for tb in range(4):
        a("s_waitcnt lgkmcnt(0)"); a("s_barrier")
        if tb in (1,2): a(wv(tb+1))
        for h in range(2):
            f=FR[h]; o=(tb&1)*64*KVROW
            for db in range(2):
                for rd in range(2): a(f"ds_read_b64_tr_b16 {vr(f+12+4*db+2*rd,2)}, v{t+h} offset:{o+rd*KVROW+80+32*db}")
            for fb in range(3):
                for rd in range(2): a(f"ds_read_b64_tr_b16 {vr(f+4*fb+2*rd,2)}, v{t+h} offset:{o+rd*KVROW+32*fb}")
        for h in range(2):
            f=FR[h]
            a(f"s_waitcnt lgkmcnt({10 if h==0 else 0})")
            for fb in range(3):
                for db in range(2):
                    ac=ACC+4*(2*fb+db)
                    a(f"v_mfma_f32_16x16x32_bf16 {vr(ac,4)}, {vr(f+4*fb,4)}, {vr(f+12+4*db,4)}, {vr(ac,4) if (tb or h) else 0}")
        if tb<3: takev(5)
    takev(99)
    if st: st(24)
    for db in range(2):
        for fb in range(3):
            if db==1 and fb==0: a("s_mov_b64 exec, vcc")
            if fb==2: a("s_mov_b32 exec_hi, 0")
            a(f"buffer_store_dwordx4 {vr(ACC+4*(2*fb+db),4)}, v{u}, s[{S_WS}:{S_WS+3}], s{S_T0} offen offset:{fb*4*21*16+db*256} sc1")
        a("s_mov_b64 exec, -1")
    a("s_branch KV_DONE")
    a.label("KV_KWAVE")
    if st: st(20)
    for t in range(4): a(f"v_rcp_f32 v{E_AB+2*t+1}, v{RS+2*t+1}")
    F=[E_T, 112, KV_F2]
    for f in F: a(f"v_mov_b32 v{f+10}, 0"); a(f"v_mov_b32 v{f+11}, 0")
    for t in range(4): a(f"v_mul_f32 v{E_AB+2*t}, {LOG2E}, v{E_AB+2*t+1}")
    a("s_waitcnt lgkmcnt(0)")
    a(center_pack(0, F[0], RS))
    a(interleave(phi_mf(0,F[0]), center_pack(1, F[1], RS)))
    a(interleave(phi_mf(1,F[1]), center_pack(2, F[2], RS)))
    a(interleave(phi_mf(2,F[2]), center_pack(3, F[0], RS)))
    T=E_CS
    P=lambda t: [ACC+4*(4*b+t)+e for b in range(5) for e in (0,2)]
    Q=[[112,116,120,124,128],[168,172,176,180,132]]
    D=[[q+e for q in qq for e in range(4)] for qq in Q]
    wr=lambda t,i0,i1: [f"ds_write_b128 v{vw}, {vr(Q[t&1][i],4)} offset:{(t&1)*64*KVROW+16*i}" for i in range(i0,i1)]
    bk=list(bk or [])
    def takek(n):
        r=bk[:n]; del bk[:n]; return r
    if st: st(21)
    softmax20(a, P(0), +1, T, D[0][:10], E_AB+0, phi_mf(3,F[0]))
    a("s_barrier")
    if st: st(22)
    for t in range(4):
        d=D[t&1]
        if t: softmax20(a, P(t), +1, T, d[:10], E_AB+2*t, wr(t-1,2,5)+["s_waitcnt lgkmcnt(0)","s_barrier"]+takek(4))
        softmax20(a, P(t), -1, T, d[10:], E_AB+2*t, wr(t,0,2)+takek(4 if t<3 else 99))
    a(wr(3,2,5)); a("s_waitcnt lgkmcnt(0)")
    if st: st(1)
    a("s_barrier")
    a.label("KV_DONE")

def epi_q2(a, RS):
    v16=V_T; v8=V_T+1; t_=V_T+2
    epi_rstd(a, RS)
    F=[E_T, 112]
    for f in F: a(f"v_mov_b32 v{f+10}, 0"); a(f"v_mov_b32 v{f+11}, 0")
    a(f"v_lshrrev_b32 v{t_}, 4, v0"); a(f"v_mul_u32_u24 v{t_}, 81920, v{t_}"); a(f"v_and_b32 v{v8}, 15, v0")
    a(f"v_lshl_add_u32 v{v16}, v{v8}, 4, v{t_}")
    a(f"s_lshl_b32 s{S_T0}, s{S_CT}, 1"); a(f"s_add_u32 s{S_T0}, s{S_T0}, s{S_FG}"); a(f"s_mul_i32 s{S_T0}, s{S_T0}, {4*81920}"); a(f"s_add_u32 s{S_T0}, s{S_T0}, {WS_PQ}")
    a(f"s_lshl_b32 s{S_T1}, s{S_RT}, 8"); a(f"s_lshl_b32 s{S_T2}, s{S_TG}, 6"); a(f"s_add_u32 s{S_T1}, s{S_T1}, s{S_T2}")
    a(f"s_lshl_b32 s{S_T2}, s{S_T1}, 3"); a(f"s_add_u32 s{S_T2}, s{S_T2}, s{S_T0}"); a(f"s_add_u32 s{S_T2}, s{S_T2}, 65536")
    a(f"s_lshl_b32 s{S_T1}, s{S_T1}, 4"); a(f"s_add_u32 s{S_T0}, s{S_T0}, s{S_T1}"); a(f"s_add_u32 s{S_T1}, s{S_T0}, 32768")
    a("s_waitcnt lgkmcnt(0)")
    def lnp(t, dst):
        el=[(ACC+4*(4*b+t)+e, E_CS+4*b+e) for b in range(5) for e in (0,2)]
        return [pk("v_pk_fma_f32", g, [RS+2*t, c, g], "lpp", [1,0,0]) for g,c in el]+[pk("v_pk_mul_f32", g, [g, E_AB+2*t], "pl") for g,c in el]+[f"v_cvt_pk_bf16_f32 v{dst+k}, v{g}, v{g+1}" for k,(g,c) in enumerate(el)]
    TL=124
    def out(t):
        el=[ACC+4*(4*b+t)+e for b in range(5) for e in range(4)]
        q=[ACC+4*t, ACC+16+4*t]
        L=[]
        tl=TL+4*(t>>1)+2*(t&1)
        for k in (8,9): L.append(f"v_cvt_pk_bf16_f32 v{tl+k-8}, v{el[2*k]}, v{el[2*k+1]}")
        for k in range(8): L.append(f"v_cvt_pk_bf16_f32 v{q[k>>2]+(k&3)}, v{el[2*k]}, v{el[2*k+1]}")
        L.insert(6, f"buffer_store_dwordx4 {vr(q[0],4)}, v{v16}, s[{S_WS}:{S_WS+3}], s{S_T0} offen offset:{256*t} sc1")
        L.append(f"buffer_store_dwordx4 {vr(q[1],4)}, v{v16}, s[{S_WS}:{S_WS+3}], s{S_T1} offen offset:{256*t} sc1")
        if t&1: L.append(f"buffer_store_dwordx4 {vr(TL+4*(t>>1),4)}, v{v16}, s[{S_WS}:{S_WS+3}], s{S_T2} offen offset:{128*(t-1)} sc1")
        return L
    a(lnp(0,F[0]))
    a(interleave(phi_mf(0,F[0]), lnp(1,F[1])))
    a(interleave(phi_mf(1,F[1]), out(0)+lnp(2,F[0])[:0]))
    a(lnp(2,F[0]))
    a(interleave(phi_mf(2,F[0]), out(1)))
    a(lnp(3,F[1]))
    a(interleave(phi_mf(3,F[1]), out(2)))
    a(out(3))
```

```python
from p1 import *
from p1e import *
S_DBG=4
S_OUT=16
S_B=12
S_CNT=81
SPIN_MAX=200000
SLEEP=[1]
KS0=[None]

def nonce_write(a):
    a(f"s_or_b32 s{S_T0}, s2, s{S_WAVE}"); a(f"s_cmp_eq_u32 s{S_T0}, 0"); a("s_cbranch_scc0 NONCE_SKIP")
    a(f"s_memrealtime s[{S_SAVE}:{S_SAVE+1}]"); a("s_waitcnt lgkmcnt(0)")
    a(f"s_lshl_b64 s[{S_SAVE}:{S_SAVE+1}], s[{S_SAVE}:{S_SAVE+1}], 3"); a(f"s_or_b32 s{S_SAVE}, s{S_SAVE}, 4")
    a(f"v_mov_b32 v{V_T}, s{S_SAVE}"); a(f"v_mov_b32 v{V_T+1}, s{S_SAVE+1}"); a(f"v_mov_b32 v{V_T+2}, 0")
    a("s_mov_b64 exec, 1")
    a(f"buffer_store_dwordx2 {vr(V_T,2)}, v{V_T+2}, s[{S_DBG}:{S_DBG+3}], 0 offen sc1")
    a("s_mov_b64 exec, -1")
    a.label("NONCE_SKIP")
def nonce_issue(R):
    return [f"v_mov_b32 v{R}, 0", f"buffer_load_dwordx2 {vr(R,2)}, v{R}, s[{S_DBG}:{S_DBG+3}], 0 offen sc1"]
def nonce_take(a, R, lab):
    a(f"v_readfirstlane_b32 s{S_TAG}, v{R}"); a(f"v_readfirstlane_b32 s{S_TAG+1}, v{R+1}")
    a(f"s_cmp_lg_u32 s{S_TAG}, 0"); a(f"s_cbranch_scc1 {lab}_OK")
    a(f"s_mov_b32 s{S_CNT}, 0")
    a.label(f"{lab}_SP")
    a("s_sleep 2"); a(nonce_issue(R)); a("s_waitcnt vmcnt(0)")
    a(f"v_readfirstlane_b32 s{S_TAG}, v{R}"); a(f"v_readfirstlane_b32 s{S_TAG+1}, v{R+1}")
    a(f"s_add_u32 s{S_CNT}, s{S_CNT}, 1"); a(f"s_cmp_ge_u32 s{S_CNT}, {SPIN_MAX}"); a(f"s_cbranch_scc1 {lab}_OK")
    a(f"s_cmp_eq_u32 s{S_TAG}, 0"); a(f"s_cbranch_scc1 {lab}_SP")
    a.label(f"{lab}_OK")
def publish(a, phase, T):
    a(f"s_add_u32 s{S_T0}, s{S_TAG}, {phase}"); a(f"v_mov_b32 v{T}, s{S_T0}"); a(f"v_mov_b32 v{T+1}, s{S_TAG+1}"); a(f"v_mov_b32 v{T+2}, 0")
    a(f"s_lshl_b32 s{S_T0}, s2, 7")
    a("s_mov_b64 exec, 1")
    a(f"buffer_store_dwordx2 {vr(T,2)}, v{T+2}, s[{S_WS}:{S_WS+3}], s{S_T0} offen sc1")
    a("s_mov_b64 exec, -1")
def pub_prep(a, phase, T):
    a(f"s_add_u32 s{S_T0}, s{S_TAG}, {phase}"); a(f"v_mov_b32 v{T}, s{S_T0}"); a(f"v_mov_b32 v{T+1}, s{S_TAG+1}"); a(f"s_lshl_b32 s{S_T0}, s2, 7"); a(f"v_mov_b32 v{T+2}, s{S_T0}")
def pub_fire(a, T, w, lab, more=None):
    a(f"s_cmp_eq_u32 s{S_WAVE}, {w}"); a("s_barrier"); a(f"s_cbranch_scc0 {lab}")
    a("s_mov_b64 exec, 1")
    a(f"buffer_store_dwordx2 {vr(T,2)}, v{T+2}, s[{S_WS}:{S_WS+3}], 0 offen sc1")
    a("s_mov_b64 exec, -1")
    if more: more()
    a.label(lab); a("s_barrier")
def poll_issue(VA, R):
    return [f"buffer_load_dwordx2 {vr(R,2)}, v{VA}, s[{S_WS}:{S_WS+3}], 0 offen sc1"]
def poll_test(a, R, T, need):
    a(f"v_subrev_u32 v{T}, s{S_TAG}, v{R}"); a(f"v_subrev_u32 v{T}, {need}, v{T}"); a(f"v_xor_b32 v{T+1}, s{S_TAG+1}, v{R+1}")
    a(f"v_cmp_ne_u32 s[{S_SAVE}:{S_SAVE+1}], 0, v{T+1}"); a(f"v_cmp_lt_u32 vcc, {3-need}, v{T}"); a(f"s_or_b64 vcc, vcc, s[{S_SAVE}:{S_SAVE+1}]")
def poll_wait(a, VA, R, T, need, lab, first_landed):
    if first_landed:
        poll_test(a, R, T, need); a(f"s_cbranch_vccz {lab}_OK")
    a(f"s_mov_b32 s{S_CNT}, 0")
    a.label(f"{lab}_SP")
    a(poll_issue(VA, R)); a("s_waitcnt vmcnt(0)")
    poll_test(a, R, T, need)
    a(f"s_add_u32 s{S_CNT}, s{S_CNT}, 1"); a(f"s_cmp_ge_u32 s{S_CNT}, {SPIN_MAX}"); a(f"s_cbranch_scc1 {lab}_OK")
    a(f"s_cbranch_vccz {lab}_OK"); a(f"s_sleep {SLEEP[0]}"); a(f"s_branch {lab}_SP")
    a.label(f"{lab}_OK")
def fa_stats(VA, T):
    return [f"s_and_b32 s{S_T0}, s{S_RT}, 3", f"s_lshl_b32 s{S_T0}, s{S_T0}, 1", f"s_lshr_b32 s{S_T1}, s{S_RT}, 2", f"s_add_u32 s{S_T0}, s{S_T0}, s{S_T1}",
            f"v_lshlrev_b32 v{VA}, 3, v0", f"v_add_u32 v{VA}, s{S_T0}, v{VA}", f"s_andn2_b32 s{S_T0}, s2, 25", f"v_and_b32 v{T}, 3, v0", f"v_lshlrev_b32 v{T}, 3, v{T}", f"v_bfe_u32 v{T+1}, v0, 2, 1", f"v_or3_b32 v{T}, s{S_T0}, v{T}, v{T+1}",
            f"v_cmp_gt_u32 vcc, 32, v0", f"v_cndmask_b32 v{VA}, v{T}, v{VA}, vcc", f"v_lshlrev_b32 v{VA}, 7, v{VA}"]
def fa_spare(VA, T):
    return [f"v_and_b32 v{VA}, 3, v0", f"v_bfe_u32 v{T}, v0, 2, 2", f"v_lshl_add_u32 v{VA}, v{T}, 3, v{VA}", f"v_add_u32 v{VA}, {28*8+4}, v{VA}", f"v_lshlrev_b32 v{VA}, 7, v{VA}"]
def fa_qkv(VA, T):
    return [f"s_lshr_b32 s{S_T0}, s2, 5", f"s_and_b32 s{S_T1}, s{S_T0}, 1", f"s_add_u32 s{S_T1}, s{S_T1}, 1", f"s_lshl_b32 s{S_T1}, s{S_T1}, 5", f"s_andn2_b32 s{S_T0}, s{S_T0}, 1", f"s_add_u32 s{S_T1}, s{S_T1}, s{S_T0}",
            f"v_and_b32 v{VA}, 3, v0", f"v_bfe_u32 v{T}, v0, 2, 1", f"v_lshl_add_u32 v{VA}, v{VA}, 3, v{T}", f"v_add_u32 v{VA}, s{S_T1}, v{VA}",
            f"s_and_b32 s{S_T1}, s2, 3", f"s_lshl_b32 s{S_T1}, s{S_T1}, 3", f"s_add_u32 s{S_T0}, s{S_T0}, s{S_T1}", f"s_bfe_u32 s{S_T1}, s2, 0x10002", f"s_add_u32 s{S_T0}, s{S_T0}, s{S_T1}",
            f"v_mov_b32 v{T}, s{S_T0}", f"v_and_b32 v{T+1}, 8, v0", f"v_cmp_eq_u32 vcc, 0, v{T+1}", f"v_cndmask_b32 v{VA}, v{T}, v{VA}, vcc", f"v_lshlrev_b32 v{VA}, 7, v{VA}"]
def fa_gemm2(VA, T):
    return [f"v_min_u32 v{T}, 2, v0", f"s_mul_i32 s{S_T0}, s{S_WAVE}, 3", f"v_add_u32 v{T}, s{S_T0}, v{T}",
            f"v_cmp_le_u32 vcc, 14, v{T}", f"v_addc_co_u32 v{T+1}, vcc, 0, v{T}, vcc",
            f"v_mul_u32_u24 v{VA}, 52, v{T+1}", f"v_lshrrev_b32 v{VA}, 8, v{VA}",
            f"v_mul_u32_u24 v{T}, 5, v{VA}", f"v_sub_u32 v{T}, v{T+1}, v{T}", f"v_add_u32 v{T}, 3, v{T}",
            f"v_lshlrev_b32 v{T}, 5, v{T}", f"v_lshl_add_u32 v{VA}, v{VA}, 1, v{T}",
            f"s_and_b32 s{S_T0}, s2, 3", f"s_lshl_b32 s{S_T0}, s{S_T0}, 3", f"s_bfe_u32 s{S_T1}, s2, 0x10002", f"s_add_u32 s{S_T0}, s{S_T0}, s{S_T1}", f"v_add_u32 v{VA}, s{S_T0}, v{VA}",
            f"v_and_b32 v{T}, 31, v0", f"v_lshlrev_b32 v{T}, 3, v{T}", f"s_and_b32 s{S_T0}, s2, 7", f"v_add_u32 v{T}, s{S_T0}, v{T}",
            f"s_cmp_ge_u32 s{S_WAVE}, 6", f"s_cselect_b64 vcc, -1, 0", f"v_cndmask_b32 v{VA}, v{VA}, v{T}, vcc", f"v_lshlrev_b32 v{VA}, 7, v{VA}"]

def relayout2(a, mid):
    t=V_T; VD=32; VR=40; VS=50; F=64
    SK=S_CT; SO=S_CTG
    a(f"s_and_b32 s{SK}, s2, 3"); a(f"s_lshl_b32 s{SK}, s{SK}, 2"); a(f"s_bfe_u32 s{S_T0}, s2, 0x20003"); a(f"s_add_u32 s{SK}, s{SK}, s{S_T0}")
    a(f"s_and_b32 s{S_T0}, s{S_WAVE}, 1"); a(f"s_lshl_b32 s{S_T0}, s{S_T0}, 2")
    for i in range(5):
        a(f"v_add_u32 v{t}, {64*i}, v0"); a(f"v_mul_u32_u24 v{t+1}, 205, v{t}"); a(f"v_lshrrev_b32 v{t+1}, 14, v{t+1}")
        a(f"v_mul_u32_u24 v{t+2}, 80, v{t+1}"); a(f"v_sub_u32 v{t}, v{t}, v{t+2}")
        a(f"v_add_u32 v{t+2}, s{S_T0}, v{t+1}"); a(f"v_lshlrev_b32 v{t+2}, 1, v{t+2}"); a(f"v_xor_b32 v{t}, v{t}, v{t+2}")
        a(f"v_mul_u32_u24 v{t+1}, 1280, v{t+1}"); a(f"v_lshl_add_u32 v{VD+i}, v{t}, 4, v{t+1}")
    a(f"s_mul_i32 s{S_M0W}, s{S_WAVE}, 5120")
    def dma(m, buf):
        lab=f"RL{m}"
        a(f"s_add_u32 s{S_T0}, s{SK}, {16*m}")
        a(f"s_bfe_u32 s{S_T1}, s{S_WAVE}, 0x10001"); a(f"s_and_b32 s{S_T2}, s{S_WAVE}, 1"); a(f"s_lshr_b32 s{S_T3}, s{S_WAVE}, 2")
        a(f"s_cmp_ge_u32 s{S_T0}, 54"); a(f"s_cbranch_scc1 {lab}_WO")
        srd(a, S_B, P(7), 1728*1280)
        a(f"s_mul_i32 s{S_ROW}, s{S_T0}, 86"); a(f"s_lshr_b32 s{S_ROW}, s{S_ROW}, 8"); a(f"s_mul_i32 s{S_ROW}, s{S_ROW}, 3"); a(f"s_sub_u32 s{S_ROW}, s{S_T0}, s{S_ROW}")
        a(f"s_cmp_eq_u32 s{S_ROW}, 1"); a(f"s_cselect_b32 s{S_ROW}, 4, 3"); a(f"s_lshl_b32 s{S_T1}, s{S_T1}, s{S_ROW}")
        a(f"s_cmp_eq_u32 s{S_ROW}, 4"); a(f"s_cselect_b32 s{S_ROW}, 3, 4"); a(f"s_lshl_b32 s{S_T3}, s{S_T3}, s{S_ROW}")
        a(f"s_lshl_b32 s{S_T2}, s{S_T2}, 2"); a(f"s_lshl_b32 s{SO}, s{S_T0}, 5")
        a(f"s_branch {lab}_GO")
        a.label(f"{lab}_WO")
        srd(a, S_B, P(3), 640*1280)
        a(f"s_sub_u32 s{S_T0}, s{S_T0}, 54"); a(f"s_mul_i32 s{S_ROW}, s{S_T0}, 52"); a(f"s_lshr_b32 s{S_ROW}, s{S_ROW}, 8")
        a(f"s_mul_i32 s{SO}, s{S_ROW}, 160"); a(f"s_mul_i32 s{S_ROW}, s{S_ROW}, 5"); a(f"s_sub_u32 s{S_T0}, s{S_T0}, s{S_ROW}")
        a(f"s_cmp_eq_u32 s{S_T0}, 4"); a(f"s_cbranch_scc1 {lab}_LO")
        a(f"s_mul_i32 s{S_T0}, s{S_T0}, 40"); a(f"s_add_u32 s{SO}, s{SO}, s{S_T0}")
        a(f"s_mul_i32 s{S_T1}, s{S_T1}, 20"); a(f"s_lshl_b32 s{S_T2}, s{S_T2}, 2"); a(f"s_lshl_b32 s{S_T3}, s{S_T3}, 3")
        a(f"s_branch {lab}_GO")
        a.label(f"{lab}_LO")
        a(f"s_add_u32 s{SO}, s{SO}, 16"); a(f"s_xor_b32 s{S_T3}, s{S_T3}, s{S_T2}"); a(f"s_mul_i32 s{S_T3}, s{S_T3}, 20")
        a(f"s_mul_i32 s{S_T1}, s{S_T1}, 80"); a(f"s_mul_i32 s{S_T2}, s{S_T2}, 40")
        a.label(f"{lab}_GO")
        a(f"s_add_u32 s{SO}, s{SO}, s{S_T1}"); a(f"s_add_u32 s{SO}, s{SO}, s{S_T2}"); a(f"s_add_u32 s{SO}, s{SO}, s{S_T3}"); a(f"s_mul_i32 s{SO}, s{SO}, 1280")
        for i in range(5):
            a(f"s_add_u32 m0, s{S_M0W}, {buf*40960+1024*i}"); a(f"buffer_load_dwordx4 v{VD+i}, s[{S_B}:{S_B+3}], s{SO} offen lds")
    for m in range(4): dma(m, m)
    a(f"s_mov_b32 s{S_ROW}, s{S_PHI}"); mid()
    a(f"v_lshrrev_b32 v{t}, 2, v0"); a(f"v_and_b32 v{t+1}, 7, v{t}"); a(f"v_mul_u32_u24 v{t}, 1280, v{t}"); a(f"v_and_b32 v{t+2}, 3, v0"); a(f"v_lshl_add_u32 v{t}, v{t+2}, 3, v{t}")
    for nb in range(5):
        a(f"s_mul_i32 s{S_T0}, s{S_WAVE}, 5"); a(f"s_add_u32 s{S_T0}, s{S_T0}, {nb}"); a(f"s_and_b32 s{S_T1}, s{S_T0}, 7"); a(f"s_lshr_b32 s{S_T0}, s{S_T0}, 3"); a(f"s_lshl_b32 s{S_T0}, s{S_T0}, 8")
        a(f"v_xor_b32 v{t+2}, s{S_T1}, v{t+1}"); a(f"v_lshl_add_u32 v{t+2}, v{t+2}, 5, v{t}"); a(f"v_add_u32 v{VR+nb}, s{S_T0}, v{t+2}"); a(f"v_add_u32 v{VR+5+nb}, 81920, v{VR+nb}")
    a(f"v_lshlrev_b32 v{VS}, 4, v0"); a(f"v_add_u32 v{VS+1}, 4096, v{VS}")
    a(f"s_mul_i32 s{S_WOFF}, s{S_WAVE}, 74"); a(f"s_add_u32 s{S_WOFF}, s{S_WOFF}, s{SK}"); a(f"s_mul_i32 s{S_WOFF}, s{S_WOFF}, 5120"); a(f"s_add_u32 s{S_WOFF}, s{S_WOFF}, {WS_WT}")
    def conv(m, buf, nwait):
        a(f"s_waitcnt vmcnt({nwait})"); a("s_barrier")
        f=F+20*(m%2)
        for nb in range(5):
            for rd in range(2): a(f"ds_read_b64_tr_b16 {vr(f+4*nb+2*rd,2)}, v{VR+nb+(5 if buf>=2 else 0)} offset:{(buf%2)*40960+rd*20480}")
        a("s_waitcnt lgkmcnt(0)")
        for nb in range(5): a(f"buffer_store_dwordx4 {vr(f+4*nb,4)}, v{VS+(nb==4)}, s[{S_WS}:{S_WS+3}], s{S_WOFF} offen offset:{1024*nb if nb<4 else 0} sc1")
        a(f"s_add_u32 s{S_WOFF}, s{S_WOFF}, {16*5120}")
    conv(0,0,18)
    conv(1,1,18)
    a(f"s_cmp_lt_u32 s{SK}, 10"); a("s_cbranch_scc0 RL_NO5")
    dma(4, 0)
    a.label("RL_NO5")
    conv(2,2,18)
    conv(3,3,18)
    a(f"s_cmp_lt_u32 s{SK}, 10"); a("s_cbranch_scc0 RL_DONE")
    conv(4,0,10)
    a.label("RL_DONE")

def relayout3(a, mid, early):
    t=V_T; VD=32; VR=40; VS=50; F=64
    SK=S_CT; SO=S_CTG
    a(f"s_and_b32 s{SK}, s2, 3"); a(f"s_lshl_b32 s{SK}, s{SK}, 2"); a(f"s_bfe_u32 s{S_T0}, s2, 0x20003"); a(f"s_add_u32 s{SK}, s{SK}, s{S_T0}")
    a(f"s_and_b32 s{S_T0}, s{S_WAVE}, 1"); a(f"s_lshl_b32 s{S_T0}, s{S_T0}, 2")
    for i in range(5):
        a(f"v_add_u32 v{t}, {64*i}, v0"); a(f"v_mul_u32_u24 v{t+1}, 205, v{t}"); a(f"v_lshrrev_b32 v{t+1}, 14, v{t+1}")
        a(f"v_mul_u32_u24 v{t+2}, 80, v{t+1}"); a(f"v_sub_u32 v{t}, v{t}, v{t+2}")
        a(f"v_add_u32 v{t+2}, s{S_T0}, v{t+1}"); a(f"v_lshlrev_b32 v{t+2}, 1, v{t+2}"); a(f"v_xor_b32 v{t}, v{t}, v{t+2}")
        a(f"v_mul_u32_u24 v{t+1}, 1280, v{t+1}"); a(f"v_lshl_add_u32 v{VD+i}, v{t}, 4, v{t+1}")
    a(f"s_mul_i32 s{S_M0W}, s{S_WAVE}, 5120")
    def ksof(m, d):
        if m<2:
            a(f"s_add_u32 s{d}, s{SK}, {16*m}"); a(f"s_lshr_b32 s{S_T1}, s{d}, 2"); a(f"s_and_b32 s{d}, s{d}, 3")
            a(KS0[0](S_T1, S_T2)); a(f"s_add_u32 s{d}, s{d}, s{S_T2}")
        else:
            a(f"s_add_u32 s{d}, s{SK}, {16*(m-2)}")
            a(f"s_andn2_b32 s{S_T1}, s{d}, 3"); a(f"s_add_u32 s{S_T1}, s{S_T1}, 4")
            a(f"s_cmp_ge_u32 s{d}, 18"); a(f"s_cselect_b32 s{S_T1}, 24, s{S_T1}"); a(f"s_cmp_ge_u32 s{d}, 20"); a(f"s_cselect_b32 s{S_T1}, 28, s{S_T1}"); a(f"s_cmp_ge_u32 s{d}, 21"); a(f"s_cselect_b32 s{S_T1}, 32, s{S_T1}")
            a(f"s_add_u32 s{d}, s{d}, s{S_T1}")
    def dma(m, buf):
        lab=f"RL{m}"
        ksof(m, S_T0)
        a(f"s_bfe_u32 s{S_T1}, s{S_WAVE}, 0x10001"); a(f"s_and_b32 s{S_T2}, s{S_WAVE}, 1"); a(f"s_lshr_b32 s{S_T3}, s{S_WAVE}, 2")
        a(f"s_cmp_ge_u32 s{S_T0}, 54"); a(f"s_cbranch_scc1 {lab}_WO")
        srd(a, S_B, P(7), 1728*1280)
        a(f"s_mul_i32 s{S_ROW}, s{S_T0}, 86"); a(f"s_lshr_b32 s{S_ROW}, s{S_ROW}, 8"); a(f"s_mul_i32 s{S_ROW}, s{S_ROW}, 3"); a(f"s_sub_u32 s{S_ROW}, s{S_T0}, s{S_ROW}")
        a(f"s_cmp_eq_u32 s{S_ROW}, 1"); a(f"s_cselect_b32 s{S_ROW}, 4, 3"); a(f"s_lshl_b32 s{S_T1}, s{S_T1}, s{S_ROW}")
        a(f"s_cmp_eq_u32 s{S_ROW}, 4"); a(f"s_cselect_b32 s{S_ROW}, 3, 4"); a(f"s_lshl_b32 s{S_T3}, s{S_T3}, s{S_ROW}")
        a(f"s_lshl_b32 s{S_T2}, s{S_T2}, 2"); a(f"s_lshl_b32 s{SO}, s{S_T0}, 5")
        a(f"s_branch {lab}_GO")
        a.label(f"{lab}_WO")
        srd(a, S_B, P(3), 640*1280)
        a(f"s_sub_u32 s{S_T0}, s{S_T0}, 54"); a(f"s_mul_i32 s{S_ROW}, s{S_T0}, 52"); a(f"s_lshr_b32 s{S_ROW}, s{S_ROW}, 8")
        a(f"s_mul_i32 s{SO}, s{S_ROW}, 160"); a(f"s_mul_i32 s{S_ROW}, s{S_ROW}, 5"); a(f"s_sub_u32 s{S_T0}, s{S_T0}, s{S_ROW}")
        a(f"s_cmp_eq_u32 s{S_T0}, 4"); a(f"s_cbranch_scc1 {lab}_LO")
        a(f"s_mul_i32 s{S_T0}, s{S_T0}, 40"); a(f"s_add_u32 s{SO}, s{SO}, s{S_T0}")
        a(f"s_mul_i32 s{S_T1}, s{S_T1}, 20"); a(f"s_lshl_b32 s{S_T2}, s{S_T2}, 2"); a(f"s_lshl_b32 s{S_T3}, s{S_T3}, 3")
        a(f"s_branch {lab}_GO")
        a.label(f"{lab}_LO")
        a(f"s_add_u32 s{SO}, s{SO}, 16"); a(f"s_xor_b32 s{S_T3}, s{S_T3}, s{S_T2}"); a(f"s_mul_i32 s{S_T3}, s{S_T3}, 20")
        a(f"s_mul_i32 s{S_T1}, s{S_T1}, 80"); a(f"s_mul_i32 s{S_T2}, s{S_T2}, 40")
        a.label(f"{lab}_GO")
        a(f"s_add_u32 s{SO}, s{SO}, s{S_T1}"); a(f"s_add_u32 s{SO}, s{SO}, s{S_T2}"); a(f"s_add_u32 s{SO}, s{SO}, s{S_T3}"); a(f"s_mul_i32 s{SO}, s{SO}, 1280")
        for i in range(5):
            a(f"s_add_u32 m0, s{S_M0W}, {buf*40960+1024*i}"); a(f"buffer_load_dwordx4 v{VD+i}, s[{S_B}:{S_B+3}], s{SO} offen lds")
    for m in range(4): dma(m, m)
    a(f"s_mov_b32 s{S_ROW}, s{S_PHI}"); nmid=mid()
    a(f"v_lshrrev_b32 v{t}, 2, v0"); a(f"v_and_b32 v{t+1}, 7, v{t}"); a(f"v_mul_u32_u24 v{t}, 1280, v{t}"); a(f"v_and_b32 v{t+2}, 3, v0"); a(f"v_lshl_add_u32 v{t}, v{t+2}, 3, v{t}")
    for nb in range(5):
        a(f"s_mul_i32 s{S_T0}, s{S_WAVE}, 5"); a(f"s_add_u32 s{S_T0}, s{S_T0}, {nb}"); a(f"s_and_b32 s{S_T1}, s{S_T0}, 7"); a(f"s_lshr_b32 s{S_T0}, s{S_T0}, 3"); a(f"s_lshl_b32 s{S_T0}, s{S_T0}, 8")
        a(f"v_xor_b32 v{t+2}, s{S_T1}, v{t+1}"); a(f"v_lshl_add_u32 v{t+2}, v{t+2}, 5, v{t}"); a(f"v_add_u32 v{VR+nb}, s{S_T0}, v{t+2}"); a(f"v_add_u32 v{VR+5+nb}, 81920, v{VR+nb}")
    a(f"v_lshlrev_b32 v{VS}, 4, v0"); a(f"v_add_u32 v{VS+1}, 4096, v{VS}")
    def conv(m, buf, nwait, after=None):
        ksof(m, S_WOFF); a(f"s_mul_i32 s{S_T1}, s{S_WAVE}, 74"); a(f"s_add_u32 s{S_WOFF}, s{S_WOFF}, s{S_T1}"); a(f"s_mul_i32 s{S_WOFF}, s{S_WOFF}, 5120"); a(f"s_add_u32 s{S_WOFF}, s{S_WOFF}, {WS_WT}")
        a(f"s_waitcnt vmcnt({nwait})"); a("s_barrier")
        if after: after()
        f=F+20*(m%2)
        for nb in range(5):
            for rd in range(2): a(f"ds_read_b64_tr_b16 {vr(f+4*nb+2*rd,2)}, v{VR+nb+(5 if buf>=2 else 0)} offset:{(buf%2)*40960+rd*20480}")
        a("s_waitcnt lgkmcnt(0)")
        for nb in range(5): a(f"buffer_store_dwordx4 {vr(f+4*nb,4)}, v{VS+(nb==4)}, s[{S_WS}:{S_WS+3}], s{S_WOFF} offen offset:{1024*nb if nb<4 else 0} sc1")
    conv(0,0,15+nmid)
    conv(1,1,15+nmid)
    def aft():
        early()
        a(f"s_cmp_lt_u32 s{SK}, 10"); a("s_cbranch_scc0 RL_NO5")
        dma(4, 0)
        a.label("RL_NO5")
    conv(2,2,0,aft)
    conv(3,3,63)
    a(f"s_cmp_lt_u32 s{SK}, 10"); a("s_cbranch_scc0 RL_DONE")
    conv(4,0,10)
    a.label("RL_DONE")

def o_issue(a, RP, RQ, flags="sc1"):
    t=V_T
    a(f"s_lshr_b32 s{S_T0}, s2, 3")
    a(f"s_mul_i32 s{S_T1}, s{S_T0}, 81920"); a(f"s_add_u32 s{S_T1}, s{S_T1}, {WS_PQ}")
    a(f"s_and_b32 s{S_T2}, s2, 7"); a(f"s_lshl_b32 s{S_T2}, s{S_T2}, 3"); a(f"s_add_u32 s{S_T2}, s{S_T2}, s{S_WAVE}"); a(f"s_lshl_b32 s{S_T2}, s{S_T2}, 8")
    a(f"s_add_u32 s{S_T3}, s{S_T1}, s{S_T2}"); a(f"s_add_u32 s{S_T3}, s{S_T3}, 65536")
    a(f"s_lshl_b32 s{S_T2}, s{S_T2}, 1"); a(f"s_add_u32 s{S_T1}, s{S_T1}, s{S_T2}"); a(f"s_add_u32 s{S_T2}, s{S_T1}, 32768")
    a(f"v_and_b32 v{t}, 31, v0"); a(f"v_lshlrev_b32 v{t+1}, 3, v{t}"); a(f"v_lshlrev_b32 v{t}, 4, v{t}")
    a(f"buffer_load_dwordx4 {vr(RQ,4)}, v{t}, s[{S_WS}:{S_WS+3}], s{S_T1} offen {flags}")
    a(f"buffer_load_dwordx4 {vr(RQ+4,4)}, v{t}, s[{S_WS}:{S_WS+3}], s{S_T2} offen {flags}")
    a(f"buffer_load_dwordx2 {vr(RQ+8,2)}, v{t+1}, s[{S_WS}:{S_WS+3}], s{S_T3} offen {flags}")
    a(f"v_and_b32 v{t}, 31, v0"); a(f"s_mul_i32 s{S_T1}, s{S_WAVE}, 28"); a(f"v_add_u32 v{t+2}, s{S_T1}, v{t}"); a(f"v_min_u32 v{t+2}, 209, v{t+2}")
    a(f"v_lshrrev_b32 v{t+1}, 5, v0"); a(f"v_mul_u32_u24 v{t+1}, {4*32*3360}, v{t+1}"); a(f"v_lshl_add_u32 v{t}, v{t+2}, 4, v{t+1}")
    a(f"s_mul_i32 s{S_T0}, s{S_T0}, 3360"); a(f"s_add_u32 s{S_T0}, s{S_T0}, {WS_KVP}")
    for r in range(4):
        a(f"buffer_load_dwordx4 {vr(RP+4*r,4)}, v{t}, s[{S_WS}:{S_WS+3}], s{S_T0} offen {flags}")
        if r<3: a(f"s_add_u32 s{S_T0}, s{S_T0}, {32*3360}")
def o_kvz(a, RP, LB):
    t=V_T
    for e in (0,2):
        a(pk("v_pk_add_f32", RP+e, [RP+e, RP+4+e], "pp")); a(pk("v_pk_add_f32", RP+8+e, [RP+8+e, RP+12+e], "pp"))
    for e in (0,2): a(pk("v_pk_add_f32", RP+e, [RP+e, RP+8+e], "pp"))
    for e in range(4): a(f"v_mov_b32 v{RP+4+e}, v{RP+e}")
    for e in range(4): a(f"v_permlane32_swap_b32 v{RP+e}, v{RP+4+e}")
    for e in (0,2): a(pk("v_pk_add_f32", RP+e, [RP+e, RP+4+e], "pp"))
    a(f"v_cvt_pk_bf16_f32 v{RP+4}, v{RP}, v{RP+1}"); a(f"v_cvt_pk_bf16_f32 v{RP+5}, v{RP+2}, v{RP+3}")
    a(f"v_mov_b32 v{RP+6}, 0"); a(f"v_mov_b32 v{RP+7}, 0")
    a(f"v_and_b32 v{t}, 31, v0"); a(f"s_mul_i32 s{S_T1}, s{S_WAVE}, 28"); a(f"v_add_u32 v{t}, s{S_T1}, v{t}"); a(f"v_min_u32 v{t}, 209, v{t}")
    a(f"v_mul_u32_u24 v{t+1}, 3121, v{t}"); a(f"v_lshrrev_b32 v{t+1}, 16, v{t+1}")
    a(f"v_mul_u32_u24 v{t+2}, 21, v{t+1}"); a(f"v_sub_u32 v{t+2}, v{t}, v{t+2}")
    a(f"v_cmp_le_u32 vcc, 5, v{t+1}"); a(f"v_cndmask_b32 v{t+3}, 0, 1, vcc")
    a(f"v_mul_u32_u24 v{t+4}, 5, v{t+3}"); a(f"v_sub_u32 v{t+1}, v{t+1}, v{t+4}")
    a(f"v_cmp_eq_u32 vcc, 20, v{t+2}"); a(f"v_cndmask_b32 v{t+4}, 0, 4, vcc"); a(f"v_lshrrev_b32 v{t+5}, 5, v0"); a(f"v_mad_u32_u24 v{t+2}, v{t+4}, v{t+5}, v{t+2}")
    a(f"v_lshl_add_u32 v{t+3}, v{t+3}, 5, v{t+2}"); a(f"v_lshlrev_b32 v{t+3}, 4, v{t+3}")
    a(f"v_lshrrev_b32 v{t+4}, 1, v{t+1}"); a(f"v_lshl_add_u32 v{t+3}, v{t+4}, 10, v{t+3}")
    a(f"v_and_b32 v{t+4}, 1, v{t+1}"); a(f"v_lshl_add_u32 v{t+3}, v{t+4}, 3, v{t+3}"); a(f"v_add_u32 v{t+3}, {LB}, v{t+3}")
    a(f"ds_write_b64 v{t+3}, {vr(RP+4,2)}")
    a(f"v_cmp_eq_u32 vcc, 4, v{t+1}"); a(f"s_mov_b64 exec, vcc")
    a(f"ds_write_b64 v{t+3}, {vr(RP+6,2)} offset:8")
    a("s_mov_b64 exec, -1")
def o_softmax(a, RQ, T, F):
    t=V_T
    a(f"v_lshrrev_b32 v{t}, 5, v0"); a(f"v_mul_u32_u24 v{t}, 0x8000, v{t}"); a(f"v_lshl_add_u32 v{t}, v{t}, 16, v{t}")
    for k in range(10): a(f"v_xor_b32 v{RQ+k}, v{RQ+k}, v{t}")
    for k in range(10): a(f"v_lshlrev_b32 v{T+2*k}, 16, v{RQ+k}"); a(f"v_and_b32 v{T+2*k+1}, 0xffff0000, v{RQ+k}")
    softmax20(a, [T+2*i for i in range(10)], +1, T+20, F)
    a(f"v_mov_b32 v{F+10}, 0"); a(f"v_mov_b32 v{F+11}, 0")
def o_finish(a, LB, AF, F, D, flags="sc1"):
    t=V_T
    a(f"v_lshlrev_b32 v{t}, 4, v0"); a(f"v_add_u32 v{t}, {LB}, v{t}")
    for s in range(3): a(f"ds_read_b128 {vr(AF+4*s,4)}, v{t} offset:{1024*s}")
    a(f"s_lshr_b32 s{S_T0}, s2, 3")
    a(f"s_and_b32 s{S_T1}, s2, 7"); a(f"s_lshl_b32 s{S_T1}, s{S_T1}, 3"); a(f"s_add_u32 s{S_T1}, s{S_T1}, s{S_WAVE}"); a(f"s_mul_i32 s{S_T1}, s{S_T1}, 40")
    a(f"s_lshr_b32 s{S_T2}, s{S_T0}, 3"); a(f"s_mul_i32 s{S_T2}, s{S_T2}, 5"); a(f"s_add_u32 s{S_T1}, s{S_T1}, s{S_T2}")
    a(f"s_lshl_b32 s{S_T1}, s{S_T1}, 10"); a(f"s_add_u32 s{S_T1}, s{S_T1}, {WS_O}")
    a(f"s_and_b32 s{S_T0}, s{S_T0}, 7")
    a(f"s_lshl_b32 s{S_T2}, s{S_T0}, 9"); a(f"s_add_u32 s{S_T2}, s{S_T2}, s{S_T1}")
    a(f"s_lshr_b32 s{S_T3}, s{S_T0}, 1"); a(f"s_xor_b32 s{S_T0}, s{S_T0}, s{S_T3}"); a(f"s_and_b32 s{S_T0}, s{S_T0}, 1"); a(f"s_lshl_b32 s{S_T0}, s{S_T0}, 3")
    a(f"s_lshl_b32 s{S_T3}, s{S_T3}, 8"); a(f"s_add_u32 s{S_T0}, s{S_T0}, s{S_T3}"); a(f"s_add_u32 s{S_T0}, s{S_T0}, s{S_T1}"); a(f"s_add_u32 s{S_T0}, s{S_T0}, 4096")
    a(f"v_bfe_u32 v{t}, v0, 4, 1"); a(f"v_mul_u32_u24 v{t}, 20480, v{t}"); a(f"v_and_b32 v{t+1}, 15, v0"); a(f"v_lshl_add_u32 v{t}, v{t+1}, 4, v{t}")
    a(f"v_lshrrev_b32 v{t+1}, 5, v0"); a(f"v_lshl_add_u32 v{t+1}, v{t+1}, 8, v{t}")
    a(f"v_cmp_gt_u32 vcc, 32, v0")
    a("s_waitcnt lgkmcnt(0)")
    for s in range(3): a(f"v_mfma_f32_32x32x16_bf16 {vr(D,16)}, {vr(AF+4*s,4)}, {vr(F+4*s,4)}, {vr(D,16) if s else 0}")
    a(f"v_cndmask_b32 v{D+14}, v{D+8}, v{D+12}, vcc"); a(f"v_add_f32 v{D+14}, 0x358637bd, v{D+14}"); a(f"v_rcp_f32 v{D+14}, v{D+14}")
    for i in range(0,12,2): a(pk("v_pk_mul_f32", D+i, [D+i, D+14], "pl"))
    for k in range(6): a(f"v_cvt_pk_bf16_f32 v{AF+k}, v{D+2*k}, v{D+2*k+1}")
    a(f"buffer_store_dwordx4 {vr(AF,4)}, v{t+1}, s[{S_WS}:{S_WS+3}], s{S_T2} offen {flags}")
    a("s_mov_b32 exec_hi, 0")
    a(f"buffer_store_dwordx2 {vr(AF+4,2)}, v{t}, s[{S_WS}:{S_WS+3}], s{S_T0} offen {flags}")
    a("s_mov_b64 exec, -1")

S_BO=39; S_AO=40; S_LB=41; S_ROT=44; S_NS=49; S_IX=50
G_A=1
G_B=5
G_L=7
G_X=8
G_F=11
def g2_addr_b(a, rot=1):
    a(f"v_lshlrev_b32 v{G_B}, 4, v0"); a(f"v_add_u32 v{G_B+1}, 4096, v{G_B}")
    a(f"s_mul_i32 s{S_LB}, s{S_WAVE}, 20480"); a(f"v_add_u32 v{G_L}, s{S_LB}, v{G_B}")
    a(f"s_mul_i32 s{S_T0}, s{S_WAVE}, 9"); a(f"s_cmp_eq_u32 s{S_WAVE}, 7"); a(f"s_cselect_b32 s{S_T0}, 64, s{S_T0}")
    a(f"s_bfe_u32 s{S_T1}, s2, 0x30003"); a(f"s_mul_i32 s{S_T1}, s{S_T1}, 74"); a(f"s_add_u32 s{S_BO}, s{S_T0}, s{S_T1}"); a(f"s_mul_i32 s{S_BO}, s{S_BO}, 5120"); a(f"s_add_u32 s{S_BO}, s{S_BO}, {WS_WT}")
    a(f"s_bfe_u32 s{S_ROT}, s2, 0x30003"); a(f"s_lshr_b32 s{S_T0}, s2, 6"); a(f"s_lshl_b32 s{S_T0}, s{S_T0}, 1"); a(f"s_add_u32 s{S_ROT}, s{S_ROT}, s{S_T0}")
    a(f"s_cmp_ge_u32 s{S_ROT}, 9"); a(f"s_cselect_b32 s{S_T0}, 9, 0"); a(f"s_sub_u32 s{S_ROT}, s{S_ROT}, s{S_T0}")
    if not rot: a(f"s_mov_b32 s{S_ROT}, 0")
    a(f"s_cmp_ge_u32 s{S_WAVE}, 6"); a(f"s_cselect_b32 s{S_NS}, 10, 9")
def ix(s, dst, base, mul):
    return [f"s_add_u32 s{S_IX}, s{S_ROT}, {s}", f"s_sub_u32 s{dst}, s{S_IX}, s{S_NS}", f"s_min_u32 s{S_IX}, s{S_IX}, s{dst}", f"s_mul_i32 s{S_IX}, s{S_IX}, {mul}", f"s_add_u32 s{dst}, s{base}, s{S_IX}"]
def g2_addr_a(a):
    a(f"s_and_b32 s{S_T0}, s2, 7"); a(f"s_lshl_b32 s{S_T0}, s{S_T0}, 4"); a(f"s_lshr_b32 s{S_T1}, s2, 6"); a(f"s_lshl_b32 s{S_T1}, s{S_T1}, 2"); a(f"s_add_u32 s{S_T0}, s{S_T0}, s{S_T1}")
    a(f"s_mul_i32 s{S_T1}, s{S_WAVE}, 9"); a(f"s_mul_i32 s{S_T2}, s{S_WAVE}, 10"); a(f"s_sub_u32 s{S_T2}, s{S_T2}, 60")
    a(f"s_cmp_ge_u32 s{S_WAVE}, 6"); a(f"s_cselect_b32 s{S_T1}, s{S_T2}, s{S_T1}"); a(f"s_cselect_b32 s{S_T2}, 20, 54"); a(f"s_mov_b32 s{S_T3}, {WS_H}"); a(f"s_cselect_b32 s{S_T3}, {WS_O}, s{S_T3}")
    a(f"s_mul_i32 s{S_AO}, s{S_T0}, s{S_T2}"); a(f"s_add_u32 s{S_AO}, s{S_AO}, s{S_T1}"); a(f"s_lshl_b32 s{S_AO}, s{S_AO}, 10"); a(f"s_add_u32 s{S_AO}, s{S_AO}, s{S_T3}")
    a(f"s_lshl_b32 s{S_T2}, s{S_T2}, 10"); a(f"v_lshlrev_b32 v{G_A}, 4, v0")
    for i in range(1,4): a(f"v_add_u32 v{G_A+i}, s{S_T2}, v{G_A+i-1}")
def g2_bdma(s, slot):
    L=[]
    for nb in range(5):
        it=[f"s_add_u32 m0, s{S_LB}, {slot*5120+(4096 if nb==4 else 0)}"]
        if nb==0: it=ix(s, S_T3, S_BO, 5120)+it
        it.append(f"buffer_load_dwordx4 v{G_B+(nb==4)}, s[{S_WS}:{S_WS+3}], s{S_T3} offen offset:{1024*nb if nb<4 else 0} sc1 lds")
        L.append(it)
    return L
def g2_bload(s, R):
    L=[]
    for nb in range(5):
        it=[]
        if nb==0: it+=ix(s, S_T3, S_BO, 5120)
        it.append(f"buffer_load_dwordx4 {vr(R+4*nb,4)}, v{G_B+(nb==4)}, s[{S_WS}:{S_WS+3}], s{S_T3} offen offset:{1024*nb if nb<4 else 0} sc1")
        L.append(it)
    return L
def g2_aload(s, R):
    L=[]
    for t in range(4):
        it=[]
        if t==0: it+=ix(s, S_T2, S_AO, 1024)
        it.append(f"buffer_load_dwordx4 {vr(R+4*t,4)}, v{G_A+t}, s[{S_WS}:{S_WS+3}], s{S_T2} offen sc1")
        L.append(it)
    return L
def g2_lread(slot, R):
    return [f"ds_read_b128 {vr(R+4*nb,4)}, v{G_L} offset:{slot*5120+nb*1024}" for nb in range(5)]
def g2_mfma(Wf, Af, first):
    return [f"v_mfma_f32_16x16x32_bf16 {vr(ACC+4*(4*nb+t),4)}, {vr(Wf+4*nb,4)}, {vr(Af+4*t,4)}, {0 if first else vr(ACC+4*(4*nb+t),4)}" for t in range(4) for nb in range(5)]
def g2_x_issue(a, R):
    t=V_T
    a(f"s_and_b32 s{S_T0}, s2, 7"); a(f"s_lshl_b32 s{S_T0}, s{S_T0}, 8"); a(f"s_lshr_b32 s{S_T1}, s2, 6"); a(f"s_lshl_b32 s{S_T1}, s{S_T1}, 6"); a(f"s_add_u32 s{S_T0}, s{S_T0}, s{S_T1}")
    a(f"s_lshl_b32 s{S_T1}, s{S_WAVE}, 3"); a(f"s_add_u32 s{S_T0}, s{S_T0}, s{S_T1}"); a(f"s_mul_i32 s{S_T0}, s{S_T0}, 1280")
    a(f"s_bfe_u32 s{S_T1}, s2, 0x30003"); a(f"s_mul_i32 s{S_T1}, s{S_T1}, 160"); a(f"s_add_u32 s{S_T0}, s{S_T0}, s{S_T1}")
    for r in range(3):
        a(f"v_add_u32 v{t}, {64*r}, v0"); a(f"v_mul_u32_u24 v{t+1}, 205, v{t}"); a(f"v_lshrrev_b32 v{t+1}, 12, v{t+1}")
        a(f"v_mul_u32_u24 v{t+2}, {1280-160}, v{t+1}"); a(f"v_lshl_add_u32 v{t+2}, v{t}, 3, v{t+2}"); a(f"v_add_u32 v{G_X+r}, s{S_T0}, v{t+2}")
        if r==2:
            a(f"v_cmp_gt_u32 vcc, 32, v0"); a(f"v_mov_b32 v{t}, 0x7ffffff0"); a(f"v_cndmask_b32 v{G_X+r}, v{t}, v{G_X+r}, vcc")
        a(f"buffer_load_dwordx2 {vr(R+2*r,2)}, v{G_X+r}, s[{S_XALL}:{S_XALL+3}], 0 offen")
def g2_reduce_final(a, RX):
    t=V_T
    a(f"v_and_b32 v{t}, 15, v0"); a(f"v_mul_u32_u24 v{t}, 320, v{t}"); a(f"v_lshrrev_b32 v{t+1}, 4, v0"); a(f"v_lshrrev_b32 v{t+2}, 1, v0"); a(f"v_xor_b32 v{t+1}, v{t+1}, v{t+2}")
    a(f"v_and_b32 v{t+1}, 3, v{t+1}"); a(f"v_lshl_add_u32 v{t}, v{t+1}, 4, v{t}"); a(f"v_add_u32 v{t}, s{S_LB}, v{t}")
    for nb in range(5):
        for tb in range(4): a(f"ds_write_b128 v{t}, {vr(ACC+4*(4*nb+tb),4)} offset:{tb*5120+nb*64}")
    RA=t+1
    for r in range(3):
        a(f"v_add_u32 v{t+4}, {64*r}, v0"); a(f"v_mul_u32_u24 v{t+5}, 205, v{t+4}"); a(f"v_lshrrev_b32 v{t+5}, 13, v{t+5}")
        a(f"v_and_b32 v{t+5}, 3, v{t+5}"); a(f"v_xor_b32 v{t+4}, v{t+4}, v{t+5}")
        a(f"v_lshlrev_b32 v{RA+r}, 4, v{t+4}")
    a(f"s_mul_i32 s{S_T0}, s{S_WAVE}, 2560")
    for r in range(3): a(f"v_add_u32 v{RA+r}, s{S_T0}, v{RA+r}")
    V2=t+4
    for r in range(3): a(f"v_add_u32 v{V2+r}, 81920, v{RA+r}")
    a(f"v_cmp_gt_u32 vcc, 32, v0"); a(f"v_cndmask_b32 v{V2+2}, 0, v{V2+2}, vcc")
    a("s_waitcnt lgkmcnt(0)"); a("s_barrier")
    B=128
    for r in range(3):
        for w in range(8): a(f"ds_read_b128 {vr(B+32*r+4*w,4)}, v{(RA if w<4 else V2)+r} offset:{(w%4)*20480}")
    a(f"s_mov_b32 s{S_L2E}, {LOG2E|0x80000000}")
    for r in range(3):
        a(f"s_waitcnt lgkmcnt({min(15,8*(2-r))})" + (" vmcnt(0)" if r==0 else ""))
        b=B+32*r
        for w in (1,2):
            for e in (0,2): a(pk("v_pk_add_f32", b+e, [b+e, b+4*w+e], "pp")); a(pk("v_pk_add_f32", b+12+e, [b+12+e, b+12+4*w+e], "pp"))
        for e in (0,2): a(pk("v_pk_add_f32", b+e, [b+e, b+12+e], "pp")); a(pk("v_pk_add_f32", b+24+e, [b+24+e, b+28+e], "pp"))
        for e in range(4): a(f"v_mul_f32 v{b+4+e}, s{S_L2E}, v{b+e}")
        for e in range(4): a(f"v_exp_f32 v{b+4+e}, v{b+4+e}")
        for e in (0,2): a(pk("v_pk_mul_f32", b+e, [b+e, b+24+e], "pp"))
        for e in range(4): a(f"v_add_f32 v{b+4+e}, 1.0, v{b+4+e}")
        for e in range(4): a(f"v_rcp_f32 v{b+4+e}, v{b+4+e}")
        for e in range(2): a(f"v_lshlrev_b32 v{b+8+2*e}, 16, v{RX+2*r+e}"); a(f"v_and_b32 v{b+9+2*e}, 0xffff0000, v{RX+2*r+e}")
        for e in (0,2): a(pk("v_pk_fma_f32", b+8+e, [b+e, b+4+e, b+8+e], "ppp"))
        a(f"v_cvt_pk_bf16_f32 v{b}, v{b+8}, v{b+9}"); a(f"v_cvt_pk_bf16_f32 v{b+1}, v{b+10}, v{b+11}")
        a(f"buffer_store_dwordx2 {vr(b,2)}, v{G_X+r}, s[{S_OUT}:{S_OUT+3}], 0 offen")
```

```python
from p1 import *
from p1e import *
from p2 import *
from p3 import *
BR4=144
S_BW=79
def ks0(src, dst):
    return [f"s_mul_i32 s{dst}, s{src}, 7", f"s_cmp_eq_u32 s{src}, 7", f"s_cselect_b32 s{dst}, 48, s{dst}"]
def addr_b():
    return [f"v_lshlrev_b32 v{G_B}, 4, v0", f"v_add_u32 v{G_B+1}, 4096, v{G_B}",
            f"s_mul_i32 s{S_LB}, s{S_WAVE}, 10240", f"s_add_u32 s{S_LB1}, s{S_LB}, {H1}",
            ks0(S_WAVE, S_T0)+[f"s_bfe_u32 s{S_T1}, s2, 0x30003", f"s_mul_i32 s{S_T1}, s{S_T1}, 74", f"s_add_u32 s{S_BO}, s{S_T0}, s{S_T1}", f"s_mul_i32 s{S_BO}, s{S_BO}, 5120", f"s_add_u32 s{S_BO}, s{S_BO}, {WS_WT}"]]
def bstep(s):
    return {0:lambda:bload(0,BR[0]),1:lambda:bload(1,BR[1]),2:lambda:bdma(2,0),3:lambda:bdma(3,1),4:lambda:bload(4,BR[2]),5:lambda:bload(5,BR[3]),6:lambda:bload(6,BR4)}[s]()
def addr_a(a, wo):
    nk=20 if wo else 54
    a(f"s_and_b32 s{S_T0}, s2, 7"); a(f"s_lshl_b32 s{S_T0}, s{S_T0}, 4"); a(f"s_lshr_b32 s{S_T1}, s2, 6"); a(f"s_lshl_b32 s{S_T1}, s{S_T1}, 2"); a(f"s_add_u32 s{S_T0}, s{S_T0}, s{S_T1}")
    a(f"s_mul_i32 s{S_AO}, s{S_T0}, {nk}")
    if wo: a(f"s_mul_i32 s{S_T1}, s{S_TG}, 5")
    else: a(ks0(S_WAVE, S_T1))
    a(f"s_add_u32 s{S_AO}, s{S_AO}, s{S_T1}"); a(f"s_lshl_b32 s{S_AO}, s{S_AO}, 10"); a(f"s_add_u32 s{S_AO}, s{S_AO}, {WS_O if wo else WS_H}")
    a(f"v_lshlrev_b32 v{G_A}, 4, v0")
    for i in range(1,4): a(f"v_add_u32 v{G_A+i}, {nk*1024*i}, v{G_A}")
    if not wo: a(f"v_add_u32 v{G_L+1}, s{S_LB1}, v{G_A}")
def addr_bw(a):
    a(f"s_bfe_u32 s{S_T0}, s2, 0x30003"); a(f"s_mul_i32 s{S_T0}, s{S_T0}, 74"); a(f"s_mul_i32 s{S_T1}, s{S_TG}, 5"); a(f"s_add_u32 s{S_T0}, s{S_T0}, s{S_T1}"); a(f"s_add_u32 s{S_T0}, s{S_T0}, 54")
    a(f"s_mul_i32 s{S_BO}, s{S_T0}, 5120"); a(f"s_add_u32 s{S_BO}, s{S_BO}, {WS_WT}")
def fa_h(VA, T):
    return ks0(S_WAVE, S_T0)+[f"s_add_u32 s{S_T1}, s{S_T0}, 6", f"s_min_u32 s{S_T1}, s{S_T1}, 53", f"s_cmp_eq_u32 s{S_WAVE}, 6", f"s_cselect_b32 s{S_T1}, 47, s{S_T1}",
            f"s_mul_i32 s{S_T0}, s{S_T0}, 86", f"s_lshr_b32 s{S_T0}, s{S_T0}, 8", f"s_mul_i32 s{S_T1}, s{S_T1}, 86", f"s_lshr_b32 s{S_T1}, s{S_T1}, 8",
            f"v_add_u32 v{T}, s{S_T0}, v0", f"v_min_u32 v{T}, s{S_T1}, v{T}",
            f"v_cmp_le_u32 vcc, 14, v{T}", f"v_addc_co_u32 v{T+1}, vcc, 0, v{T}, vcc",
            f"v_mul_u32_u24 v{VA}, 52, v{T+1}", f"v_lshrrev_b32 v{VA}, 8, v{VA}",
            f"v_mul_u32_u24 v{T}, 5, v{VA}", f"v_sub_u32 v{T}, v{T+1}, v{T}", f"v_add_u32 v{T}, 3, v{T}",
            f"v_lshlrev_b32 v{T}, 5, v{T}", f"v_lshl_add_u32 v{VA}, v{VA}, 1, v{T}",
            f"s_and_b32 s{S_T0}, s2, 3", f"s_lshl_b32 s{S_T0}, s{S_T0}, 3", f"s_bfe_u32 s{S_T1}, s2, 0x10002", f"s_add_u32 s{S_T0}, s{S_T0}, s{S_T1}", f"v_add_u32 v{VA}, s{S_T0}, v{VA}", f"v_lshlrev_b32 v{VA}, 7, v{VA}"]
def fa_o(VA):
    return [f"v_and_b32 v{VA}, 7, v0", f"s_lshl_b32 s{S_T0}, s{S_TG}, 3", f"v_add_u32 v{VA}, s{S_T0}, v{VA}", f"v_lshlrev_b32 v{VA}, 3, v{VA}", f"s_and_b32 s{S_T0}, s2, 7", f"v_add_u32 v{VA}, s{S_T0}, v{VA}", f"v_lshlrev_b32 v{VA}, 7, v{VA}"]
DG=112
def d_reduce(a, RA, B, G):
    a(f"s_mov_b32 s{S_L2E}, {LOG2E|0x80000000}")
    rd=lambda r: [f"ds_read_b128 {vr(B+32*(r&1)+4*w,4)}, v{RA+r+(3 if w>=4 else 0)} offset:{(w%4)*10240}" for w in range(8)]
    a(rd(0)); a(rd(1))
    for r in range(3):
        a(f"s_waitcnt lgkmcnt({8 if r<2 else 0})")
        b=B+32*(r&1)
        for st in (4,8,16):
            for p in range(0,32,2*st):
                for e in (0,2): a(pk("v_pk_add_f32", b+p+e if st<16 else G+4*r+e, [b+p+e, b+p+st+e], "pp"))
        if r==0: a(rd(2))
        g=G+4*r; t=V_T
        for e in range(4): a(f"v_mul_f32 v{t+e}, s{S_L2E}, v{g+e}")
        for e in range(4): a(f"v_exp_f32 v{t+e}, v{t+e}")
        for e in range(4): a(f"v_add_f32 v{t+e}, 1.0, v{t+e}")
        for e in range(4): a(f"v_rcp_f32 v{t+e}, v{t+e}")
        for e in (0,2): a(pk("v_pk_mul_f32", g+e, [g+e, t+e], "pp"))
def s_final(a, RX, RA, B, G):
    for r in range(3):
        for w in range(4): a(f"ds_read_b128 {vr(B+16*r+4*w,4)}, v{RA+3+r} offset:{w*10240}")
    for r in range(3):
        for e in range(2): a(f"v_lshlrev_b32 v{B+48+4*r+2*e}, 16, v{RX+2*r+e}"); a(f"v_and_b32 v{B+49+4*r+2*e}, 0xffff0000, v{RX+2*r+e}")
    for r in range(3):
        a(f"s_waitcnt lgkmcnt({4*(2-r)})")
        b=B+16*r; x=B+48+4*r
        for e in (0,2): a(pk("v_pk_add_f32", b+e, [b+e, b+4+e], "pp")); a(pk("v_pk_add_f32", b+8+e, [b+8+e, b+12+e], "pp"))
        for e in (0,2): a(pk("v_pk_add_f32", b+e, [b+e, b+8+e], "pp"))
        for e in (0,2): a(pk("v_pk_fma_f32", x+e, [b+e, G+4*r+e, x+e], "ppp"))
        a(f"v_cvt_pk_bf16_f32 v{b}, v{x}, v{x+1}"); a(f"v_cvt_pk_bf16_f32 v{b+1}, v{x+2}, v{x+3}")
        a(f"buffer_store_dwordx2 {vr(b,2)}, v{G_X+r}, s[{S_OUT}:{S_OUT+3}], 0 offen")

def x5_issue(a, R, GX, T):
    a(f"s_and_b32 s{S_T0}, s2, 7"); a(f"s_lshl_b32 s{S_T0}, s{S_T0}, 8"); a(f"s_lshr_b32 s{S_T1}, s2, 6"); a(f"s_lshl_b32 s{S_T1}, s{S_T1}, 6"); a(f"s_add_u32 s{S_T0}, s{S_T0}, s{S_T1}")
    a(f"s_lshl_b32 s{S_T1}, s{S_TG}, 4"); a(f"s_add_u32 s{S_T0}, s{S_T0}, s{S_T1}"); a(f"s_mul_i32 s{S_T0}, s{S_T0}, 1280")
    a(f"s_bfe_u32 s{S_T1}, s2, 0x30003"); a(f"s_mul_i32 s{S_T1}, s{S_T1}, 160"); a(f"s_add_u32 s{S_T0}, s{S_T0}, s{S_T1}")
    for r in range(5):
        a(f"v_add_u32 v{T}, {64*r}, v0"); a(f"v_mul_u32_u24 v{T+1}, 3277, v{T}"); a(f"v_lshrrev_b32 v{T+1}, 16, v{T+1}")
        a(f"v_mul_u32_u24 v{T+1}, {1280-160}, v{T+1}"); a(f"v_lshl_add_u32 v{T+1}, v{T}, 3, v{T+1}"); a(f"v_add_u32 v{GX+r}, s{S_T0}, v{T+1}")
        a(f"buffer_load_dwordx2 {vr(R+2*r,2)}, v{GX+r}, s[{S_XALL}:{S_XALL+3}], 0 offen")
def ra5(a, RA, T):
    a(f"s_and_b32 s{S_T0}, s{S_TG}, 1"); a(f"s_mul_i32 s{S_T0}, s{S_T0}, 5120"); a(f"s_lshr_b32 s{S_T1}, s{S_TG}, 1"); a(f"s_mul_i32 s{S_T1}, s{S_T1}, {H1}"); a(f"s_add_u32 s{S_T0}, s{S_T0}, s{S_T1}")
    for r in range(5):
        a(f"v_add_u32 v{T}, {64*r}, v0"); a(f"v_mul_u32_u24 v{T+1}, 3277, v{T}"); a(f"v_bfe_u32 v{T+1}, v{T+1}, 17, 2"); a(f"v_xor_b32 v{T}, v{T}, v{T+1}")
        a(f"v_lshlrev_b32 v{T}, 4, v{T}"); a(f"v_add_u32 v{RA+r}, s{S_T0}, v{T}"); a(f"v_add_u32 v{RA+5+r}, 40960, v{RA+r}")
def d_reduce5(a, RA, B, G):
    a(f"s_mov_b32 s{S_L2E}, {LOG2E|0x80000000}")
    rd=lambda r: [f"ds_read_b128 {vr(B+32*(r%3)+4*w,4)}, v{RA+r+(5 if w>=4 else 0)} offset:{(w%4)*10240}" for w in range(8)]
    a(rd(0)); a(rd(1))
    for r in range(5):
        a(f"s_waitcnt lgkmcnt({8 if r<4 else 0})")
        if r+2<5: a(rd(r+2))
        b=B+32*(r%3)
        for st in (4,8,16):
            for p in range(0,32,2*st):
                for e in (0,2): a(pk("v_pk_add_f32", b+p+e if st<16 else G+4*r+e, [b+p+e, b+p+st+e], "pp"))
        g=G+4*r; t=V_T
        for e in range(4): a(f"v_mul_f32 v{t+e}, s{S_L2E}, v{g+e}")
        for e in range(4): a(f"v_exp_f32 v{t+e}, v{t+e}")
        for e in range(4): a(f"v_add_f32 v{t+e}, 1.0, v{t+e}")
        for e in range(4): a(f"v_rcp_f32 v{t+e}, v{t+e}")
        for e in (0,2): a(pk("v_pk_mul_f32", g+e, [g+e, t+e], "pp"))
def x5_unpack(a, RX, X):
    for r in range(5):
        for e in range(2): a(f"v_lshlrev_b32 v{X+4*r+2*e}, 16, v{RX+2*r+e}"); a(f"v_and_b32 v{X+4*r+2*e+1}, 0xffff0000, v{RX+2*r+e}")
def s_final5(a, X, GX, RA, B, G):
    for r in range(5):
        for w in range(4): a(f"ds_read_b128 {vr(B+16*r+4*w,4)}, v{RA+5+r} offset:{w*10240}")
    for r in range(5):
        a(f"s_waitcnt lgkmcnt({min(15,4*(4-r))})")
        b=B+16*r; x=X+4*r
        for e in (0,2): a(pk("v_pk_add_f32", b+e, [b+e, b+4+e], "pp")); a(pk("v_pk_add_f32", b+8+e, [b+8+e, b+12+e], "pp"))
        for e in (0,2): a(pk("v_pk_add_f32", b+e, [b+e, b+8+e], "pp"))
        for e in (0,2): a(pk("v_pk_fma_f32", x+e, [b+e, G+4*r+e, x+e], "ppp"))
        a(f"v_cvt_pk_bf16_f32 v{b}, v{x}, v{x+1}"); a(f"v_cvt_pk_bf16_f32 v{b+1}, v{x+2}, v{x+3}")
        a(f"buffer_store_dwordx2 {vr(b,2)}, v{GX+r}, s[{S_OUT}:{S_OUT+3}], 0 offen")
```

```python
from p1 import *
from p1e import *
from p2 import *
from p3 import *
from p4 import *
import p4
def ks0(src, dst):
    return [f"s_lshl_b32 s{dst}, s{src}, 3", f"s_cmp_eq_u32 s{src}, 5", f"s_cselect_b32 s{dst}, 38, s{dst}", f"s_cmp_eq_u32 s{src}, 6", f"s_cselect_b32 s{dst}, 44, s{dst}", f"s_cmp_eq_u32 s{src}, 7", f"s_cselect_b32 s{dst}, 49, s{dst}"]
p4.ks0=ks0
def bstep(s):
    return {0:lambda:bload(0,BR[0]),1:lambda:bload(1,BR[1]),2:lambda:bdma(2,0),3:lambda:bdma(3,1),4:lambda:bload(4,BR[2]),5:lambda:bload(5,BR[3]),6:lambda:bload(6,BR4),7:lambda:bdma(7,2)}[s]()
def fa_h(VA, T):
    return ks0(S_WAVE, S_T0)+[f"s_cmp_ge_u32 s{S_WAVE}, 4", f"s_cselect_b32 s{S_T1}, 5, 7", f"s_cmp_ge_u32 s{S_WAVE}, 6", f"s_cselect_b32 s{S_T1}, 4, s{S_T1}", f"s_add_u32 s{S_T1}, s{S_T1}, s{S_T0}",
            f"s_mul_i32 s{S_T0}, s{S_T0}, 86", f"s_lshr_b32 s{S_T0}, s{S_T0}, 8", f"s_mul_i32 s{S_T1}, s{S_T1}, 86", f"s_lshr_b32 s{S_T1}, s{S_T1}, 8",
            f"v_add_u32 v{T}, s{S_T0}, v0", f"v_min_u32 v{T}, s{S_T1}, v{T}",
            f"v_cmp_le_u32 vcc, 14, v{T}", f"v_addc_co_u32 v{T+1}, vcc, 0, v{T}, vcc",
            f"v_mul_u32_u24 v{VA}, 52, v{T+1}", f"v_lshrrev_b32 v{VA}, 8, v{VA}",
            f"v_mul_u32_u24 v{T}, 5, v{VA}", f"v_sub_u32 v{T}, v{T+1}, v{T}", f"v_add_u32 v{T}, 3, v{T}",
            f"v_lshlrev_b32 v{T}, 5, v{T}", f"v_lshl_add_u32 v{VA}, v{VA}, 1, v{T}",
            f"s_and_b32 s{S_T0}, s2, 3", f"s_lshl_b32 s{S_T0}, s{S_T0}, 3", f"s_bfe_u32 s{S_T1}, s2, 0x10002", f"s_add_u32 s{S_T0}, s{S_T0}, s{S_T1}", f"v_add_u32 v{VA}, s{S_T0}, v{VA}", f"v_lshlrev_b32 v{VA}, 7, v{VA}"]
L_CNT=L_KVZ+3072
def cnt_zero(a):
    t=V_T+4
    a(f"v_mov_b32 v{t}, 0"); a(f"v_mov_b32 v{t+1}, 0"); a(f"v_mov_b32 v{t+2}, {L_CNT}"); a(f"ds_write_b64 v{t+2}, {vr(t,2)}"); a("s_waitcnt lgkmcnt(0)")
def cnt_add(a, k, T):
    a(f"v_mov_b32 v{T}, {L_CNT+4*k}"); a(f"v_mov_b32 v{T+1}, 1"); a("s_mov_b64 exec, 1"); a(f"ds_add_u32 v{T}, v{T+1}"); a("s_mov_b64 exec, -1")
def cnt_wait(a, k, n, T, lab):
    a(f"v_mov_b32 v{T}, {L_CNT+4*k}"); a(f"s_mov_b32 s{S_CNT}, 0")
    a.label(f"{lab}_SP")
    a(f"ds_read_b32 v{T+1}, v{T}"); a("s_waitcnt lgkmcnt(0)"); a(f"v_readfirstlane_b32 s{S_T0}, v{T+1}")
    a(f"s_add_u32 s{S_CNT}, s{S_CNT}, 1"); a(f"s_cmp_ge_u32 s{S_CNT}, {8*SPIN_MAX}"); a(f"s_cbranch_scc1 {lab}_OK")
    a(f"s_cmp_lt_u32 s{S_T0}, {n}"); a(f"s_cbranch_scc1 {lab}_SP")
    a.label(f"{lab}_OK")
def o2_pq(a, RQ):
    t=V_T
    a(f"s_lshr_b32 s{S_T0}, s2, 3"); a(f"s_mul_i32 s{S_T1}, s{S_T0}, 81920"); a(f"s_add_u32 s{S_T1}, s{S_T1}, {WS_PQ}")
    a(f"s_and_b32 s{S_T2}, s2, 7"); a(f"s_lshl_b32 s{S_T2}, s{S_T2}, 2"); a(f"s_add_u32 s{S_T2}, s{S_T2}, s{S_TG}"); a(f"s_lshl_b32 s{S_T2}, s{S_T2}, 9")
    a(f"s_add_u32 s{S_T0}, s{S_T1}, s{S_T2}"); a(f"s_add_u32 s{S_T0}, s{S_T0}, 65536")
    a(f"s_lshl_b32 s{S_T2}, s{S_T2}, 1"); a(f"s_add_u32 s{S_T1}, s{S_T1}, s{S_T2}"); a(f"s_add_u32 s{S_T2}, s{S_T1}, 32768")
    a(f"v_and_b32 v{t}, 15, v0"); a(f"v_lshlrev_b32 v{t}, 4, v{t}"); a(f"v_bfe_u32 v{t+1}, v0, 4, 1"); a(f"v_lshl_add_u32 v{t+1}, v{t+1}, 3, v{t}")
    a(f"v_and_b32 v{t}, 31, v0"); a(f"v_lshlrev_b32 v{t}, 4, v{t}")
    for b in range(2):
        R=RQ+10*b
        a(f"buffer_load_dwordx4 {vr(R,4)}, v{t}, s[{S_WS}:{S_WS+3}], s{S_T1} offen offset:{512*b} sc1")
        a(f"buffer_load_dwordx4 {vr(R+4,4)}, v{t}, s[{S_WS}:{S_WS+3}], s{S_T2} offen offset:{512*b} sc1")
        a(f"buffer_load_dwordx2 {vr(R+8,2)}, v{t+1}, s[{S_WS}:{S_WS+3}], s{S_T0} offen offset:{256*b} sc1")
def o2_addr0(a, O1):
    t=V_T
    a(f"v_min_u32 v{t}, 52, v0"); a(f"s_mul_i32 s{S_T1}, s{S_TG}, 53"); a(f"v_add_u32 v{t}, s{S_T1}, v{t}"); a(f"v_min_u32 v{t}, 209, v{t}"); a(f"v_lshlrev_b32 v{O1}, 4, v{t}")
    a(f"s_lshr_b32 s{S_T0}, s2, 3"); a(f"s_mul_i32 s78, s{S_T0}, 3360"); a(f"s_add_u32 s78, s78, {WS_KVP}")
def o2_part(a, RP, O1):
    for r in range(8):
        a(f"buffer_load_dwordx4 {vr(RP+4*r,4)}, v{O1}, s[{S_WS}:{S_WS+3}], s78 offen sc1")
        if r<7: a(f"s_add_u32 s78, s78, {32*3360}")
def o2_addr(a, O1):
    t=V_T
    a(f"v_mul_u32_u24 v{t+1}, 3121, v{t}"); a(f"v_lshrrev_b32 v{t+1}, 16, v{t+1}")
    a(f"v_mul_u32_u24 v{t+2}, 21, v{t+1}"); a(f"v_sub_u32 v{t+2}, v{t}, v{t+2}")
    a(f"v_cmp_le_u32 vcc, 5, v{t+1}"); a(f"v_cndmask_b32 v{t+3}, 0, 1, vcc")
    a(f"v_mul_u32_u24 v{O1+2}, 5, v{t+3}"); a(f"v_sub_u32 v{t+1}, v{t+1}, v{O1+2}")
    a(f"v_lshl_add_u32 v{t+3}, v{t+3}, 5, v{t+2}"); a(f"v_lshlrev_b32 v{t+3}, 4, v{t+3}")
    a(f"v_lshrrev_b32 v{O1+2}, 1, v{t+1}"); a(f"v_lshl_add_u32 v{t+3}, v{O1+2}, 10, v{t+3}")
    a(f"v_and_b32 v{O1+2}, 1, v{t+1}"); a(f"v_lshl_add_u32 v{t+3}, v{O1+2}, 3, v{t+3}"); a(f"v_add_u32 v{O1+1}, {L_KVZ}, v{t+3}")
    a(f"v_cmp_eq_u32 s[8:9], 4, v{t+1}"); a(f"v_cmp_eq_u32 s[10:11], 20, v{t+2}")
    a(f"v_lshlrev_b32 v{O1+2}, 4, v0"); a(f"v_add_u32 v{O1+2}, {L_KVZ}, v{O1+2}")
    a(f"s_lshr_b32 s{S_T0}, s2, 3")
    a(f"s_and_b32 s{S_T1}, s2, 7"); a(f"s_lshl_b32 s{S_T1}, s{S_T1}, 2"); a(f"s_add_u32 s{S_T1}, s{S_T1}, s{S_TG}"); a(f"s_mul_i32 s{S_T1}, s{S_T1}, 80")
    a(f"s_lshr_b32 s{S_T2}, s{S_T0}, 3"); a(f"s_mul_i32 s{S_T2}, s{S_T2}, 5"); a(f"s_add_u32 s{S_T1}, s{S_T1}, s{S_T2}")
    a(f"s_lshl_b32 s{S_T1}, s{S_T1}, 10"); a(f"s_add_u32 s{S_T1}, s{S_T1}, {WS_O}")
    a(f"s_and_b32 s{S_T0}, s{S_T0}, 7")
    a(f"s_lshl_b32 s76, s{S_T0}, 9"); a(f"s_add_u32 s76, s76, s{S_T1}")
    a(f"s_lshr_b32 s{S_T2}, s{S_T0}, 1"); a(f"s_xor_b32 s{S_T0}, s{S_T0}, s{S_T2}"); a(f"s_and_b32 s{S_T0}, s{S_T0}, 1"); a(f"s_lshl_b32 s{S_T0}, s{S_T0}, 3")
    a(f"s_lshl_b32 s{S_T2}, s{S_T2}, 8"); a(f"s_add_u32 s{S_T0}, s{S_T0}, s{S_T2}"); a(f"s_add_u32 s{S_T0}, s{S_T0}, s{S_T1}"); a(f"s_add_u32 s77, s{S_T0}, 4096")
    a(f"v_bfe_u32 v{O1}, v0, 4, 1"); a(f"v_mul_u32_u24 v{O1}, 20480, v{O1}"); a(f"v_and_b32 v{t}, 15, v0"); a(f"v_lshl_add_u32 v{O1}, v{t}, 4, v{O1}")
    a(f"v_lshrrev_b32 v{O1+3}, 5, v0"); a(f"v_lshl_add_u32 v{O1+3}, v{O1+3}, 8, v{O1}")
def o2_kvz(a, R, O1):
    for st in (4,8,16):
        for p in range(0,32,2*st):
            for e in (0,2): a(pk("v_pk_add_f32", R+p+e, [R+p+e, R+p+st+e], "pp"))
    a(f"v_cvt_pk_bf16_f32 v{R+4}, v{R}, v{R+1}"); a(f"v_cvt_pk_bf16_f32 v{R+5}, v{R+2}, v{R+3}"); a(f"v_mov_b32 v{R+6}, 0"); a(f"v_mov_b32 v{R+7}, 0")
    a(f"ds_write_b64 v{O1+1}, {vr(R+4,2)}")
    a(f"s_mov_b64 exec, s[8:9]"); a(f"ds_write_b64 v{O1+1}, {vr(R+6,2)} offset:8")
    a(f"s_mov_b64 exec, s[10:11]"); a(f"ds_write_b64 v{O1+1}, {vr(R+4,2)} offset:64")
    a(f"s_and_b64 exec, s[8:9], s[10:11]"); a(f"ds_write_b64 v{O1+1}, {vr(R+6,2)} offset:72")
    a("s_mov_b64 exec, -1")
def o2_finish(a, AF, F, D, O1):
    for s in range(3): a(f"ds_read_b128 {vr(AF+4*s,4)}, v{O1+2} offset:{1024*s}")
    a(f"v_cmp_gt_u32 vcc, 32, v0")
    for s in range(3):
        a(f"s_waitcnt lgkmcnt({2-s})")
        for b in range(2): a(f"v_mfma_f32_32x32x16_bf16 {vr(D+16*b,16)}, {vr(AF+4*s,4)}, {vr(F+12*b+4*s,4)}, {vr(D+16*b,16) if s else 0}")
    for b in range(2):
        d=D+16*b; K=F+12*b
        a(f"v_cndmask_b32 v{d+14}, v{d+8}, v{d+12}, vcc"); a(f"v_add_f32 v{d+14}, 0x358637bd, v{d+14}"); a(f"v_rcp_f32 v{d+14}, v{d+14}")
        for i in range(0,12,2): a(pk("v_pk_mul_f32", d+i, [d+i, d+14], "pl"))
        for k in range(6): a(f"v_cvt_pk_bf16_f32 v{K+k}, v{d+2*k}, v{d+2*k+1}")
        a(f"buffer_store_dwordx4 {vr(K,4)}, v{O1+3}, s[{S_WS}:{S_WS+3}], s76 offen sc1")
        a("s_mov_b32 exec_hi, 0")
        a(f"buffer_store_dwordx2 {vr(K+4,2)}, v{O1}, s[{S_WS}:{S_WS+3}], s77 offen sc1")
        a("s_mov_b64 exec, -1")
        if b==0: a(f"s_add_u32 s76, s76, 40960"); a(f"s_add_u32 s77, s77, 40960")
```

```python
from asmlib import *
import p1
from p1 import *
from p1e import pk, softmax20
from p2 import *
T_G, T_S = 2, 3
WS_KVZ=0x100000; WS_CSQ=0x10000; WS_CSG=0x40000
W2=100352; STASH=133120; X1=34816; W1S=[83968,116736,133120]
L_PHI=153600; L_ZER=155200; L_CWQ=156000; L_CWG=158048; L_CQ=160096; L_CG=160608
STG=34816; SROW=304; XCH=73728
S_RT1=33; S_HP=34; S_RT=36; S_CT=80; S_SP=35
S_TYPE=3+0
S_X1=8; S_WQ=12; S_PH=16; S_X2=28; S_G=76; S_U=84
S_XHI=88; S_CO=44; S_CG=89; S_W2O=90; S_PRE=91; S_BO=92; S_LB=93; S_LB1=94; S_AO=40
V_X=1; V_W=5; V_C=9; V_XR=11; V_WR=22; V_T=16
VST=26; VST2=27; R_FS=28; V_FB=30; V_FA=31; V_G=25
ACC=32
def ids(a):
    a(f"v_lshrrev_b32 v{V_T}, 6, v0"); a(f"v_and_b32 v0, 63, v0")
    a(f"s_lshr_b32 s{S_T1}, s2, 3"); a(f"s_and_b32 s{S_T0}, s2, 1"); a(f"s_bfe_u32 s{S_T2}, s2, 0x20001")
    a(f"v_readfirstlane_b32 s{S_WAVE}, v{V_T}")
    a(f"s_lshl_b32 s{S_RT1}, s{S_T0}, 3"); a(f"s_and_b32 s{S_T3}, s{S_T1}, 7"); a(f"s_add_u32 s{S_RT1}, s{S_RT1}, s{S_T3}")
    a(f"s_lshl_b32 s{S_HP}, s{S_T2}, 2"); a(f"s_lshr_b32 s{S_T3}, s{S_T1}, 3"); a(f"s_add_u32 s{S_HP}, s{S_HP}, s{S_T3}")
    a(f"s_and_b32 s{S_TG}, s{S_WAVE}, 3"); a(f"s_lshr_b32 s{S_FG}, s{S_WAVE}, 2")
def ids2():
    return [[f"s_lshr_b32 s{S_T1}, s2, 3", f"s_and_b32 s{S_T0}, s2, 1", f"s_bfe_u32 s{S_T2}, s2, 0x20001",
            f"s_lshl_b32 s{S_RT}, s{S_T0}, 2", f"s_and_b32 s{S_T3}, s{S_T1}, 3", f"s_add_u32 s{S_RT}, s{S_RT}, s{S_T3}",
            f"s_mul_i32 s{S_CT}, s{S_T2}, 7", f"s_lshr_b32 s{S_SP}, s{S_T1}, 2", f"s_add_u32 s{S_CT}, s{S_CT}, s{S_SP}",
            f"s_cmp_ge_u32 s{S_SP}, 7", f"s_cselect_b32 s{S_TYPE}, {T_S}, {T_G}", f"s_cmp_ge_u32 s{S_CT}, 27", f"s_cselect_b32 s{S_TYPE}, {T_S}, s{S_TYPE}",
            f"s_min_u32 s{S_CT}, s{S_CT}, 26",
            f"s_and_b32 s{S_SP}, s2, 7", f"s_lshl_b32 s{S_SP}, s{S_SP}, 2", f"s_add_u32 s{S_SP}, s{S_SP}, s{S_T3}",
            f"s_lshl_b32 s{S_T0}, s{S_T0}, 3", f"s_add_u32 s{S_T0}, s{S_T0}, s{S_T1}", f"s_cmp_eq_u32 s{S_T2}, 3", f"s_cselect_b32 s{S_SP}, s{S_T0}, s{S_SP}"]]
def mk(a, d, p, off, size):
    a(f"s_add_u32 s{d}, s{p}, s{off}"); a(f"s_addc_u32 s{d+1}, s{p+1}, 0"); a(f"s_and_b32 s{d+1}, s{d+1}, 0xffff")
    if isinstance(size,tuple): a(f"s_sub_u32 s{d+2}, {size[0]}, s{off}")
    else: a(f"s_mov_b32 s{d+2}, {size}")
    a(f"s_mov_b32 s{d+3}, 0x20000")
def srds1(a):
    a(f"s_mul_i32 s{S_T0}, s{S_RT1}, {128*1280}"); mk(a, S_X1, P(0), S_T0, 128*1280)
    a(f"s_mul_i32 s{S_T0}, s{S_HP}, 80"); mk(a, S_WQ, P(1), S_T0, (640*3840,))
    srd(a, S_XALL, P(0), 2048*1280); srd(a, S_WS, P(10), WS_SIZE)
def srds2(a):
    a(f"s_mul_i32 s{S_T0}, s{S_RT}, {256*1280}"); mk(a, S_X2, P(0), S_T0, 256*1280)
    a(f"s_lshl_b32 s{S_T0}, s{S_CT}, 7"); mk(a, S_G, P(5), S_T0, (640*3456,)); mk(a, S_U, P(6), S_T0, (640*3456,))
    a(f"s_mul_i32 s{S_T0}, s{S_HP}, 1600"); mk(a, S_PH, P(2), S_T0, 1600); srd(a, S_DBG, P(9), 256); a(f"s_mov_b32 s{S_XHI}, {128*1280}")
def x_addr(a):
    t=V_T
    a(f"v_lshrrev_b32 v{t}, 3, v0"); a(f"s_lshl_b32 s{S_T0}, s{S_TG}, 5"); a(f"v_add_u32 v{t}, s{S_T0}, v{t}"); a(f"v_mul_u32_u24 v{t}, 1280, v{t}")
    a(f"v_lshrrev_b32 v{t+1}, 4, v0"); a(f"v_xor_b32 v{t+1}, v{t+1}, v0"); a(f"v_and_b32 v{t+1}, 7, v{t+1}"); a(f"v_lshlrev_b32 v{t+1}, 4, v{t+1}")
    a(f"v_add_u32 v{V_X}, v{t}, v{t+1}"); a(f"v_xor_b32 v{t+1}, 64, v{t+1}"); a(f"v_add_u32 v{V_X+1}, v{t}, v{t+1}"); a(f"v_add_u32 v{V_X+1}, 10240, v{V_X+1}")
    a(f"v_add_u32 v{V_X+2}, 20480, v{V_X}"); a(f"v_add_u32 v{V_X+3}, 20480, v{V_X+1}"); a(f"s_lshl_b32 s{S_M0X}, s{S_TG}, 12")
def col15(a, ch, d, t):
    a(f"v_mul_u32_u24 v{t}, 52, v{ch}"); a(f"v_lshrrev_b32 v{t}, 8, v{t}"); a(f"v_mul_u32_u24 v{t}, {1280-80}, v{t}"); a(f"v_lshl_add_u32 v{d}, v{ch}, 4, v{t}")
def w1_addr(a):
    t=V_T
    a(f"v_lshrrev_b32 v{t+2}, 4, v0"); a(f"v_lshlrev_b32 v{t}, 1, v{t+2}"); a(f"v_xor_b32 v{t}, v{t}, v0"); a(f"v_and_b32 v{t}, 15, v{t}"); a(f"v_xor_b32 v{t+1}, 8, v{t}")
    a(f"v_min_u32 v{t}, 14, v{t}"); a(f"v_min_u32 v{t+1}, 14, v{t+1}"); col15(a, t, t, t+3); col15(a, t+1, t+1, t+3)
    a(f"v_mul_u32_u24 v{t+2}, 3840, v{t+2}"); a(f"s_mul_i32 s{S_T0}, s{S_TG}, {16*3840}"); a(f"v_add3_u32 v{V_W}, v{t}, v{t+2}, s{S_T0}"); a(f"v_add3_u32 v{V_W+3}, v{t+1}, v{t+2}, s{S_T0}")
    a(f"v_add_u32 v{V_W+1}, {4*3840}, v{V_W}"); a(f"v_add_u32 v{V_W+2}, {8*3840}, v{V_W+3}"); a(f"v_add_u32 v{V_W+3}, {12*3840}, v{V_W+3}")
    a(f"s_mov_b32 s{S_WOFF}, 0")
def w2_addr():
    t=V_T
    L=[f"v_lshrrev_b32 v{t}, 3, v0", f"v_bfe_u32 v{t+1}, v0, 4, 1", f"v_lshlrev_b32 v{t+1}, 1, v{t+1}", f"v_xor_b32 v{t+1}, v{t+1}, v0", f"v_and_b32 v{t+1}, 7, v{t+1}",
       f"v_mul_u32_u24 v{t}, 3456, v{t}", f"v_lshl_add_u32 v{V_W}, v{t+1}, 4, v{t}", [f"s_mul_i32 s{S_T0}, s{S_TG}, {16*3456}", f"v_add_u32 v{V_W}, s{S_T0}, v{V_W}"],
       f"v_xor_b32 v{V_W+1}, 64, v{V_W}", f"v_add_u32 v{V_W+1}, {8*3456}, v{V_W+1}", f"s_lshl_b32 s{S_M0W}, s{S_TG}, 11", f"s_mov_b32 s{S_W2O}, 0"]
    return L
def rd1_addr(a, fg):
    t=V_T
    a(f"v_and_b32 v{t}, 15, v0"); a(f"v_lshlrev_b32 v{t}, 7, v{t}"); a(f"v_bfe_u32 v{t+1}, v0, 1, 3"); a(f"v_lshrrev_b32 v{t+2}, 4, v0"); a(f"v_xor_b32 v{t+1}, v{t+1}, v{t+2}")
    a(f"v_lshl_add_u32 v{V_G}, v{t+1}, 4, v{t}"); a(f"s_lshl_b32 s{S_T0}, s{S_TG}, 12"); a(f"s_add_u32 s{S_T0}, s{S_T0}, {X1}")
    a(f"v_add_u32 v{V_XR}, s{S_T0}, v{V_G}"); a(f"v_xor_b32 v{V_XR+1}, 64, v{V_XR}")
    a(f"v_lshrrev_b32 v{t}, 4, v0"); a(f"v_lshlrev_b32 v{t}, 11, v{t}"); a(f"v_bfe_u32 v{t+1}, v0, 2, 2"); a(f"v_lshl_add_u32 v{t}, v{t+1}, 8, v{t}"); a(f"v_add_u32 v{t}, {W1S[0]}, v{t}")
    a(f"v_bfe_u32 v{t+1}, v0, 2, 3"); a(f"v_lshlrev_b32 v{t+1}, 5, v{t+1}"); a(f"v_and_b32 v{t+2}, 3, v0"); a(f"v_mul_u32_u24 v{t+2}, {8 if fg else 40}, v{t+2}")
    for b in range(3 if fg else 5):
        a(f"v_add_u32 v{t+3}, {160+32*b if fg else 8*b}, v{t+2}"); a(f"v_xor_b32 v{t+3}, v{t+3}, v{t+1}"); a(f"v_add_u32 v{VW1+b}, v{t}, v{t+3}")
VW1=72
def rd2_addr():
    t=V_T
    return [[f"s_lshl_b32 s{S_T0}, s{S_TG}, 13", f"v_add_u32 v{V_XR}, s{S_T0}, v{V_G}"], f"v_xor_b32 v{V_XR+1}, 64, v{V_XR}", f"v_add_u32 v{V_XR+2}, 65536, v{V_XR}", f"v_add_u32 v{V_XR+3}, 65536, v{V_XR+1}",
            f"v_lshrrev_b32 v{t}, 4, v0", f"v_lshlrev_b32 v{t}, 10, v{t}", f"v_bfe_u32 v{t+1}, v0, 2, 2", f"v_lshl_add_u32 v{t}, v{t+1}, 7, v{t}", f"v_and_b32 v{t+1}, 3, v0", f"v_lshl_add_u32 v{t}, v{t+1}, 3, v{t}",
            f"v_bfe_u32 v{t+1}, v0, 3, 2", [f"s_lshl_b32 s{S_T0}, s{S_FG}, 1", f"v_xor_b32 v{t+1}, s{S_T0}, v{t+1}"], f"v_lshl_add_u32 v{t}, v{t+1}, 5, v{t}", f"v_add_u32 v{V_WR}, {W2}, v{t}", f"v_xor_b32 v{V_WR+1}, 32, v{V_WR}"]
class L1(Loop):
    FB=[96,124]
    def __init__(s, vm, o=None): s.vm=vm; s.o=o or {}
    def dw(s,S): return [("vm",f"W{S}",[f"s_add_u32 m0, s{S_M0X}, {W1S[S%3]+1024*i}", f"buffer_load_dwordx4 v{V_W+i}, s[{S_WQ}:{S_WQ+3}], s{S_WOFF} offen lds"]+([f"s_add_u32 s{S_WOFF}, s{S_WOFF}, {64*3840}"] if i==3 else [])) for i in range(4)]
    def dx(s,S): return [("vm",f"X{S}",[f"s_add_u32 m0, s{S_M0X}, {X1+(S%3)*16384-128*S+1024*i}", f"buffer_load_dwordx4 v{V_X+i}, s[{S_X1}:{S_X1+3}], 0 offen offset:{128*S} lds"]) for i in range(4)]
    def rd(s,c,fg):
        S=c//2; j=c%2; B=s.FB[c%2]; nb=3 if fg else 5; st=32 if fg else 8
        x=[f"ds_read_b128 {vr(B+4*t,4)}, v{V_XR+j} offset:{(S%3)*16384+2048*t}" for t in range(2)]
        w=[f"ds_read_b64_tr_b16 {vr(B+8+4*b+2*r,2)}, v{VW1+b} offset:{W1S[S%3]-W1S[0]+j*8192+r*1024}" for b in range(nb) for r in range(2)]
        return [x[0]]+w[:2]+[x[1]]+w[2:]
    def mf(s,c,fg):
        B=s.FB[c%2]
        return [f"v_mfma_f32_16x16x32_bf16 {vr(ACC+4*(2*b+t),4)}, {vr(B+8+4*b,4)}, {vr(B+4*t,4)}, {vr(ACC+4*(2*b+t),4) if c else 0}" for b in range(3 if fg else 5) for t in range(2)]
    def emit(s,a,fg,extra,post,pre):
        a(s.rd(0,fg)); pend=[]
        for c in range(20):
            S=c//2
            if c%2==1 and S+1<10:
                tags=set(pre(S))|({f"W{S+1}",f"X{S+1}"} if fg else set())
                a((f"s_waitcnt vmcnt({s.vm.n_after(tags)}) lgkmcnt(0)") if tags else "s_waitcnt lgkmcnt(0)"); a("s_barrier"); post(S)
                if fg and S+3<10: pend=s.dw(S+3)+s.dx(S+3)
            else: a("s_waitcnt lgkmcnt(0)")
            dm=pend[:4]; pend=pend[4:]
            if s.o.get("nodma1"):
                for x in dm: s.vm.add(x[1],False)
                dm=[]
            s.put(a, place(s.mf(c,fg), s.rd(c+1,fg) if c+1<20 else [], spread(extra(c), dm), s.o.get("lim1",3)))
class L2(Loop):
    XB=[96,112]; WB=[128,136]
    def __init__(s, vm): s.vm=vm
    def dw(s,S):
        L=[]
        for m,srdn in ((0,S_G),(1,S_U)):
            for i in range(2): L.append(("vm",f"w{S}",[f"s_add_u32 m0, s{S_M0W}, {W2+(S%2)*16384+8192*m+1024*i}", f"buffer_load_dwordx4 v{V_W+i}, s[{srdn}:{srdn+3}], s{S_W2O} offen lds"]+([f"s_add_u32 s{S_W2O}, s{S_W2O}, {64*3456}"] if (m,i)==(1,1) else [])))
        return L
    def dx(s,S): return [("vm",f"x{S}",[f"s_add_u32 m0, s{S_M0X}, {(S%3)*32768+1024*i+16384*hi+2048-128*S}", f"buffer_load_dwordx4 v{V_X+i}, s[{S_X2}:{S_X2+3}], {('s%d'%S_XHI) if hi else 0} offen offset:{128*S} lds"]) for hi in (0,1) for i in range(4)]
    def rx(s,c):
        S=c//2; sl=S%3
        return [f"ds_read_b128 {vr(s.XB[c%2]+4*t,4)}, v{V_XR+c%2+(2 if sl==2 else 0)} offset:{(sl%2)*32768+2048*t+2048}" for t in range(4)]
    def rw(s,c,h): return [f"ds_read_b64_tr_b16 {vr(s.WB[h]+4*b+2*r,2)}, v{V_WR+b} offset:{((c//2)%2)*16384+8192*h+(c%2)*4096+r*512}" for b in range(2) for r in range(2)]
    def mf(s,c,h): return [f"v_mfma_f32_16x16x32_bf16 {vr(ACC+4*(4*(2*h+b)+t),4)}, {vr(s.WB[h]+4*b,4)}, {vr(s.XB[c%2]+4*t,4)}, {vr(ACC+4*(4*(2*h+b)+t),4) if c else 0}" for b in range(2) for t in range(4)]
    def first(s,c):
        r=s.rx(c); w=s.rw(c,0); return [r[0],w[0],w[1]]+r[1:]+w[2:]
    def emit(s,a,ld,extra,post,pre):
        a(s.first(0)); pend=[]
        for c in range(20):
            S=c//2
            for h in range(2):
                if c%2==1 and h==1 and S+1<10:
                    tags=set(pre(S))|({f"w{S+1}",f"x{S+1}"} if ld else set())
                    a((f"s_waitcnt vmcnt({s.vm.n_after(tags)}) lgkmcnt(0)") if tags else "s_waitcnt lgkmcnt(0)"); a("s_barrier"); post(S)
                    if ld: pend=(s.dw(S+2) if S+2<10 else [])+(s.dx(S+3) if S+3<10 else [])
                else: a("s_waitcnt lgkmcnt(0)")
                k=[4,3,3,2][(2*c+h+1)%4]; dm=pend[:k]; pend=pend[k:]
                s.put(a, place(s.mf(c,h), s.rw(c,1) if h==0 else (s.first(c+1) if c+1<20 else []), spread(extra(c,h), dm)))

def cs_addr(a):
    t=V_T
    a(f"v_and_b32 v{t}, 15, v0"); a(f"v_min_u32 v{t}, 14, v{t}"); col15(a, t, t, t+1)
    a(f"v_lshrrev_b32 v{t+1}, 4, v0"); a(f"v_mul_u32_u24 v{t+1}, 3840, v{t+1}"); a(f"s_mul_i32 s{S_T0}, s{S_RT1}, {4*3840}"); a(f"v_add3_u32 v{V_C}, v{t}, v{t+1}, s{S_T0}")
    a(f"s_mul_i32 s{S_CO}, s{S_TG}, {64*3840}")
def csg_addr(a):
    t=V_T
    a(f"v_lshrrev_b32 v{t}, 3, v0"); a(f"v_mul_u32_u24 v{t}, 3456, v{t}"); a(f"v_and_b32 v{t+1}, 7, v0"); a(f"v_lshl_add_u32 v{t}, v{t+1}, 4, v{t}")
    a(f"s_mul_i32 s{S_T0}, s{S_RT}, {8*3456}"); a(f"v_add_u32 v{V_C+1}, s{S_T0}, v{t}"); a(f"s_mul_i32 s{S_CG}, s{S_TG}, {64*3456}")
def cq_issue(R,i): return ([f"s_add_u32 s{S_CO}, s{S_CO}, {4*64*3840}"] if i else [])+[f"buffer_load_dwordx4 {vr(R,4)}, v{V_C}, s[{S_WQ}:{S_WQ+3}], s{S_CO} offen"]
def cg_issue(R,i): return ([f"s_add_u32 s{S_CG}, s{S_CG}, {4*64*3456}"] if i else [])+[f"buffer_load_dwordx4 {vr(R,4)}, v{V_C+1}, s[{S_G}:{S_G+3}], s{S_CG} offen", f"buffer_load_dwordx4 {vr(R+4,4)}, v{V_C+1}, s[{S_U}:{S_U+3}], s{S_CG} offen"]
def acc(R,n,A,first):
    T=V_T; L=[]
    for i in range(n):
        if first: L+=[f"v_lshlrev_b32 v{A+2*i}, 16, v{R+i}", f"v_and_b32 v{A+2*i+1}, 0xffff0000, v{R+i}"]
        else: L+=[f"v_lshlrev_b32 v{T}, 16, v{R+i}", f"v_and_b32 v{T+1}, 0xffff0000, v{R+i}", f"v_add_f32 v{A+2*i}, v{A+2*i}, v{T}", f"v_add_f32 v{A+2*i+1}, v{A+2*i+1}, v{T+1}"]
    return L
def fold_q(A):
    T=V_T; L=[]
    for i in range(4): L+=[f"v_permlane32_swap_b32 v{A+i}, v{A+4+i}"]
    for i in range(4): L+=[f"v_add_f32 v{A+i}, v{A+i}, v{A+4+i}"]
    for i in range(2): L+=[f"v_permlane16_swap_b32 v{A+i}, v{A+2+i}"]
    for i in range(2): L+=[f"v_add_f32 v{A+i}, v{A+i}, v{A+2+i}"]
    L+=[f"v_and_b32 v{T}, 15, v0", f"v_lshlrev_b32 v{T}, 5, v{T}", f"v_lshrrev_b32 v{T+1}, 4, v0", f"v_lshl_add_u32 v{T}, v{T+1}, 3, v{T}",
        [f"s_lshl_b32 s{S_T0}, s{S_TG}, 9", f"s_add_u32 s{S_T0}, s{S_T0}, {L_CWQ}", f"v_add_u32 v{T}, s{S_T0}, v{T}"], f"ds_write_b64 v{T}, {vr(A,2)}"]
    return L
def fold_g(A):
    T=V_T; L=[]
    for i in range(8): L+=[f"v_permlane32_swap_b32 v{A+i}, v{A+8+i}"]
    for i in range(8): L+=[f"v_add_f32 v{A+i}, v{A+i}, v{A+8+i}"]
    for i in range(4): L+=[f"v_permlane16_swap_b32 v{A+i}, v{A+4+i}"]
    for i in range(4): L+=[f"v_add_f32 v{A+i}, v{A+i}, v{A+4+i}"]
    for i in range(4): L+=[f"v_add_f32_dpp v{A+i}, v{A+i}, v{A+i} row_ror:8 row_mask:0xf bank_mask:0xf"]
    L+=[f"v_and_b32 v{T}, 7, v0", f"v_lshlrev_b32 v{T}, 5, v{T}", f"v_bfe_u32 v{T+1}, v0, 4, 1", f"v_lshl_add_u32 v{T}, v{T+1}, 4, v{T}", f"v_lshrrev_b32 v{T+1}, 5, v0", f"v_lshl_add_u32 v{T}, v{T+1}, 8, v{T}",
        [f"s_lshl_b32 s{S_T0}, s{S_TG}, 9", f"s_add_u32 s{S_T0}, s{S_T0}, {L_CWG}", f"v_add_u32 v{T}, s{S_T0}, v{T}"], f"ds_write_b128 v{T}, {vr(A,4)}"]
    return L
def cs_out_a(a, R, T, LW):
    a(f"v_and_b32 v{T}, 31, v0"); a(f"v_lshlrev_b32 v{T}, 4, v{T}"); a(f"v_add_u32 v{T+1}, {LW}, v{T}")
    for w in range(4): a(f"ds_read_b128 {vr(R+4*w,4)}, v{T+1} offset:{512*w}")
def cs_out_b(R, T, q):
    hi,lo,n,base=(S_HP,S_RT1,4,WS_CSQ) if q else (S_CT,S_RT,3,WS_CSG)
    L=[f"s_lshl_b32 s{S_T0}, s{hi}, {n}", f"s_add_u32 s{S_T0}, s{S_T0}, s{lo}", f"s_lshl_b32 s{S_T0}, s{S_T0}, 9", f"s_add_u32 s{S_T0}, s{S_T0}, {base}"]
    for e in (0,2): L+=[f"v_pk_add_f32 {vr(R+e,2)}, {vr(R+e,2)}, {vr(R+4+e,2)}", f"v_pk_add_f32 {vr(R+8+e,2)}, {vr(R+8+e,2)}, {vr(R+12+e,2)}"]
    for e in (0,2): L+=[f"v_pk_add_f32 {vr(R+e,2)}, {vr(R+e,2)}, {vr(R+8+e,2)}"]
    return L+[f"s_mov_b32 exec_hi, 0", f"buffer_store_dwordx4 {vr(R,4)}, v{T}, s[{S_WS}:{S_WS+3}], s{S_T0} offen sc1", "s_mov_b64 exec, -1"]
def cs_gather(a, R, T, q):
    hi,n,base,np_=(S_HP,13,WS_CSQ,8) if q else (S_CT,12,WS_CSG,4)
    a(f"v_lshlrev_b32 v{T}, 4, v0"); a(f"s_lshl_b32 s{S_T0}, s{hi}, {n}"); a(f"s_add_u32 s{S_T0}, s{S_T0}, {base}"); a(f"s_add_u32 s{S_T1}, s{S_T0}, 4096")
    for i in range(np_): a(f"buffer_load_dwordx4 {vr(R+4*i,4)}, v{T}, s[{S_WS}:{S_WS+3}], s{S_T0 if i<4 else S_T1} offen offset:{1024*(i%4)} sc1")
def cs_sum(a, R, T, q):
    for i in range(1, 8 if q else 4):
        for e in (0,2): a(f"v_pk_add_f32 {vr(R+e,2)}, {vr(R+e,2)}, {vr(R+4*i+e,2)}")
    for e in range(4): a(f"v_mov_b32 v{R+4+e}, v{R+e}")
    a(f"v_and_b32 v{T}, 31, v0"); a(f"v_lshlrev_b32 v{T}, 4, v{T}"); a(f"v_add_u32 v{T}, {L_CQ if q else L_CG}, v{T}")
    for e in range(4): a(f"v_permlane32_swap_b32 v{R+e}, v{R+4+e}")
    for e in (0,2): a(f"v_pk_add_f32 {vr(R+e,2)}, {vr(R+e,2)}, {vr(R+4+e,2)}")
    a(f"ds_write_b128 v{T}, {vr(R,4)}")
def load_rs(a, RS, two):
    rt,sh,tsh,n=(S_RT,8,6,4) if two else (S_RT1,7,5,2)
    a(f"s_lshl_b32 s{S_T0}, s{rt}, {sh}"); a(f"s_lshl_b32 s{S_T1}, s{S_TG}, {tsh}"); a(f"s_add_u32 s{S_T0}, s{S_T0}, s{S_T1}"); a(f"s_lshl_b32 s{S_T0}, s{S_T0}, 3"); a(f"s_add_u32 s{S_T0}, s{S_T0}, {WS_RS}")
    a(f"v_and_b32 v{V_T+4}, 15, v0"); a(f"v_lshlrev_b32 v{V_T+4}, 3, v{V_T+4}")
    for t in range(n): a(f"buffer_load_dwordx2 {vr(RS+2*t,2)}, v{V_T+4}, s[{S_WS}:{S_WS+3}], s{S_T0} offen offset:{128*t} sc1")
def fa_same_hp(VA,T):
    return [f"v_and_b32 v{VA}, 7, v0", f"v_bfe_u32 v{T}, v0, 3, 1", f"v_lshl_add_u32 v{VA}, v{VA}, 3, v{T}", [f"s_and_b32 s{S_T0}, s2, {0xC6}", f"v_or_b32 v{VA}, s{S_T0}, v{VA}"]]
def fa1(VA,T):
    return fa_same_hp(VA,T)+[f"v_and_b32 v{T}, 15, v0", f"v_lshlrev_b32 v{T}, 3, v{T}",
        [f"s_and_b32 s{S_T0}, s{S_RT1}, 1", f"s_lshl_b32 s{S_T0}, s{S_T0}, 7", f"s_and_b32 s{S_T1}, s{S_RT1}, 6", f"s_add_u32 s{S_T0}, s{S_T0}, s{S_T1}", f"s_lshr_b32 s{S_T1}, s{S_RT1}, 3", f"s_add_u32 s{S_T0}, s{S_T0}, s{S_T1}", f"v_add_u32 v{T}, s{S_T0}, v{T}"],
        f"v_cmp_gt_u32 vcc, 32, v0", f"v_cndmask_b32 v{VA}, v{VA}, v{T}, vcc", f"v_lshlrev_b32 v{VA}, 7, v{VA}"]
def fa2(VA,T):
    return [[f"s_and_b32 s{S_T0}, s{S_RT}, 3", f"s_lshl_b32 s{S_T0}, s{S_T0}, 1", f"s_lshr_b32 s{S_T1}, s{S_RT}, 2", f"s_add_u32 s{S_T0}, s{S_T0}, s{S_T1}", f"v_lshlrev_b32 v{VA}, 3, v0", f"v_add_u32 v{VA}, s{S_T0}, v{VA}"],
            f"v_and_b32 v{T}, 3, v0", f"v_lshlrev_b32 v{T}, 3, v{T}", f"v_bfe_u32 v{T+1}, v0, 2, 1", [f"s_andn2_b32 s{S_T0}, s2, 25", f"v_or3_b32 v{T}, s{S_T0}, v{T}, v{T+1}"],
            f"v_cmp_gt_u32 vcc, 32, v0", f"v_cndmask_b32 v{VA}, v{T}, v{VA}, vcc", f"v_lshlrev_b32 v{VA}, 7, v{VA}"]
def fa_sp(VA,T):
    return [f"v_and_b32 v{VA}, 31, v0", f"v_add_u32 v{VA}, 224, v{VA}", f"v_bfe_u32 v{T}, v0, 1, 2", f"v_lshlrev_b32 v{T}, 3, v{T}", f"v_and_b32 v{T+1}, 1, v0", f"v_add3_u32 v{T}, v{T}, v{T+1}, 6", f"v_add_u32 v{T}, 192, v{T}",
            f"v_cmp_gt_u32 vcc, 32, v0", f"v_cndmask_b32 v{VA}, v{T}, v{VA}, vcc", f"v_lshlrev_b32 v{VA}, 7, v{VA}"]
def fa_p2(a, VA, T):
    a(f"s_mul_i32 s{S_T0}, s{S_WAVE}, 9"); a(f"s_add_u32 s{S_T1}, s{S_T0}, 8"); a(f"s_lshr_b32 s{S_T0}, s{S_T0}, 1"); a(f"s_lshr_b32 s{S_T1}, s{S_T1}, 1")
    a(f"v_add_u32 v{T}, s{S_T0}, v0"); a(f"v_min_u32 v{T}, s{S_T1}, v{T}"); a(f"v_mul_u32_u24 v{T+1}, 37, v{T}"); a(f"v_lshrrev_b32 v{T+1}, 8, v{T+1}")
    a(f"v_mul_u32_u24 v{VA}, 7, v{T+1}"); a(f"v_sub_u32 v{T}, v{T}, v{VA}"); a(f"v_lshlrev_b32 v{T}, 5, v{T}"); a(f"v_lshl_add_u32 v{VA}, v{T+1}, 1, v{T}")
    a(f"s_and_b32 s{S_T0}, s2, 3"); a(f"s_lshl_b32 s{S_T0}, s{S_T0}, 3"); a(f"s_bfe_u32 s{S_T1}, s2, 0x10002"); a(f"s_add_u32 s{S_T0}, s{S_T0}, s{S_T1}"); a(f"v_add_u32 v{VA}, s{S_T0}, v{VA}")
    a(f"v_and_b32 v{T}, 3, v0"); a(f"v_lshlrev_b32 v{T}, 6, v{T}"); a(f"v_bfe_u32 v{T+1}, v0, 2, 1"); a(f"v_lshl_add_u32 v{T}, v{T+1}, 1, v{T}")
    a(f"s_and_b32 s{S_T0}, s2, 3"); a(f"s_lshl_b32 s{S_T0}, s{S_T0}, 1"); a(f"s_lshr_b32 s{S_T2}, s2, 7"); a(f"s_add_u32 s{S_T0}, s{S_T0}, s{S_T2}"); a(f"s_lshl_b32 s{S_T0}, s{S_T0}, 3"); a(f"s_add_u32 s{S_T0}, s{S_T0}, s{S_T1}")
    a(f"s_and_b32 s{S_T1}, s{S_WAVE}, 1"); a(f"s_lshl_b32 s{S_T1}, s{S_T1}, 2"); a(f"s_add_u32 s{S_T0}, s{S_T0}, s{S_T1}"); a(f"v_add_u32 v{T}, s{S_T0}, v{T}")
    a(f"s_cmp_ge_u32 s{S_WAVE}, 6"); a(f"s_cselect_b64 vcc, -1, 0"); a(f"v_cndmask_b32 v{VA}, v{VA}, v{T}, vcc"); a(f"v_lshlrev_b32 v{VA}, 7, v{VA}")
```

```python
from a3 import *
import p3
PHI=152
def phi_pre():
    t=V_T; d=V_T+5
    return [f"v_lshrrev_b32 v{t}, 4, v0", f"v_and_b32 v{t+1}, 3, v0", f"v_cmp_eq_u32 vcc, v{t}, v{t+1}", f"v_and_b32 v{t}, 1, v{t}", f"v_mul_u32_u24 v{t}, 800, v{t}", f"v_bfe_u32 v{t+1}, v0, 2, 2", f"v_mul_u32_u24 v{t+1}, 40, v{t+1}",
            f"v_add_u32 v{t}, v{t}, v{t+1}", f"v_add_u32 v{t}, {L_PHI}, v{t}", f"v_mov_b32 v{t+1}, {L_ZER}", f"v_cndmask_b32 v{d}, v{t+1}, v{t}, vcc"]+[f"v_mov_b32 v{PHI+4*(3*b+2)+2+e}, 0" for b in range(5) for e in range(2)]
def phi_rd(): return [f"ds_read_b64_tr_b16 {vr(PHI+4*(3*b+s)+2*r,2)}, v{V_T+5} offset:{(8*s+4*r)*40+b*8}" for b in range(5) for s in range(3) for r in range(2) if not (s==2 and r==1)]
def phi_dma(a):
    t=V_T
    a(f"s_lshl_b32 s{S_T0}, s{S_TG}, 10"); a(f"s_add_u32 m0, s{S_T0}, {L_PHI}"); a(f"v_lshlrev_b32 v{t+4}, 4, v0"); a(f"v_add_u32 v{t+5}, s{S_T0}, v{t+4}")
    a(f"v_cmp_gt_u32 vcc, 1600, v{t+5}"); a(f"s_and_b64 exec, vcc, -1"); a("s_cbranch_execz PHI_SKIP")
    a(f"buffer_load_dwordx4 v{t+5}, s[{S_PH}:{S_PH+3}], 0 offen lds")
    a.label("PHI_SKIP")
    a("s_mov_b64 exec, -1")
    for i in range(4): a(f"v_mov_b32 v{t+i}, 0")
    a(f"v_add_u32 v{t+4}, {L_ZER}, v{t+4}"); a(f"s_mov_b32 exec_hi, 0x3ffff"); a(f"ds_write_b128 v{t+4}, {vr(t,4)}"); a("s_mov_b64 exec, -1")
def epi1(a, fg, RS, mid=None):
    CS=72; AB=92; T=96; F=[124,136]; D=212; P=lambda t: [ACC+4*(2*b+t)+e for b in range(5) for e in (0,2)]
    vk=V_T; vq=V_T+1; vx=V_T+2; tb=fg
    a(f"v_rcp_f32 v{AB+1}, v{RS+2*tb+1}")
    a(f"v_lshrrev_b32 v{vx}, 4, v0"); a(f"v_and_b32 v{vq}, 15, v0")
    a(f"s_lshl_b32 s{S_T0}, s{S_TG}, 5"); a(f"v_add_u32 v{vk}, s{S_T0}, v{vq}"); a(f"v_mul_u32_u24 v{vk}, {SROW}, v{vk}"); a(f"v_add_u32 v{V_T+3}, {STG}, v{vk}")
    a(f"v_and_b32 v{V_T+4}, 1, v{vx}"); a(f"v_mul_u32_u24 v{vk}, 144, v{V_T+4}"); a(f"v_add_u32 v{vk}, v{vk}, v{V_T+3}")
    a(f"v_mul_u32_u24 v{V_T+4}, 2560, v{V_T+4}"); a(f"s_mul_i32 s{S_T0}, s{S_TG}, 5120"); a(f"s_add_u32 s{S_T0}, s{S_T0}, {STASH}"); a(f"v_add_u32 v{V_T+4}, s{S_T0}, v{V_T+4}")
    a(f"v_lshl_add_u32 v24, v{vq}, 3, v{V_T+4}"); a(f"v_lshl_add_u32 v{vq}, v{vq}, 4, v{V_T+4}")
    a(f"v_mul_f32 v{AB}, {LOG2E}, v{AB+1}")
    a(f"v_cmp_gt_u32 vcc, 32, v0"); a(f"v_cndmask_b32 v{AB+1}, v{AB+1}, 1.0, vcc")
    a(f"v_mul_u32_u24 v{vx}, {16 if fg else 80}, v{vx}"); a(f"v_add_u32 v{vx}, {L_CQ+(320 if fg else 0)}, v{vx}")
    a("s_waitcnt lgkmcnt(0)"); a("s_barrier")
    for b in range(3 if fg else 5): a(f"ds_read_b128 {vr(CS+4*b,4)}, v{vx} offset:{(64 if fg else 16)*b}")
    a(f"v_lshlrev_b32 v{vx}, 4, v0"); a(f"s_mul_i32 s{S_T0}, s{S_TG}, 5120"); a(f"s_add_u32 s{S_T0}, s{S_T0}, {XCH}"); a(f"v_add_u32 v{vx}, s{S_T0}, v{vx}")
    def cen(t, dst, nb):
        el=[(ACC+4*(2*b+t)+e, CS+4*b+e) for b in range(nb) for e in (0,2)]
        return [pk("v_pk_fma_f32", g, [RS+2*t, c, g], "lpp", [1,0,0]) for g,c in el]+[f"v_cvt_pk_bf16_f32 v{dst+k}, v{g}, v{g+1}" for k,(g,c) in enumerate(el)]
    mf=lambda t,f: [f"v_mfma_f32_16x16x32_bf16 {vr(ACC+4*(2*b+t),4)}, {vr(PHI+4*(3*b+s),4)}, {vr(f+4*s,4)}, {vr(ACC+4*(2*b+t),4) if s else 0}" for s in range(3) for b in range(5)]
    def wr(sg):
        d=D+12*sg; o=tb*16*SROW+48*sg
        return [["s_mov_b32 exec_lo, 0", f"ds_write_b128 v{vk}, {vr(d,4)} offset:{o}", f"ds_write_b128 v{vk}, {vr(d+4,4)} offset:{o+16}", f"ds_write_b64 v{vk}, {vr(d+8,2)} offset:{o+32}",
                 "s_mov_b64 exec, 0xffffffff" if False else "s_mov_b32 exec_lo, -1", "s_mov_b32 exec_hi, 0", f"ds_write_b128 v{vq}, {vr(d,4)} offset:{512*sg+256*tb}", f"ds_write_b128 v{vq}, {vr(d+4,4)} offset:{1024+512*sg+256*tb}",
                 f"ds_write_b64 v24, {vr(d+8,2)} offset:{2048+256*sg+128*tb}", "s_mov_b32 exec_hi, -1"]]
    if not fg:
        for f in F: a(f"v_mov_b32 v{f+10}, 0"); a(f"v_mov_b32 v{f+11}, 0")
        a("s_waitcnt lgkmcnt(0)")
        a(cen(1,F[0],5)); a(interleave(mf(1,F[0]), cen(0,F[1],5)))
        a(interleave(mf(0,F[1]), [f"ds_write_b128 v{vx}, {vr(ACC+4*(2*b+1),4)} offset:{1024*b}" for b in range(5)], lead=0))
        a("s_waitcnt lgkmcnt(0)"); a("s_barrier")
    else:
        if mid: mid()
        u=F[1]
        for b in range(3):
            a(f"v_lshrrev_b32 v{u+3}, 4, v0"); a(f"v_add_u32 v{u+3}, {4*b}, v{u+3}")
            if b<2: a(f"v_cmp_le_u32 vcc, 5, v{u+3}"); a(f"v_cndmask_b32 v{u+4}, 0, {144-40-64}, vcc"); a(f"v_cndmask_b32 v{u+5}, 0, 64, vcc"); a(f"v_add_u32 v{u+4}, v{u+4}, v{u+5}"); a(f"v_lshl_add_u32 v{u+b}, v{u+3}, 3, v{u+4}")
            else:
                a(f"v_lshlrev_b32 v{u+b}, 3, v{u+3}"); a(f"v_add_u32 v{u+b}, 104, v{u+b}"); a(f"v_cmp_eq_u32 vcc, 10, v{u+3}"); a(f"v_cndmask_b32 v{u+b}, v{u+b}, 40, vcc")
                a(f"v_mov_b32 v{u+4}, 184"); a(f"v_cmp_eq_u32 vcc, 11, v{u+3}"); a(f"v_cndmask_b32 v{u+b}, v{u+b}, v{u+4}, vcc")
            a(f"v_add3_u32 v{u+b}, v{u+b}, v{V_T+3}, 48"); a(f"v_add_u32 v{u+b}, 48, v{u+b}")
        a(f"v_cmp_gt_u32 vcc, 32, v0")
        a("s_waitcnt lgkmcnt(0)")
        for t in range(2):
            f=F[0]+6*t
            a(cen(t,f,3)); a(f"v_cvt_pk_bf16_f32 v{u+6}, v{RS+2*t+1}, v{RS+2*t+1}"); a(f"v_cndmask_b32 v{f+4}, v{u+6}, v{f+4}, vcc")
            for b in range(3): a(f"ds_write_b64 v{u+b}, {vr(f+2*b,2)} offset:{t*16*SROW}")
        a("s_barrier")
        for b in range(5): a(f"ds_read_b128 {vr(ACC+4*(2*b+1),4)}, v{vx} offset:{1024*b}")
        a("s_waitcnt lgkmcnt(0)")
    softmax20(a, P(tb), +1, T, [D+k for k in range(10)], AB)
    softmax20(a, P(tb), -1, T, [D+12+k for k in range(10)], AB, wr(0))
    a(wr(1))
    if fg:
        t=F[0]
        a(f"v_bfe_u32 v{t}, v0, 2, 3"); a(f"v_lshrrev_b32 v{t+1}, 5, v0"); a(f"v_lshl_add_u32 v{t}, v{t+1}, 3, v{t}"); a(f"v_mul_u32_u24 v{t}, {2*SROW}, v{t}"); a(f"v_and_b32 v{t+1}, 3, v0"); a(f"v_lshl_add_u32 v{t}, v{t+1}, 3, v{t}")
        a(f"s_lshr_b32 s{S_T0}, s{S_TG}, 1"); a(f"s_mul_i32 s{S_T0}, s{S_T0}, 144"); a(f"s_add_u32 s{S_T0}, s{S_T0}, {STG}"); a(f"v_add_u32 v{t}, s{S_T0}, v{t}")
        a(f"s_and_b32 s{S_T1}, s{S_TG}, 1"); a(f"s_lshl_b32 s{S_T1}, s{S_T1}, 5"); a(f"s_add_u32 s{S_T1}, s{S_T1}, 96"); a(f"v_add_u32 v{t+1}, s{S_T1}, v{t}")
        a(f"v_and_b32 v{t+2}, 15, v0"); a(f"s_lshr_b32 s{S_T1}, s{S_T1}, 1"); a(f"s_sub_u32 s{S_T1}, s{S_T1}, 48"); a(f"v_add_u32 v{t+2}, s{S_T1}, v{t+2}"); a(f"v_cmp_gt_u32 s[8:9], 21, v{t+2}")
        a(f"v_lshrrev_b32 v{t+3}, 4, v0"); a(f"v_mul_u32_u24 v{t+3}, 21, v{t+3}"); a(f"v_add_u32 v{t+2}, v{t+2}, v{t+3}"); a(f"v_lshlrev_b32 v{t+2}, 4, v{t+2}")
        a(f"v_subrev_u32 v{t+3}, 336, v{t+2}"); a(f"v_cmp_gt_u32 vcc, 32, v0"); a(f"v_cndmask_b32 v{t+3}, v{t+3}, v{t+2}, vcc")
        a(f"s_lshl_b32 s10, s{S_RT1}, 4"); a(f"s_add_u32 s10, s10, s{S_HP}"); a(f"s_lshl_b32 s10, s10, 1"); a(f"s_lshr_b32 s{S_T0}, s{S_TG}, 1"); a(f"s_add_u32 s10, s10, s{S_T0}"); a(f"s_mul_i32 s10, s10, 3360"); a(f"s_add_u32 s10, s10, {WS_KVP}")
    a("s_waitcnt lgkmcnt(0)"); a("s_barrier")
    if fg:
        FR=PHI
        for st in range(4):
            for r in range(2): a(f"ds_read_b64_tr_b16 {vr(FR+16*st+12+2*r,2) if st<3 else vr(T+12+2*r,2)}, v{t+1} offset:{st*32*SROW+r*SROW}")
            for fb in range(3):
                for r in range(2): a(f"ds_read_b64_tr_b16 {vr((FR+16*st if st<3 else T)+4*fb+2*r,2)}, v{t} offset:{st*32*SROW+r*SROW+32*fb}")
            if st:
                a("s_waitcnt lgkmcnt(8)"); g=FR+16*(st-1)
                for fb in range(3): a(f"v_mfma_f32_16x16x32_bf16 {vr(ACC+4*fb,4)}, {vr(g+4*fb,4)}, {vr(g+12,4)}, {vr(ACC+4*fb,4) if st>1 else 0}")
        a("s_waitcnt lgkmcnt(0)")
        for fb in range(3): a(f"v_mfma_f32_16x16x32_bf16 {vr(ACC+4*fb,4)}, {vr(T+4*fb,4)}, {vr(T+12,4)}, {vr(ACC+4*fb,4)}")
        a("s_mov_b64 exec, s[8:9]"); a(f"buffer_store_dwordx4 {vr(ACC,4)}, v{t+2}, s[{S_WS}:{S_WS+3}], s10 offen sc1")
        a("s_and_b32 exec_lo, s8, 0xffff"); a(f"buffer_store_dwordx4 {vr(ACC+4,4)}, v{t+3}, s[{S_WS}:{S_WS+3}], s10 offen offset:1344 sc1")
        a("s_mov_b32 exec_lo, s8"); a("s_and_b32 exec_hi, s9, 0xffff"); a(f"buffer_store_dwordx4 {vr(ACC+8,4)}, v{t+2}, s[{S_WS}:{S_WS+3}], s10 offen offset:2352 sc1")
        a("s_mov_b64 exec, -1")
OF=144; OA=156; OD=168
def o_issue():
    t=V_T
    return [[f"s_lshl_b32 s{S_T0}, s{S_HP}, 1", f"s_and_b32 s{S_T1}, s{S_WAVE}, 1", f"s_add_u32 s{S_T0}, s{S_T0}, s{S_T1}", f"s_mul_i32 s{S_T0}, s{S_T0}, 3072", f"s_add_u32 s{S_T0}, s{S_T0}, {WS_KVZ}", f"v_lshlrev_b32 v{t}, 4, v0"]
            +[f"buffer_load_dwordx4 {vr(OA+4*s,4)}, v{t}, s[{S_WS}:{S_WS+3}], s{S_T0} offen offset:{1024*s} sc1" for s in range(3)]]
def o_phi_rd():
    t=V_T
    return [[f"s_mul_i32 s{S_T0}, s{S_WAVE}, 2560", f"s_add_u32 s{S_T0}, s{S_T0}, {STASH}", f"v_lshlrev_b32 v{t}, 4, v0", f"v_add_u32 v{t}, s{S_T0}, v{t}", f"ds_read_b128 {vr(OF,4)}, v{t}", f"ds_read_b128 {vr(OF+4,4)}, v{t} offset:1024",
             f"v_lshlrev_b32 v{t}, 3, v0", f"v_add_u32 v{t}, s{S_T0}, v{t}", f"ds_read_b64 {vr(OF+8,2)}, v{t} offset:2048", f"v_mov_b32 v{OF+10}, 0", f"v_mov_b32 v{OF+11}, 0"]]
def o_fin(a):
    t=V_T; D=OD
    for s in range(3): a(f"v_mfma_f32_32x32x16_bf16 {vr(D,16)}, {vr(OA+4*s,4)}, {vr(OF+4*s,4)}, {vr(D,16) if s else 0}")
    a(f"s_lshl_b32 s{S_T0}, s{S_HP}, 1"); a(f"s_and_b32 s{S_T1}, s{S_WAVE}, 1"); a(f"s_add_u32 s{S_T0}, s{S_T0}, s{S_T1}")
    a(f"s_lshl_b32 s{S_T1}, s{S_RT1}, 2"); a(f"s_lshr_b32 s{S_T2}, s{S_WAVE}, 1"); a(f"s_add_u32 s{S_T1}, s{S_T1}, s{S_T2}"); a(f"s_mul_i32 s{S_T1}, s{S_T1}, 40")
    a(f"s_lshr_b32 s{S_T2}, s{S_T0}, 3"); a(f"s_mul_i32 s{S_T2}, s{S_T2}, 5"); a(f"s_add_u32 s{S_T1}, s{S_T1}, s{S_T2}"); a(f"s_lshl_b32 s{S_T1}, s{S_T1}, 10"); a(f"s_add_u32 s{S_T1}, s{S_T1}, {WS_O}")
    a(f"s_and_b32 s{S_T0}, s{S_T0}, 7"); a(f"s_lshl_b32 s8, s{S_T0}, 9"); a(f"s_add_u32 s8, s8, s{S_T1}")
    a(f"s_lshr_b32 s{S_T2}, s{S_T0}, 1"); a(f"s_xor_b32 s{S_T0}, s{S_T0}, s{S_T2}"); a(f"s_and_b32 s{S_T0}, s{S_T0}, 1"); a(f"s_lshl_b32 s{S_T0}, s{S_T0}, 3")
    a(f"s_lshl_b32 s{S_T2}, s{S_T2}, 8"); a(f"s_add_u32 s{S_T0}, s{S_T0}, s{S_T2}"); a(f"s_add_u32 s{S_T0}, s{S_T0}, s{S_T1}"); a(f"s_add_u32 s9, s{S_T0}, 4096")
    a(f"v_bfe_u32 v{t}, v0, 4, 1"); a(f"v_mul_u32_u24 v{t}, 20480, v{t}"); a(f"v_and_b32 v{t+1}, 15, v0"); a(f"v_lshl_add_u32 v{t}, v{t+1}, 4, v{t}"); a(f"v_lshrrev_b32 v{t+1}, 5, v0"); a(f"v_lshl_add_u32 v{t+1}, v{t+1}, 8, v{t}")
    a(f"v_cmp_gt_u32 vcc, 32, v0")
    a(f"v_cndmask_b32 v{D+14}, v{D+8}, v{D+12}, vcc"); a(f"v_add_f32 v{D+14}, 0x358637bd, v{D+14}"); a(f"v_rcp_f32 v{D+14}, v{D+14}")
    for i in range(0,12,2): a(pk("v_pk_mul_f32", D+i, [D+i, D+14], "pl"))
    for k in range(6): a(f"v_cvt_pk_bf16_f32 v{OF+k}, v{D+2*k}, v{D+2*k+1}")
    a(f"buffer_store_dwordx4 {vr(OF,4)}, v{t+1}, s[{S_WS}:{S_WS+3}], s8 offen sc1"); a("s_mov_b32 exec_hi, 0")
    a(f"buffer_store_dwordx2 {vr(OF+4,2)}, v{t}, s[{S_WS}:{S_WS+3}], s9 offen sc1"); a("s_mov_b64 exec, -1")
def epi2(a, RS, hook=None):
    CS=96; A=112; B=120; X=128; D=[136,140]; vo=V_T+2
    a(f"v_lshrrev_b32 v{vo}, 4, v0"); a(f"v_lshlrev_b32 v{vo}, 4, v{vo}"); a(f"s_lshl_b32 s{S_T0}, s{S_FG}, 7"); a(f"s_add_u32 s{S_T0}, s{S_T0}, {L_CG}"); a(f"v_add_u32 v{vo}, s{S_T0}, v{vo}")
    for b in range(4): a(f"ds_read_b128 {vr(CS+4*b,4)}, v{vo} offset:{(b&1)*64+(b>>1)*256}")
    for t in range(4): a(f"v_rcp_f32 v{A+2*t}, v{RS+2*t+1}"); a(f"v_mul_f32 v{B+2*t}, v{RS+2*t+1}, v{RS+2*t+1}")
    for t in range(4): a(f"v_mul_f32 v{A+2*t}, {LOG2E|0x80000000}, v{A+2*t}")
    a(f"v_lshlrev_b32 v{vo}, 4, v0"); sf=42
    a(f"s_lshl_b32 s{sf}, s{S_RT}, 4"); a(f"s_lshl_b32 s{S_T1}, s{S_TG}, 2"); a(f"s_add_u32 s{sf}, s{sf}, s{S_T1}"); a(f"s_mul_i32 s{sf}, s{sf}, 27"); a(f"s_add_u32 s{sf}, s{sf}, s{S_CT}")
    a(f"s_lshl_b32 s{sf}, s{sf}, 1"); a(f"s_add_u32 s{sf}, s{sf}, s{S_FG}"); a(f"s_lshl_b32 s{sf}, s{sf}, 10"); a(f"s_add_u32 s{sf}, s{sf}, {WS_H}")
    a("s_waitcnt lgkmcnt(0)")
    for t in range(4):
        el=[(ACC+4*(4*p+t)+e, ACC+4*(4*(2+p)+t)+e, CS+4*p+e, CS+4*(2+p)+e) for p in range(2) for e in (0,2)]; d=D[t&1]
        for g,u,cg,cu in el: a(pk("v_pk_fma_f32", g, [RS+2*t, cg, g], "lpp", [1,0,0]))
        for i,(g,u,cg,cu) in enumerate(el): a(pk("v_pk_mul_f32", X+2*i, [g, A+2*t], "pl"))
        for i,(g,u,cg,cu) in enumerate(el): a(f"v_exp_f32 v{X+2*i}, v{X+2*i}"); a(f"v_exp_f32 v{X+2*i+1}, v{X+2*i+1}"); a(pk("v_pk_fma_f32", u, [RS+2*t, cu, u], "lpp", [1,0,0]))
        for i,(g,u,cg,cu) in enumerate(el): a(pk("v_pk_fma_f32", X+2*i, [X+2*i, B+2*t, B+2*t], "pll"))
        for i,(g,u,cg,cu) in enumerate(el): a(f"v_rcp_f32 v{X+2*i}, v{X+2*i}"); a(f"v_rcp_f32 v{X+2*i+1}, v{X+2*i+1}"); a(pk("v_pk_mul_f32", g, [g, u], "pp"))
        for i,(g,u,cg,cu) in enumerate(el): a(pk("v_pk_mul_f32", g, [g, X+2*i], "pp"))
        for i,(g,u,cg,cu) in enumerate(el): a(f"v_cvt_pk_bf16_f32 v{d+i}, v{g}, v{g+1}")
        a(f"buffer_store_dwordx4 {vr(d,4)}, v{vo}, s[{S_WS}:{S_WS+3}], s{sf} offen sc1")
        if t<3: a(f"s_add_u32 s{sf}, s{sf}, {54*1024}")
        if hook: hook(t)
def helper(a, st):
    t=V_T; VD=32; VR=40; VS=50; F=64; SO=S_CO; SK=S_CG; S_B=12
    a(f"s_and_b32 s{S_T0}, s{S_WAVE}, 1"); a(f"s_lshl_b32 s{S_T0}, s{S_T0}, 2")
    for i in range(5):
        a(f"v_add_u32 v{t}, {64*i}, v0"); a(f"v_mul_u32_u24 v{t+1}, 205, v{t}"); a(f"v_lshrrev_b32 v{t+1}, 14, v{t+1}"); a(f"v_mul_u32_u24 v{t+2}, 80, v{t+1}"); a(f"v_sub_u32 v{t}, v{t}, v{t+2}")
        a(f"v_add_u32 v{t+2}, s{S_T0}, v{t+1}"); a(f"v_lshlrev_b32 v{t+2}, 1, v{t+2}"); a(f"v_xor_b32 v{t}, v{t}, v{t+2}"); a(f"v_mul_u32_u24 v{t+1}, 1280, v{t+1}"); a(f"v_lshl_add_u32 v{VD+i}, v{t}, 4, v{t+1}")
    a(f"s_mul_i32 s{S_M0W}, s{S_WAVE}, 5120")
    def dma(m):
        lab=f"RL{m}"
        a(f"s_add_u32 s{S_T0}, s{S_SP}, {40*m}"); a(f"s_min_u32 s{S_T0}, s{S_T0}, 73")
        a(f"s_bfe_u32 s{S_T1}, s{S_WAVE}, 0x10001"); a(f"s_and_b32 s{S_T2}, s{S_WAVE}, 1"); a(f"s_lshr_b32 s{S_T3}, s{S_WAVE}, 2")
        a(f"s_cmp_ge_u32 s{S_T0}, 54"); a(f"s_cbranch_scc1 {lab}_WO")
        srd(a, S_B, P(7), 1728*1280)
        a(f"s_lshl_b32 s{SO}, s{S_T0}, 3"); a(f"s_add_u32 s{SO}, s{SO}, s{S_WAVE}"); a(f"s_lshl_b32 s{SO}, s{SO}, 2"); a(f"s_branch {lab}_GO2")
        a.label(f"{lab}_WO")
        srd(a, S_B, P(3), 640*1280)
        a(f"s_sub_u32 s{S_T0}, s{S_T0}, 54"); a(f"s_mul_i32 s{SK}, s{S_T0}, 52"); a(f"s_lshr_b32 s{SK}, s{SK}, 8"); a(f"s_mul_i32 s{SO}, s{SK}, 160"); a(f"s_mul_i32 s{SK}, s{SK}, 5"); a(f"s_sub_u32 s{S_T0}, s{S_T0}, s{SK}")
        a(f"s_cmp_eq_u32 s{S_T0}, 4"); a(f"s_cbranch_scc1 {lab}_LO")
        a(f"s_mul_i32 s{S_T0}, s{S_T0}, 40"); a(f"s_add_u32 s{SO}, s{SO}, s{S_T0}"); a(f"s_mul_i32 s{S_T1}, s{S_T1}, 20"); a(f"s_lshl_b32 s{S_T2}, s{S_T2}, 2"); a(f"s_lshl_b32 s{S_T3}, s{S_T3}, 3"); a(f"s_branch {lab}_GO")
        a.label(f"{lab}_LO")
        a(f"s_add_u32 s{SO}, s{SO}, 16"); a(f"s_xor_b32 s{S_T3}, s{S_T3}, s{S_T2}"); a(f"s_mul_i32 s{S_T3}, s{S_T3}, 20"); a(f"s_mul_i32 s{S_T1}, s{S_T1}, 80"); a(f"s_mul_i32 s{S_T2}, s{S_T2}, 40")
        a.label(f"{lab}_GO")
        a(f"s_add_u32 s{SO}, s{SO}, s{S_T1}"); a(f"s_add_u32 s{SO}, s{SO}, s{S_T2}"); a(f"s_add_u32 s{SO}, s{SO}, s{S_T3}")
        a.label(f"{lab}_GO2")
        a(f"s_mul_i32 s{SO}, s{SO}, 1280")
        for i in range(5): a(f"s_add_u32 m0, s{S_M0W}, {m*40960+1024*i}"); a(f"buffer_load_dwordx4 v{VD+i}, s[{S_B}:{S_B+3}], s{SO} offen lds")
    dma(0); dma(1)
    a(f"v_lshrrev_b32 v{t}, 2, v0"); a(f"v_and_b32 v{t+1}, 7, v{t}"); a(f"v_mul_u32_u24 v{t}, 1280, v{t}"); a(f"v_and_b32 v{t+2}, 3, v0"); a(f"v_lshl_add_u32 v{t}, v{t+2}, 3, v{t}")
    for nb in range(5):
        a(f"s_mul_i32 s{S_T0}, s{S_WAVE}, 5"); a(f"s_add_u32 s{S_T0}, s{S_T0}, {nb}"); a(f"s_and_b32 s{S_T1}, s{S_T0}, 7"); a(f"s_lshr_b32 s{S_T0}, s{S_T0}, 3"); a(f"s_lshl_b32 s{S_T0}, s{S_T0}, 8")
        a(f"v_xor_b32 v{t+2}, s{S_T1}, v{t+1}"); a(f"v_lshl_add_u32 v{t+2}, v{t+2}, 5, v{t}"); a(f"v_add_u32 v{VR+nb}, s{S_T0}, v{t+2}")
    a(f"v_lshlrev_b32 v{VS}, 4, v0"); a(f"v_add_u32 v{VS+1}, 4096, v{VS}")
    hd=S_WOFF
    a(f"s_min_u32 s{hd}, s{S_SP}, 31"); a(f"s_lshr_b32 s{S_T0}, s{hd}, 1"); a(f"s_and_b32 s{S_T1}, s{S_T0}, 3"); a(f"s_lshl_b32 s{S_T1}, s{S_T1}, 6"); a(f"s_lshr_b32 s{S_T0}, s{S_T0}, 2"); a(f"s_lshl_b32 s{S_T0}, s{S_T0}, 1"); a(f"s_add_u32 s{S_T0}, s{S_T0}, s{S_T1}")
    a(f"v_and_b32 v{V_FA}, 7, v0"); a(f"v_bfe_u32 v{t}, v0, 3, 1"); a(f"v_lshl_add_u32 v{V_FA}, v{V_FA}, 3, v{t}"); a(f"v_add_u32 v{V_FA}, s{S_T0}, v{V_FA}"); a(f"v_lshlrev_b32 v{V_FA}, 7, v{V_FA}")
    for m in range(2):
        a(f"s_add_u32 s{SK}, s{S_SP}, {40*m}"); a(f"s_min_u32 s{SK}, s{SK}, 73"); a(f"s_mul_i32 s{S_T1}, s{S_WAVE}, 74"); a(f"s_add_u32 s{SK}, s{SK}, s{S_T1}"); a(f"s_mul_i32 s{SK}, s{SK}, 5120"); a(f"s_add_u32 s{SK}, s{SK}, {WS_WT}")
        a(f"s_waitcnt vmcnt(5)"); a("s_barrier")
        f=F+20*m
        for nb in range(5):
            for r in range(2): a(f"ds_read_b64_tr_b16 {vr(f+4*nb+2*r,2)}, v{VR+nb} offset:{m*40960+r*20480}")
        a("s_waitcnt lgkmcnt(0)")
        for nb in range(5): a(f"buffer_store_dwordx4 {vr(f+4*nb,4)}, v{VS+(nb==4)}, s[{S_WS}:{S_WS+3}], s{SK} offen offset:{1024*nb if nb<4 else 0} sc1")
    st(1)
    poll_wait(a, V_FA, R_FS, V_T, 2, "HL_PK", False)
    RP=112
    a(f"v_and_b32 v{t}, 31, v0"); a(f"s_mul_i32 s{S_T1}, s{S_WAVE}, 28"); a(f"v_add_u32 v{t}, s{S_T1}, v{t}"); a(f"v_min_u32 v{t}, 209, v{t}")
    a(f"v_lshrrev_b32 v{t+5}, 5, v0"); a(f"v_mul_u32_u24 v{t+1}, {8*32*3360}, v{t+5}"); a(f"v_lshl_add_u32 v{t+1}, v{t}, 4, v{t+1}")
    a(f"s_mul_i32 s{S_T0}, s{hd}, 3360"); a(f"s_add_u32 s{S_T0}, s{S_T0}, {WS_KVP}")
    for r in range(8):
        a(f"buffer_load_dwordx4 {vr(RP+4*r,4)}, v{t+1}, s[{S_WS}:{S_WS+3}], s{S_T0} offen sc1")
        if r<7: a(f"s_add_u32 s{S_T0}, s{S_T0}, {32*3360}")
    a(f"v_mul_u32_u24 v{t+1}, 3121, v{t}"); a(f"v_lshrrev_b32 v{t+1}, 16, v{t+1}"); a(f"v_mul_u32_u24 v{t+2}, 21, v{t+1}"); a(f"v_sub_u32 v{t+2}, v{t}, v{t+2}")
    a(f"v_cmp_le_u32 vcc, 5, v{t+1}"); a(f"v_cndmask_b32 v{t+3}, 0, 1, vcc"); a(f"v_mul_u32_u24 v{t+4}, 5, v{t+3}"); a(f"v_sub_u32 v{t+1}, v{t+1}, v{t+4}")
    a(f"v_cmp_eq_u32 vcc, 20, v{t+2}"); a(f"v_cndmask_b32 v{t+4}, 0, 4, vcc"); a(f"v_mad_u32_u24 v{t+2}, v{t+4}, v{t+5}, v{t+2}")
    a(f"v_lshl_add_u32 v{t+3}, v{t+3}, 5, v{t+2}"); a(f"v_lshlrev_b32 v{t+3}, 4, v{t+3}"); a(f"v_lshrrev_b32 v{t+4}, 1, v{t+1}"); a(f"v_lshl_add_u32 v{t+3}, v{t+4}, 10, v{t+3}")
    a(f"v_and_b32 v{t+4}, 1, v{t+1}"); a(f"v_lshl_add_u32 v{t+3}, v{t+4}, 3, v{t+3}"); a(f"v_cmp_eq_u32 vcc, 4, v{t+1}")
    a(f"s_mul_i32 s{S_T0}, s{hd}, 3072"); a(f"s_add_u32 s{S_T0}, s{S_T0}, {WS_KVZ}")
    a("s_waitcnt vmcnt(0)")
    for s_ in (4,8,16):
        for p in range(0,32,2*s_):
            for e in (0,2): a(pk("v_pk_add_f32", RP+p+e, [RP+p+e, RP+p+s_+e], "pp"))
    for e in range(4): a(f"v_mov_b32 v{RP+4+e}, v{RP+e}")
    a(f"v_mov_b32 v{RP+10}, 0"); a(f"v_mov_b32 v{RP+11}, 0")
    for e in range(4): a(f"v_permlane32_swap_b32 v{RP+e}, v{RP+4+e}")
    for e in (0,2): a(pk("v_pk_add_f32", RP+e, [RP+e, RP+4+e], "pp"))
    a(f"v_cvt_pk_bf16_f32 v{RP+8}, v{RP}, v{RP+1}"); a(f"v_cvt_pk_bf16_f32 v{RP+9}, v{RP+2}, v{RP+3}")
    a(f"s_cmp_ge_u32 s{S_SP}, 32"); a("s_cbranch_scc1 HL_NOZ")
    a(f"buffer_store_dwordx2 {vr(RP+8,2)}, v{t+3}, s[{S_WS}:{S_WS+3}], s{S_T0} offen sc1")
    a("s_mov_b64 exec, vcc"); a(f"buffer_store_dwordx2 {vr(RP+10,2)}, v{t+3}, s[{S_WS}:{S_WS+3}], s{S_T0} offen offset:8 sc1"); a("s_mov_b64 exec, -1")
    a.label("HL_NOZ")
```

```python
import sys, re
from a3e import *
import p3, p2, hazard
from p3 import guard, red_addr, red_write, H1
KN="recurrent_scan__linear_kernel_hedgehog__swiglu_ffn__prompt_kernel"
HDR = open("recurrent_scan__linear_kernel_hedgehog__swiglu_ffn__prompt.s.ref").read().split("; Override launch")[0]
p3.S_BO=S_BO; p3.S_LB=S_LB; p3.S_LB1=S_LB1; p3.S_PRE=S_PRE; p3.S_AO=S_AO; p3.G_B=9; p3.G_A=1; p3.G_X=5; p3.G_L=11
G_B=9; G_A=1; G_L=11
BR=[184,204,224,164,144]; AB=[112,128,144]
R_ST=248; R_RS=244; R_NON=254; R_FL=252; S_ST=96
def split(L,n):
    k=len(L); return [L[(k*i)//n:(k*(i+1))//n] for i in range(n)]
def addr_b():
    return [f"v_lshlrev_b32 v{G_B}, 4, v0", f"v_add_u32 v{G_B+1}, 4096, v{G_B}", f"s_mul_i32 s{S_LB}, s{S_WAVE}, 10240", f"s_add_u32 s{S_LB1}, s{S_LB}, {H1}",
            [f"s_mul_i32 s{S_T0}, s{S_WAVE}, 9", f"s_cmp_eq_u32 s{S_WAVE}, 7", f"s_cselect_b32 s{S_T0}, 64, s{S_T0}", f"s_bfe_u32 s{S_T1}, s2, 0x30003", f"s_mul_i32 s{S_T1}, s{S_T1}, 74",
             f"s_add_u32 s{S_BO}, s{S_T0}, s{S_T1}", f"s_mul_i32 s{S_BO}, s{S_BO}, 5120", f"s_add_u32 s{S_BO}, s{S_BO}, {WS_WT}"], f"s_mov_b32 s{S_PRE}, 0"]
HOME={0:("r",0),1:("r",1),2:("r",2),3:("r",3),4:("r",4),5:("l",0),6:("l",1),7:("l",2),8:("l",3)}
def bstep(s): k,i=HOME[s]; return p3.bload(s,BR[i]) if k=="r" else p3.bdma(s,i)
def touch():
    L=[f"s_lshl_b32 s{S_T0}, s2, 2", f"s_add_u32 s{S_T0}, s{S_T0}, s{S_TG}", f"v_lshlrev_b32 v{V_T+2}, 7, v0"]
    for p,n,sz in ((P(7),17,1728*1280),(P(3),7,640*1280)):
        L+=[f"s_mov_b32 s4, s{p}", f"s_and_b32 s5, s{p+1}, 0xffff", f"s_mov_b32 s6, {sz}", f"s_mul_i32 s{S_T1}, s{S_T0}, {n*128}", f"s_mov_b64 exec, {(1<<n)-1}", f"buffer_load_dword v24, v{V_T+2}, s[4:7], s{S_T1} offen"]
    return L+["s_mov_b64 exec, -1"]
class Gen:
    def __init__(s, timing=False, opts=None): s.a=Asm(); s.timing=timing; s.o=opts or {}
    def stamp(s,i):
        if s.timing: s.a(f"s_memrealtime s[{S_ST}:{S_ST+1}]"); s.a("s_waitcnt lgkmcnt(0)"); s.a(f"v_writelane_b32 v{VST}, s{S_ST}, {i}")
    def lst(s,i):
        if s.timing and s.o.get("lstamp"): s.a(f"s_memrealtime s[{S_ST}:{S_ST+1}]"); s.a("s_waitcnt lgkmcnt(0)"); s.a(f"v_writelane_b32 v{VST2}, s{S_ST}, {i}")
    def only(s,w,lab): s.a(f"s_cmp_eq_u32 s{S_WAVE}, {w}"); s.a(f"s_cbranch_scc0 {lab}")
    def role(s, fg):
        a=s.a; o=s.o; vm=VM(); l1=L1(vm,o); l2=L2(vm); R="V" if fg else "K"
        lz=lambda L: [("lazy",x[1]) if (isinstance(x,tuple) and x[0]=="wait") else x for x in L]
        cond=lambda w,tag,items,lab: ("cond",tag,[f"s_cmp_eq_u32 s{S_WAVE}, {w}", f"s_cbranch_scc0 {lab}"]+items+[f"{lab}:"])
        CQ=[152,156,160]; CG=[164,172,180]; AQ=188; AG=196
        sch={}
        def add(c,items): sch.setdefault(c,[]).extend(items)
        def over(cs,L):
            cs=list(cs)
            for c,p in zip(cs,split(L,len(cs))): add(c,p)
        if fg:
            w1_addr(a); a("s_waitcnt lgkmcnt(0)"); srds1(a)
            stats_issue(a, R_ST, vm); l1.put(a, l1.dw(0)+l1.dx(0))
            a(ids2()); srds2(a); rd1_addr(a,1)
            a("s_waitcnt vmcnt(0)"); a("s_barrier")
            l1.put(a, l1.dw(1)+l1.dx(1)); add(0, l1.dw(2)+l1.dx(2))
        else:
            cs_addr(a); a(ids2()); a("s_waitcnt lgkmcnt(0)"); srds1(a)
            stats_issue(a, R_ST, vm)
            for i in range(3): l1.put(a, [("vm",f"q{i}", cq_issue(CQ[i],i))])
            srds2(a); nonce_write(a); vm.add("nw",False); phi_dma(a); vm.add("phi",False); csg_addr(a); rd1_addr(a,0)
            a("s_waitcnt lgkmcnt(0)"); a("s_barrier")
            for i in range(3): add(o.get("gat",[1,2,3])[i], [("vm",f"g{i}", cg_issue(CG[i],i), 2)])
        s.stamp(2)
        tmp=Asm(); st=stats_compute(tmp, R_ST, 212, "ret", "sc1", S_L2E); stl=[("wait","stats")]+[x.strip() for x in tmp.lines]+[("vm","statst",st)]
        add(1, [("vm","non", nonce_issue(R_NON))])
        if not fg and o.get("tch",10): add(o.get("tch",10), [("vm","tch",touch(),2)])
        kc=o.get("kc",7); kp=o.get("kp",3)
        if fg:
            over(range(2,2*kp+1), stl)
            over(range(15,17), w2_addr())
        else:
            L=[]
            for i in range(3): L+=[("wait",f"q{i}")]+acc(CQ[i],4,AQ,i==0)
            over(range(0,2*kp+1), L+fold_q(AQ)+stl)
            add(2*kp+2, [cond(0,"csst",cs_out_b(224,V_T+4,1),"K_CS")])
            add(2*kp+1, fa1(V_FA,V_T))
            L=[]
            for i in range(3): L+=[("wait",f"g{i}")]+acc(CG[i],8,AG,i==0)
            s.gacc=L+fold_g(AG)
            add(2*kc-1, [cond(2,"pst",poll_issue(V_FA,R_FL),"K_PS")])
        def post1(S):
            s.lst(S)
            if S==kp and not fg: s.only(0,"K_CA"); cs_out_a(a,224,V_T+4,L_CWQ); a.label("K_CA")
            if S==kp+1: a(f"s_waitcnt vmcnt({vm.n_after({'non'})})"); nonce_take(a, R_NON, f"{R}_NON")
            if S==kp+2 and not fg: s.only(1,"K_P1"); publish(a,1,V_T+2); a.label("K_P1"); vm.add("pub",False)
            if S==8 and kc<8:
                load_rs(a, R_RS, 0); vm.add("rs"); vm.add("rs")
                if not fg: s.only(2,"K_G2"); a("s_waitcnt vmcnt(2)"); cs_sum(a,212,V_T+2,1); a.label("K_G2")
            if S==kc and not fg:
                s.only(2,"K_G"); a(f"s_waitcnt vmcnt({vm.n_after({'pst'})})"); poll_wait(a,V_FA,R_FL,V_T+2,1,"K_PW",True); cs_gather(a,212,V_T+2,1); a.label("K_G")
        pre1=lambda S: (["statst"]+([] if fg else ["csst"]) if S==kp+2 else [])+(["phi"] if (S==0 and not fg) else [])
        if not fg:
            over(range(2*kp+2,15), s.gacc); add(15, phi_pre()); over(range(16,20), phi_rd())
        else:
            flat=lambda its: sum((x[2] for x in its),[])
            gd=lambda its,lab,ty: ("cond","s2",[f"s_cmp_eq_u32 s{S_TYPE}, {ty}", f"s_cbranch_scc0 {lab}"]+its+[f"{lab}:"])
            add(17, [gd(flat(l2.dw(0)),"V_S0",T_G)]); add(18, [gd(flat(l2.dx(0)[:4]),"V_S1",T_G)]); add(19, [gd(flat(l2.dx(0)[4:]),"V_S2",T_G)])
        if o.get("noval"):
            for c in sch: sch[c]=[x for x in sch[c] if isinstance(x,tuple) or (isinstance(x,list) and False)]
        l1.emit(a, fg, lambda c: lz(sch.get(c,[])), post1, pre1)
        s.stamp(3)
        if kc==8:
            a("s_waitcnt lgkmcnt(0)"); a("s_barrier"); load_rs(a, R_RS, 0); vm.add("rs"); vm.add("rs")
            if not fg: s.only(2,"K_G2"); a("s_waitcnt vmcnt(2)"); cs_sum(a,212,V_T+2,1); a.label("K_G2")
        a(f"s_waitcnt vmcnt({vm.n_after({'rs'})})")
        if not fg:
            s.only(3,"K_G3"); cs_out_a(a,212,V_T+2,L_CWG); a("s_waitcnt lgkmcnt(0)"); a(cs_out_b(212,V_T+2,0)); a.label("K_G3")
        epi1(a, fg, R_RS)
        s.stamp(4)
        a(rd2_addr()); pub_prep(a,2,V_T+2)
        a("s_waitcnt vmcnt(0) lgkmcnt(0)"); pub_fire(a,V_T+2,4,f"{R}_P2")
        a(f"s_cmp_eq_u32 s{S_TYPE}, {T_S}"); a("s_cbranch_scc1 HELPER")
        s.stamp(5)
        vm.ops=[]; sch={}
        if fg:
            a("s_setprio 1"); l2.put(a, l2.dw(1)+l2.dx(1)); x2=l2.dx(2); add((0,1),x2[:4]); add((1,0),x2[4:])
        PH=[(c,h) for c in range(20) for h in range(2)]
        over(PH[4:8], fa_sp(V_FB,V_T)+addr_b()+([] if fg else fa2(V_FA,V_T)))
        if not fg: add((8,0), [cond(2,"pst",poll_issue(V_FA,R_FL),"K2_PS")])
        add(o.get("psp",(13,0)), [("vm","psp",poll_issue(V_FB,R_FS))])
        add((16,0), [("wait","psp")]+p3.flag_ok_items(R_FS,V_T,3,1))
        gi=lambda it,lab: ("cond","B",guard(it,1,lab))
        add((16,1), [gi(o_issue(),f"{R}_OI")]); add((17,0), o_phi_rd())
        nb=o.get("nb",3)
        for k,ph in zip(range(nb), [(17,1),(18,0),(18,1),(19,0)]): add(ph, [gi(bstep(k)[:3],f"{R}_B{k}a"), gi(bstep(k)[3:],f"{R}_B{k}b")])
        def post2(S):
            s.lst(S+6) if S%1==0 and 3<=S<=8 else None
            if S==5 and not fg:
                s.only(2,"K2_G"); a(f"s_waitcnt vmcnt({vm.n_after({'pst'})})"); poll_wait(a,V_FA,R_FL,V_T+2,"sc","K2_PW",True); cs_gather(a,212,V_T+2,0); a.label("K2_G")
            if S==6:
                load_rs(a,R_RS,1)
                for _ in range(4): vm.add("rs")
                if not fg: s.only(2,"K2_G2"); a("s_waitcnt vmcnt(4)"); cs_sum(a,212,V_T+2,0); a.label("K2_G2")
        l2.emit(a, fg, lambda c,h: lz(sch.get((c,h),[])), post2, lambda S: [])
        if fg: a("s_setprio 0")
        s.stamp(6)
        a(f"s_cmp_eq_u32 s{S_PRE}, 1"); a(f"s_cbranch_scc1 {R}_OK")
        poll_wait(a,V_FB,R_FS,V_T,3,f"{R}_PSP",False); a(o_issue()); a("s_waitcnt vmcnt(0)")
        a.label(f"{R}_OK")
        a(f"s_waitcnt vmcnt({5*nb}) lgkmcnt(0)")
        o_fin(a)
        epi2(a, R_RS)
        a("s_branch P2")
    def phase2(s):
        a=s.a; o=s.o; vm=VM(); nb=o.get("nb",3); WA=14; RA=20; RX=244; GF=31
        def put(items,tag):
            for x in items: a(x); vm.add(tag)
        pub_prep(a,4,V_T); a("s_waitcnt vmcnt(0)"); s.stamp(7); pub_fire(a,V_T,0,"P2_NP")
        for k in range(nb): vm.add(f"B{k}",False)
        a(guard(sum((bstep(k) for k in range(nb)),[]),0,"P2_E"))
        w0=o.get("w0",9)
        for k in range(nb,w0): put(bstep(k),f"B{k}")
        fa_p2(a,GF,V_T); srd(a,S_OUT,P(8),2048*1280); p3.x_issue(a,RX); red_addr(a,WA,None); red_addr(a,None,RA)
        a(f"s_cmp_ge_u32 s{S_WAVE}, 6"); a("s_cbranch_scc1 P2_WO")
        top=[(t,False) for t,_ in vm.ops]
        for wo in (0,1):
            n=10 if wo else 9; vm.ops=list(top)
            if wo: a.label("P2_WO")
            p3.addr_a(a,wo)
            poll_wait(a,GF,250,V_T,4,f"P2_PG{wo}",False)
            s.stamp(8)
            ORD=[4,0,1,2,3,5,6,7,8,9][:n]; BH={4:BR[4],0:BR[0],1:BR[1],2:BR[2],3:BR[3],5:BR[0],6:BR[1],7:BR[2],8:BR[3],9:BR[0]}
            for p in range(2): put(p3.aload(ORD[p],AB[p]),f"A{ORD[p]}")
            for k in range(w0,9): put(bstep(k),f"B{k}")
            for p,k in enumerate(ORD):
                a(f"s_waitcnt vmcnt({vm.n_after({f'A{k}',f'B{k}'})})"+(" lgkmcnt(0)" if 5<=k<9 else ""))
                a(g2_mfma(BH[k],AB[p%3],p==0))
                if p==0: put(p3.aload(ORD[2],AB[2]),f"A{ORD[2]}")
                if p+3<n: put(p3.aload(ORD[p+3],AB[p%3]),f"A{ORD[p+3]}")
                if k<4: a(f"s_waitcnt vmcnt({vm.n_after({f'B{k+5}'})})"); a(p3.lread(k,BR[k]))
                if k==5 and wo: put(p3.bload(9,BR[0]),"B9")
            if not wo: a("s_branch P2_RED")
        a.label("P2_RED"); a("s_nop 7"); s.stamp(9)
        red_write(a,WA); p3.reduce_final(a,RX,RA)
    def build(s):
        a=s.a; a.raw(kernel_header(KN)); p2.SLEEP[0]=s.o.get("sleep",2)
        a("s_cmp_ge_u32 s2, 256"); a("s_cbranch_scc1 K_END")
        if s.timing: a("s_memrealtime s[98:99]")
        load_ptrs(a); ids(a)
        s.only(7,"CPF_SKIP"); a(f"s_getpc_b64 s[{S_SAVE}:{S_SAVE+1}]"); a.label("CPF_BASE")
        a(f"s_lshr_b32 s{S_T0}, s2, 3"); a(f"s_mul_i32 s{S_T0}, s{S_T0}, 24"); a(f"v_add_u32 v{V_T}, s{S_T0}, v0"); a(f"v_lshlrev_b32 v{V_T}, 7, v{V_T}")
        a(f"v_min_u32 v{V_T}, K_LAST-CPF_BASE, v{V_T}"); a("s_mov_b64 exec, 0xffffff"); a(f"global_load_dword v253, v{V_T}, s[{S_SAVE}:{S_SAVE+1}]"); a("s_mov_b64 exec, -1")
        a.label("CPF_SKIP")
        x_addr(a)
        a(f"s_cmp_lg_u32 s{S_FG}, 0"); a("s_cbranch_scc1 ROLE_V")
        s.role(0); a.label("ROLE_V"); s.role(1)
        a.label("HELPER")
        helper(a, s.stamp)
        a(fa_sp(V_FB,V_T)); a(addr_b()); pub_prep(a,3,V_T+2); a("s_waitcnt vmcnt(0)"); pub_fire(a,V_T+2,0,"HL_P3"); s.stamp(5)
        poll_wait(a,V_FB,R_FS,V_T,3,"HL_PSP",False); a(o_issue()); a(o_phi_rd()); a("s_waitcnt vmcnt(0) lgkmcnt(0)"); s.stamp(6)
        o_fin(a)
        a.label("P2")
        s.phase2()
        if s.timing:
            a("s_waitcnt vmcnt(0)"); s.stamp(10)
            a(f"v_writelane_b32 v{VST}, s{S_TYPE}, 15"); a(f"v_writelane_b32 v{VST}, s98, 0")
            a(f"s_lshl_b32 s{S_T0}, s2, 3"); a(f"s_add_u32 s{S_T0}, s{S_T0}, s{S_WAVE}"); a(f"s_lshl_b32 s{S_T0}, s{S_T0}, 6"); a(f"s_add_u32 s{S_T0}, s{S_T0}, {WS_DBG}")
            a("v_lshlrev_b32 v3, 2, v0"); a("s_mov_b64 exec, 0xffff"); a(f"buffer_store_dword v{VST}, v3, s[{S_WS}:{S_WS+3}], s{S_T0} offen")
            a(f"s_add_u32 s{S_T0}, s{S_T0}, 0x20000"); a(f"buffer_store_dword v{VST2}, v3, s[{S_WS}:{S_WS+3}], s{S_T0} offen")
        a.label("K_END"); a.label("K_LAST"); a("s_endpgm")
        return hazard.fix(a.text())
def fusedfile(path, opts=None, timing=False):
    t=Gen(timing,opts).build()
    open(path,"w").write(HDR+"; @launch grid=(256,1,1) block=(512,1,1) lds=163840\n"+'.amdgcn_target "amdgcn-amd-amdhsa--gfx950"\n.text\n'+t+"\n"+'.section .rodata,"a"\n'+kernel_desc(KN,256))
if __name__=="__main__":
    opts=eval(sys.argv[1]) if len(sys.argv)>1 else {}
    fusedfile("r_t.s", dict(opts,lstamp=1), True); fusedfile("r.s", opts, False)
```

```python
from asmlib import *

WS_FLAG = 0x0
WS_RS   = 0x8000
WS_CS   = 0x10000
WS_PQ   = 0x100000
WS_KVP  = 0x400000
WS_O    = 0x600000
WS_WT   = 0xA00000
WS_H    = 0x1000000
WS_DBG  = 0x2000000
WS_SIZE = 0x10000000

WSLOT = 24576; XBASE = 49152; XSLOT = 32768
L_WPHI = 147456
L_ZERO = L_WPHI + 6400
L_CSW  = L_ZERO + 800
L_CS2  = L_CSW + 8*768
LDS_P1 = L_CS2 + 768
KVROW = 528
assert LDS_P1 <= 163840

S_X=8; S_W0=12; S_W1=16; S_WS=20; S_XALL=24; S_PHI=28
S_WAVE=32; S_RT=33; S_CT=34; S_TYPE=35; S_CTG=36; S_TG=37; S_FG=38
S_M0X=39; S_M0W=40; S_WOFF=41; S_EXC=42
S_CSOFF=44; S_T0=45; S_T1=46; S_T2=47; S_T3=48
S_WSTR=49
S_ROW=50; S_L2E=51
S_PTR=52
S_SAVE=74
S_WD=76
S_SLOT=80; S_XHI=3; S_TAG=82
P = lambda i: S_PTR + 2*i
T_Q, T_KV, T_GU, T_SP = 0, 1, 2, 3

V_X=1
V_W=5
V_C=8
V_XR=10
V_WR=14
V_T=16
ACC=32; XB=[128,144]; WB=[160,172]; FREE=184
LOG2E = 0x3fb8aa3b

class VM:
    def __init__(self): self.ops=[]
    def add(self, tag, sure=True): self.ops.append((tag, sure))
    def n_after(self, tags):
        last=max(i for i,(t,_) in enumerate(self.ops) if t in tags)
        return min(63, sum(1 for t,s in self.ops[last+1:] if s))

def load_ptrs(a):
    a(f"s_load_dwordx16 s[{S_PTR}:{S_PTR+15}], s[0:1], 0")
    a(f"s_load_dwordx4 s[{S_PTR+16}:{S_PTR+19}], s[0:1], 64")
    a(f"s_load_dwordx2 s[{S_PTR+20}:{S_PTR+21}], s[0:1], 80")

def decode_ids(a):
    a(f"v_lshrrev_b32 v{V_T}, 6, v0"); a(f"v_and_b32 v0, 63, v0")
    a(f"s_and_b32 s{S_T0}, s2, 7"); a(f"s_lshr_b32 s{S_T1}, s2, 3")
    a(f"v_readfirstlane_b32 s{S_WAVE}, v{V_T}")
    a(f"s_and_b32 s{S_RT}, s{S_T0}, 1"); a(f"s_lshl_b32 s{S_RT}, s{S_RT}, 2"); a(f"s_and_b32 s{S_T2}, s{S_T1}, 3"); a(f"s_add_u32 s{S_RT}, s{S_RT}, s{S_T2}")
    a(f"s_lshr_b32 s{S_T0}, s{S_T0}, 1")
    a(f"s_lshr_b32 s{S_SLOT}, s{S_T1}, 2")
    a(f"s_mul_i32 s{S_CT}, s{S_T0}, 5"); a(f"s_cmp_eq_u32 s{S_T0}, 3"); a(f"s_cselect_b32 s{S_T2}, 4, 3")
    a(f"s_add_u32 s{S_CT}, s{S_CT}, s{S_SLOT}"); a(f"s_sub_u32 s{S_CT}, s{S_CT}, s{S_T2}")
    a(f"s_add_u32 s{S_CTG}, s{S_CT}, 12"); a(f"s_mov_b32 s{S_TYPE}, {T_GU}")
    a(f"s_lshl_b32 s{S_T2}, s{S_SLOT}, 2"); a(f"s_add_u32 s{S_T2}, s{S_T2}, s{S_T0}"); a(f"s_cmp_ge_u32 s{S_T2}, 30"); a(f"s_cselect_b32 s{S_TYPE}, {T_SP}, s{S_TYPE}")
    a(f"s_lshl_b32 s{S_T2}, s{S_T0}, 1"); a(f"s_add_u32 s{S_T2}, s{S_T2}, s{S_SLOT}"); a(f"s_sub_u32 s{S_T2}, s{S_T2}, 1")
    a(f"s_add_u32 s{S_T3}, s{S_T2}, 4")
    a(f"s_cmp_lt_u32 s{S_SLOT}, 3"); a(f"s_cselect_b32 s{S_CT}, s{S_T2}, s{S_CT}"); a(f"s_cselect_b32 s{S_CTG}, s{S_T3}, s{S_CTG}"); a(f"s_cselect_b32 s{S_TYPE}, {T_KV}, s{S_TYPE}")
    a(f"s_cmp_eq_u32 s{S_SLOT}, 0"); a(f"s_cselect_b32 s{S_CT}, s{S_T0}, s{S_CT}"); a(f"s_cselect_b32 s{S_CTG}, s{S_T0}, s{S_CTG}"); a(f"s_cselect_b32 s{S_TYPE}, {T_Q}, s{S_TYPE}")
    a(f"s_and_b32 s{S_TG}, s{S_WAVE}, 3"); a(f"s_lshr_b32 s{S_FG}, s{S_WAVE}, 2")

def x_dma_addr(a):
    t=V_T
    a(f"v_lshrrev_b32 v{t}, 3, v0"); a(f"s_lshl_b32 s{S_T0}, s{S_WAVE}, 5"); a(f"v_add_u32 v{t}, s{S_T0}, v{t}"); a(f"v_mul_u32_u24 v{t}, 1280, v{t}")
    a(f"v_lshrrev_b32 v{t+1}, 4, v0"); a(f"v_xor_b32 v{t+1}, v{t+1}, v0"); a(f"v_and_b32 v{t+1}, 7, v{t+1}"); a(f"v_lshlrev_b32 v{t+1}, 4, v{t+1}")
    a(f"v_add_u32 v{V_X}, v{t}, v{t+1}"); a(f"v_xor_b32 v{t+1}, 64, v{t+1}"); a(f"v_add_u32 v{V_X+1}, v{t}, v{t+1}"); a(f"v_add_u32 v{V_X+1}, 10240, v{V_X+1}")
    a(f"v_add_u32 v{V_X+2}, 20480, v{V_X}"); a(f"v_add_u32 v{V_X+3}, 20480, v{V_X+1}")
    a(f"s_lshl_b32 s{S_M0X}, s{S_WAVE}, 12")
def gu_colperm(a, ch, tmp):
    a(f"v_cmp_le_u32 vcc, 6, v{ch}"); a(f"v_cndmask_b32 v{tmp}, 0, 2, vcc"); a(f"v_cmp_le_u32 vcc, 10, v{ch}"); a(f"v_cndmask_b32 v{tmp}, v{tmp}, -4, vcc")
    a(f"v_add_u32 v{ch}, v{ch}, v{tmp}")
def w_dma_addr_gu(a):
    t=V_T
    a(f"s_mul_i32 s{S_T0}, s{S_TG}, {16*3456}")
    for i in range(3):
        a(f"v_add_u32 v{t+3}, {64*i}, v0"); a(f"v_mul_u32_u24 v{t}, 171, v{t+3}"); a(f"v_lshrrev_b32 v{t}, 11, v{t}")
        a(f"v_mul_u32_u24 v{t+1}, 12, v{t}"); a(f"v_sub_u32 v{t+1}, v{t+3}, v{t+1}")
        a(f"v_lshrrev_b32 v{t+2}, 2, v{t}"); a(f"v_and_b32 v{t+2}, 2, v{t+2}"); a(f"v_xor_b32 v{t+1}, v{t+1}, v{t+2}")
        gu_colperm(a, t+1, t+2)
        a(f"v_mul_u32_u24 v{t}, 3456, v{t}"); a(f"v_lshl_add_u32 v{t}, v{t+1}, 4, v{t}"); a(f"v_add_u32 v{V_W+i}, s{S_T0}, v{t}")
    a(f"s_mul_i32 s{S_M0W}, s{S_WAVE}, 3072")
    a(f"s_mov_b32 s{S_WSTR}, {64*3456}")
def cs_addr_gu(a):
    t=V_T
    a(f"v_and_b32 v{t+1}, 15, v0"); gu_colperm(a, t+1, t+2)
    a(f"v_lshrrev_b32 v{t}, 4, v0"); a(f"v_mul_u32_u24 v{t}, 3456, v{t}"); a(f"v_lshl_add_u32 v{t}, v{t+1}, 4, v{t}")
    a(f"s_mul_i32 s{S_T0}, s{S_RT}, {4*3456}"); a(f"v_add_u32 v{V_C}, s{S_T0}, v{t}"); a(f"v_mov_b32 v{V_C+1}, v{V_C}")
    a(f"s_mov_b32 s{S_EXC}, 0x0fff0fff"); a(f"s_mov_b32 s{S_EXC+1}, 0x0fff0fff")
    a(f"s_mul_i32 s{S_CSOFF}, s{S_TG}, {32*3456}")
def kv_coladj(a, ch, dst, tmp):
    a(f"s_cmp_eq_u32 s{S_TYPE}, {T_KV}"); a(f"s_cselect_b32 s{S_T1}, {1280-160}, 0")
    a(f"v_mov_b32 v{tmp}, s{S_T1}"); a(f"v_cmp_le_u32 vcc, 10, v{ch}"); a(f"v_cndmask_b32 v{tmp}, 0, v{tmp}, vcc"); a(f"v_add_u32 v{dst}, v{dst}, v{tmp}")
def w_dma_addr_qkv(a):
    t=V_T
    a(f"s_mul_i32 s{S_T0}, s{S_WAVE}, {8*3840}")
    for i in range(3):
        a(f"v_add_u32 v{t+3}, {64*i}, v0"); a(f"v_mul_u32_u24 v{t}, 205, v{t+3}"); a(f"v_lshrrev_b32 v{t}, 12, v{t}")
        a(f"v_mul_u32_u24 v{t+1}, 20, v{t}"); a(f"v_sub_u32 v{t+1}, v{t+3}, v{t+1}")
        a(f"v_mul_u32_u24 v{t}, 3840, v{t}"); a(f"v_lshl_add_u32 v{t}, v{t+1}, 4, v{t}")
        kv_coladj(a, t+1, t, t+2)
        a(f"v_add_u32 v{V_W+i}, s{S_T0}, v{t}")
    a(f"s_mul_i32 s{S_M0W}, s{S_WAVE}, 2592")
    a(f"s_mov_b32 s{S_WSTR}, {64*3840}")
def cs_addr_qkv(a):
    t=V_T
    a(f"v_and_b32 v{t+1}, 31, v0"); a(f"v_lshrrev_b32 v{t}, 5, v0"); a(f"v_mul_u32_u24 v{t}, 3840, v{t}"); a(f"v_lshl_add_u32 v{t}, v{t+1}, 4, v{t}")
    kv_coladj(a, t+1, t, t+2)
    a(f"s_mul_i32 s{S_T0}, s{S_RT}, {4*3840}"); a(f"v_add_u32 v{V_C}, s{S_T0}, v{t}"); a(f"v_add_u32 v{V_C+1}, 7680, v{V_C}")
    a(f"s_mov_b32 s{S_EXC}, 0xfffff"); a(f"s_mov_b32 s{S_EXC+1}, 0xfffff")
    a(f"s_mul_i32 s{S_CSOFF}, s{S_TG}, {32*3840}")

def srds_common(a):
    a(f"s_mul_i32 s{S_T0}, s{S_RT}, 327680"); a(f"s_add_u32 s{S_X}, s{P(0)}, s{S_T0}"); a(f"s_addc_u32 s{S_X+1}, s{P(0)+1}, 0")
    a(f"s_and_b32 s{S_X+1}, s{S_X+1}, 0xffff"); a(f"s_mov_b32 s{S_X+2}, 327680"); a(f"s_mov_b32 s{S_X+3}, 0x20000")
    srd(a, S_XALL, P(0), 2048*1280)
    srd(a, S_WS, P(10), WS_SIZE)
def srds_gu(a):
    a(f"s_mul_i32 s{S_T0}, s{S_CT}, 192")
    for d, p in ((S_W0, P(5)), (S_W1, P(6))):
        a(f"s_add_u32 s{d}, s{p}, s{S_T0}"); a(f"s_addc_u32 s{d+1}, s{p+1}, 0"); a(f"s_and_b32 s{d+1}, s{d+1}, 0xffff")
        a(f"s_sub_u32 s{d+2}, {640*3456}, s{S_T0}"); a(f"s_mov_b32 s{d+3}, 0x20000")
    a(f"s_cmp_eq_u32 s{S_FG}, 0"); a(f"s_cselect_b32 s{S_WD}, s{S_W0}, s{S_W1}"); a(f"s_cselect_b32 s{S_WD+1}, s{S_W0+1}, s{S_W1+1}")
    a(f"s_mov_b32 s{S_WD+2}, s{S_W0+2}"); a(f"s_mov_b32 s{S_WD+3}, 0x20000")
def srds_qkv(a):
    a(f"s_mul_i32 s{S_T0}, s{S_CT}, 320"); a(f"s_mul_i32 s{S_T1}, s{S_CT}, 160"); a(f"s_add_u32 s{S_T1}, s{S_T1}, 1280")
    a(f"s_cmp_eq_u32 s{S_TYPE}, {T_KV}"); a(f"s_cselect_b32 s{S_T0}, s{S_T1}, s{S_T0}")
    for d in (S_W0, S_W1, S_WD):
        a(f"s_add_u32 s{d}, s{P(1)}, s{S_T0}"); a(f"s_addc_u32 s{d+1}, s{P(1)+1}, 0"); a(f"s_and_b32 s{d+1}, s{d+1}, 0xffff")
        a(f"s_sub_u32 s{d+2}, {640*3840}, s{S_T0}"); a(f"s_mov_b32 s{d+3}, 0x20000")
    a(f"s_mul_i32 s{S_T0}, s{S_CT}, 6400"); a(f"s_mul_i32 s{S_T1}, s{S_CT}, 3200"); a(f"s_cmp_eq_u32 s{S_TYPE}, {T_KV}"); a(f"s_cselect_b32 s{S_T0}, s{S_T1}, s{S_T0}")
    a(f"s_add_u32 s{S_PHI}, s{P(2)}, s{S_T0}"); a(f"s_addc_u32 s{S_PHI+1}, s{P(2)+1}, 0"); a(f"s_and_b32 s{S_PHI+1}, s{S_PHI+1}, 0xffff")
    a(f"s_sub_u32 s{S_PHI+2}, 25600, s{S_T0}"); a(f"s_mov_b32 s{S_PHI+3}, 0x20000")

def stats_issue(a, R, vm=None):
    a(f"s_and_b32 s{S_T0}, s2, 1"); a(f"s_lshl_b32 s{S_T0}, s{S_T0}, 7"); a(f"s_bfe_u32 s{S_T1}, s2, 0x20001"); a(f"s_lshl_b32 s{S_T1}, s{S_T1}, 5")
    a(f"s_add_u32 s{S_T0}, s{S_T0}, s{S_T1}"); a(f"s_lshr_b32 s{S_T1}, s2, 3"); a(f"s_add_u32 s{S_T0}, s{S_T0}, s{S_T1}")
    a(f"s_lshl_b32 s{S_T0}, s{S_T0}, 3"); a(f"s_add_u32 s{S_ROW}, s{S_T0}, s{S_WAVE}")
    a(f"s_mul_i32 s{S_T0}, s{S_ROW}, 1280")
    a(f"v_lshlrev_b32 v{V_T}, 4, v0"); a(f"v_lshlrev_b32 v{V_T+1}, 2, v0")
    a(f"buffer_load_dwordx4 {vr(R,4)}, v{V_T}, s[{S_XALL}:{S_XALL+3}], s{S_T0} offen")
    a(f"buffer_load_dword v{R+4}, v{V_T+1}, s[{S_XALL}:{S_XALL+3}], s{S_T0} offen offset:1024")
    if vm: vm.add("stats"); vm.add("stats")
def wave_sum(a, v, sdst):
    for sh in (1,2,4,8): a(f"v_add_f32_dpp v{v}, v{v}, v{v} row_shr:{sh} row_mask:0xf bank_mask:0xf bound_ctrl:0")
    a(f"v_add_f32_dpp v{v}, v{v}, v{v} row_bcast:15 row_mask:0xa bank_mask:0xf")
    a(f"v_add_f32_dpp v{v}, v{v}, v{v} row_bcast:31 row_mask:0xc bank_mask:0xf")
    a(f"v_readlane_b32 s{sdst}, v{v}, 63")
def stats_compute(a, R, T, vm=None, flags="sc1", S_T0=S_T0):
    for i in range(5):
        a(f"v_lshlrev_b32 v{T+2*i}, 16, v{R+i}"); a(f"v_and_b32 v{T+2*i+1}, 0xffff0000, v{R+i}")
    s=T+10
    a(f"v_add_f32 v{s}, v{T}, v{T+1}")
    for i in range(2,10): a(f"v_add_f32 v{s}, v{s}, v{T+i}")
    wave_sum(a, s, S_T0)
    a(f"v_mov_b32 v{s+1}, 0x3acccccd"); a(f"v_mul_f32 v{s+1}, s{S_T0}, v{s+1}")
    for i in range(10): a(f"v_sub_f32 v{T+i}, v{T+i}, v{s+1}")
    a(f"v_mul_f32 v{s}, v{T}, v{T}")
    for i in range(1,10): a(f"v_fmac_f32 v{s}, v{T+i}, v{T+i}")
    wave_sum(a, s, S_T0)
    a(f"v_mov_b32 v{s}, 0x3acccccd"); a(f"v_mul_f32 v{s}, s{S_T0}, v{s}")
    a(f"v_cvt_pk_bf16_f32 v{s}, v{s}, v{s+1}")
    a(f"v_and_b32 v{T}, 0xffff0000, v{s}"); a(f"v_lshlrev_b32 v{s}, 16, v{s}")
    a(f"v_add_f32 v{s}, 0x3727c5ac, v{s}"); a(f"v_cvt_pk_bf16_f32 v{s}, v{s}, v{s}"); a(f"v_lshlrev_b32 v{s}, 16, v{s}")
    a(f"v_sqrt_f32 v{s}, v{s}"); a(f"v_cvt_pk_bf16_f32 v{s}, v{s}, v{s}"); a(f"v_lshlrev_b32 v{T+1}, 16, v{s}")
    a(f"s_lshl_b32 s{S_T0}, s{S_ROW}, 3"); a(f"s_add_u32 s{S_T0}, s{S_T0}, {WS_RS}"); a(f"v_mov_b32 v{s}, 0")
    st=["s_mov_b64 exec, 1", f"buffer_store_dwordx2 {vr(T,2)}, v{s}, s[{S_WS}:{S_WS+3}], s{S_T0} offen {flags}", "s_mov_b64 exec, -1"]
    if vm=="ret": return st
    a(st)
    if vm: vm.add("statst")

def colsum_issue(R, i):
    L=[]
    if i: L += [f"s_lshl_b32 s{S_T0}, s{S_WSTR}, 1", f"s_add_u32 s{S_CSOFF}, s{S_CSOFF}, s{S_T0}"]
    L += [f"s_mov_b64 exec, s[{S_EXC}:{S_EXC+1}]",
          f"buffer_load_dwordx4 {vr(R,4)}, v{V_C}, s[{S_W0}:{S_W0+3}], s{S_CSOFF} offen",
          f"buffer_load_dwordx4 {vr(R+4,4)}, v{V_C+1}, s[{S_W1}:{S_W1+3}], s{S_CSOFF} offen",
          "s_mov_b64 exec, -1"]
    return L
def colsum_acc(R, A, T, first, gu):
    L=[]
    for i in range(8):
        k = i if gu else (i&3)
        if first and (gu or i<4):
            L += [f"v_lshlrev_b32 v{A+2*k}, 16, v{R+i}", f"v_and_b32 v{A+2*k+1}, 0xffff0000, v{R+i}"]
        else:
            L += [f"v_lshlrev_b32 v{T}, 16, v{R+i}", f"v_and_b32 v{T+1}, 0xffff0000, v{R+i}", f"v_add_f32 v{A+2*k}, v{A+2*k}, v{T}", f"v_add_f32 v{A+2*k+1}, v{A+2*k+1}, v{T+1}"]
    return L
def colsum_fold(A, T, gu):
    L=[]
    if gu:
        for i in range(8): L += [f"v_permlane32_swap_b32 v{A+i}, v{A+8+i}"]
        for i in range(8): L += [f"v_add_f32 v{A+i}, v{A+i}, v{A+8+i}"]
        for i in range(4): L += [f"v_permlane16_swap_b32 v{A+i}, v{A+4+i}"]
        for i in range(4): L += [f"v_add_f32 v{A+i}, v{A+i}, v{A+4+i}"]
        L += [f"v_and_b32 v{T}, 15, v0", f"v_lshlrev_b32 v{T}, 5, v{T}", f"v_bfe_u32 v{T+1}, v0, 4, 1", f"v_lshl_add_u32 v{T}, v{T+1}, 4, v{T}",
              f"v_lshrrev_b32 v{T+1}, 5, v0", f"v_mul_u32_u24 v{T+1}, 384, v{T+1}", f"v_add_u32 v{T}, v{T}, v{T+1}"]
    else:
        for i in range(4): L += [f"v_permlane32_swap_b32 v{A+i}, v{A+4+i}"]
        for i in range(4): L += [f"v_add_f32 v{A+i}, v{A+i}, v{A+4+i}"]
        L += [f"v_and_b32 v{T}, 31, v0", f"v_lshlrev_b32 v{T}, 5, v{T}", f"v_lshrrev_b32 v{T+1}, 5, v0", f"v_lshl_add_u32 v{T}, v{T+1}, 4, v{T}"]
    L += [f"s_mul_i32 s{S_T0}, s{S_TG}, 768", f"s_add_u32 s{S_T0}, s{S_T0}, {L_CSW}", f"v_add_u32 v{T}, s{S_T0}, v{T}",
          [f"s_mov_b64 exec, s[{S_EXC}:{S_EXC+1}]", f"ds_write_b128 v{T}, {vr(A,4)}", "s_mov_b64 exec, -1"]]
    return L
def colsum_store(a, R, T, flags="sc1"):
    a(f"v_lshlrev_b32 v{T}, 4, v0"); a(f"v_add_u32 v{T+1}, {L_CSW}, v{T}")
    a(f"s_mov_b32 exec_hi, 0xffff")
    for w in range(4): a(f"ds_read_b128 {vr(R+4*w,4)}, v{T+1} offset:{768*w}")
    a(f"s_lshl_b32 s{S_T0}, s{S_CTG}, 3"); a(f"s_add_u32 s{S_T0}, s{S_T0}, s{S_RT}"); a(f"s_mul_i32 s{S_T0}, s{S_T0}, 768"); a(f"s_add_u32 s{S_T0}, s{S_T0}, {WS_CS}")
    a("s_waitcnt lgkmcnt(0)")
    for w in range(1,4):
        for e in range(4): a(f"v_add_f32 v{R+e}, v{R+e}, v{R+4*w+e}")
    a(f"buffer_store_dwordx4 {vr(R,4)}, v{T}, s[{S_WS}:{S_WS+3}], s{S_T0} offen {flags}")
    a("s_mov_b64 exec, -1")
def colsum_store_a(a, R, T):
    a(f"v_lshlrev_b32 v{T}, 4, v0"); a(f"v_add_u32 v{T+1}, {L_CSW}, v{T}")
    for w in range(4): a(f"ds_read_b128 {vr(R+4*w,4)}, v{T+1} offset:{768*w}")
def colsum_store_b(R, T):
    L=[f"s_lshl_b32 s{S_T0}, s{S_CTG}, 3", f"s_add_u32 s{S_T0}, s{S_T0}, s{S_RT}", f"s_mul_i32 s{S_T0}, s{S_T0}, 768", f"s_add_u32 s{S_T0}, s{S_T0}, {WS_CS}"]
    for e in (0,2): L+=[f"v_pk_add_f32 {vr(R+e,2)}, {vr(R+e,2)}, {vr(R+4+e,2)}", f"v_pk_add_f32 {vr(R+8+e,2)}, {vr(R+8+e,2)}, {vr(R+12+e,2)}"]
    for e in (0,2): L+=[f"v_pk_add_f32 {vr(R+e,2)}, {vr(R+e,2)}, {vr(R+8+e,2)}"]
    return L+[f"s_mov_b32 exec_hi, 0xffff", f"buffer_store_dwordx4 {vr(R,4)}, v{T}, s[{S_WS}:{S_WS+3}], s{S_T0} offen sc1", "s_mov_b64 exec, -1"]
def colsum_gather_issue(a, R, T, flags="sc1"):
    a(f"v_lshlrev_b32 v{T}, 4, v0"); a(f"s_mul_i32 s{S_T0}, s{S_CTG}, {8*768}"); a(f"s_add_u32 s{S_T0}, s{S_T0}, {WS_CS}"); a(f"s_add_u32 s{S_T1}, s{S_T0}, {4*768}")
    a(f"s_mov_b32 exec_hi, 0xffff")
    for i in range(8): a(f"buffer_load_dwordx4 {vr(R+4*i,4)}, v{T}, s[{S_WS}:{S_WS+3}], s{S_T0 if i<4 else S_T1} offen offset:{(i%4)*768} {flags}")
    a("s_mov_b64 exec, -1")
def colsum_gather_sum(R, T, LCS):
    L=[f"v_lshlrev_b32 v{T}, 4, v0", f"v_add_u32 v{T}, {LCS}, v{T}"]
    for i in range(1,8):
        for e in (0,2): L.append(f"v_pk_add_f32 {vr(R+e,2)}, {vr(R+e,2)}, {vr(R+4*i+e,2)}")
    L.append([f"s_mov_b32 exec_hi, 0xffff", f"ds_write_b128 v{T}, {vr(R,4)}", "s_mov_b64 exec, -1"])
    return L
def xpf_item(T, D, l0, nl):
    sh = 2
    return [f"v_and_b32 v{T}, 3, v0", f"s_lshl_b32 s{S_T0}, s{S_WAVE}, 2", f"v_add_u32 v{T}, s{S_T0}, v{T}", f"v_lshlrev_b32 v{T}, 3, v{T}", f"v_add_u32 v{T}, s{S_SLOT}, v{T}",
            f"v_mul_u32_u24 v{T}, 1280, v{T}", f"v_lshrrev_b32 v{D}, 2, v0", f"v_lshl_add_u32 v{T}, v{D}, 7, v{T}",
            f"s_mov_b64 exec, {(1<<(4*nl))-1}", f"buffer_load_dword v{D}, v{T}, s[{S_X}:{S_X+3}], 0 offen offset:{128*l0}", "s_mov_b64 exec, -1"]

def xpf2_item(T, D, l0, nl):
    return [f"v_and_b32 v{T}, 7, v0", f"s_lshl_b32 s{S_T0}, s{S_TG}, 3", f"v_add_u32 v{T}, s{S_T0}, v{T}", f"v_lshlrev_b32 v{T}, 3, v{T}", f"v_add_u32 v{T}, s{S_SLOT}, v{T}",
            f"v_mul_u32_u24 v{T}, 1280, v{T}", f"v_lshrrev_b32 v{D}, 3, v0", f"v_lshl_add_u32 v{T}, v{D}, 7, v{T}",
            (f"s_mov_b32 exec_hi, {((1<<(8*nl-32))-1)&0xffffffff}" if nl>=4 else f"s_mov_b64 exec, {(1<<(8*nl))-1}"), f"buffer_load_dword v{D}, v{T}, s[{S_X}:{S_X+3}], 0 offen offset:{128*l0}", "s_mov_b64 exec, -1"]
class Loop:
    def __init__(self, gu, vm, o=None):
        self.gu=gu; self.nA = 6 if gu else 5; self.vm=vm; self.o=o or {}
    def blks(self, half):
        n0 = 3 if self.gu else self.o.get("qsplit",2)
        return range(n0) if half==0 else range(n0, self.nA)
    def dma_w_all(self, S):
        sb=(S%2)*WSLOT; L=[]
        for hi in (1,0):
            for i in range(3):
                it=[]
                if self.gu: lo=12288*hi; srdn=S_W1 if hi else S_W0; so=S_WOFF
                else:
                    lo=4*2592*hi; srdn=S_WD; so=S_T0 if hi else S_WOFF
                    if hi: it+=[f"s_add_u32 s{S_T0}, s{S_WOFF}, {32*3840}"]
                it+=[f"s_add_u32 m0, s{S_M0W}, {sb+1024*i+lo}"]
                if i==2 and not self.gu: it+=["s_mov_b32 exec_hi, 0"]
                it+=[f"buffer_load_dwordx4 v{V_W+i}, s[{srdn}:{srdn+3}], s{so} offen lds"]
                if i==2 and not self.gu: it+=["s_mov_b32 exec_hi, -1"]
                if i==2 and not hi: it+=[f"s_add_u32 s{S_WOFF}, s{S_WOFF}, s{S_WSTR}"]
                L.append(("vm", f"W{S}", it))
        return L
    def dma_x_all(self, S):
        sb=XBASE+(S%3)*XSLOT
        return [("vm", f"X{S}", [f"s_add_u32 m0, s{S_M0X}, {sb-128*S+1024*i+16384*hi}", f"buffer_load_dwordx4 v{V_X+i}, s[{S_X}:{S_X+3}], {('s%d'%S_XHI) if hi else 0} offen offset:{128*S} lds"]) for hi in (0,1) for i in range(4)]
    def emit2(self, a, loader, extra, post_bar, pre_tags=None):
        a(self.first_reads(0))
        pend=[]
        for c in range(20):
            S=c//2
            for half in range(2):
                isbar = (c%2==1 and half==1 and S+1<10)
                if isbar:
                    tags=set(pre_tags(S) if pre_tags else [])
                    if loader: tags|={f"W{S+1}", f"X{S+1}"}
                    a((f"s_waitcnt vmcnt({self.vm.n_after(tags)}) lgkmcnt(0)") if tags else "s_waitcnt lgkmcnt(0)"); a("s_barrier")
                    post_bar(a,S)
                    if loader: pend=(self.dma_w_all(S+2) if S+2<10 else [])+(self.dma_x_all(S+3) if S+3<10 else [])
                else: a("s_waitcnt lgkmcnt(0)")
                rd = self.rd_w(c,1) if half==0 else (self.first_reads(c+1) if c+1<20 else [])
                ph=(2*c+half+1)%4
                k=self.o.get("dsplit",[4,4,3,3])[ph]
                dm=pend[:k]; pend=pend[k:]
                if self.o.get("nodma"):
                    for x in dm: self.vm.add(x[1], False)
                    dm=[]
                if self.o.get("nords"): rd=[]
                self.put(a, place(self.mf(c,half), spread(rd, dm) if self.o.get("dfront",0) else rd, spread(extra(c,half), [] if self.o.get("dfront",0) else dm)))
    def dma_w(self, S):
        sb=(S%2)*WSLOT; L=[]
        for i in range(3):
            it=[f"s_add_u32 m0, s{S_M0W}, {sb+1024*i}"]
            if i==2 and not self.gu: it+=["s_mov_b32 exec_hi, 0"]
            it+=[f"buffer_load_dwordx4 v{V_W+i}, s[{S_WD}:{S_WD+3}], s{S_WOFF} offen lds"]
            if i==2:
                if not self.gu: it+=["s_mov_b32 exec_hi, -1"]
                it+=[f"s_add_u32 s{S_WOFF}, s{S_WOFF}, s{S_WSTR}"]
            L.append(("vm", f"W{S}", it))
        return L
    def dma_x(self, S):
        sb=XBASE+(S%3)*XSLOT
        return [("vm", f"X{S}", [f"s_add_u32 m0, s{S_M0X}, {sb-128*S+1024*i}", f"buffer_load_dwordx4 v{V_X+i}, s[{S_X}:{S_X+3}], 0 offen offset:{128*S} lds"]) for i in range(4)]
    def put(self, a, items):
        for x in items:
            if isinstance(x, tuple) and x[0]=="lazy":
                a(f"s_waitcnt vmcnt({self.vm.n_after({x[1]})})")
            elif isinstance(x, tuple):
                n = x[3] if len(x)>3 else 1
                for _ in range(n): self.vm.add(x[1], x[0]=="vm")
                a(x[2])
            else: a(x)
    def read_addr(self, a):
        t=V_T
        a(f"v_and_b32 v{t}, 15, v0"); a(f"v_lshlrev_b32 v{t}, 7, v{t}")
        a(f"v_bfe_u32 v{t+1}, v0, 1, 3"); a(f"v_lshrrev_b32 v{t+2}, 4, v0"); a(f"v_xor_b32 v{t+1}, v{t+1}, v{t+2}")
        a(f"v_lshl_add_u32 v{t}, v{t+1}, 4, v{t}"); a(f"s_lshl_b32 s{S_T0}, s{S_TG}, 13"); a(f"s_add_u32 s{S_T0}, s{S_T0}, {XBASE}")
        a(f"v_add_u32 v{V_XR}, s{S_T0}, v{t}"); a(f"v_xor_b32 v{V_XR+1}, 64, v{V_XR}")
        a(f"v_add_u32 v{V_XR+2}, {2*XSLOT}, v{V_XR}"); a(f"v_add_u32 v{V_XR+3}, {2*XSLOT}, v{V_XR+1}")
        gs, rs, fs, cs = (1536,192,96,8) if self.gu else (2592,320,160,40)
        a(f"v_mul_u32_u24 v{t}, {gs}, v{t+2}"); a(f"v_bfe_u32 v{t+1}, v0, 2, 2"); a(f"v_mul_u32_u24 v{t+1}, {rs}, v{t+1}"); a(f"v_add_u32 v{t}, v{t}, v{t+1}")
        a(f"v_and_b32 v{t+1}, 3, v0"); a(f"v_mul_u32_u24 v{t+1}, {cs}, v{t+1}"); a(f"v_add_u32 v{t}, v{t}, v{t+1}")
        a(f"s_mul_i32 s{S_T0}, s{S_FG}, {fs}"); a(f"v_add_u32 v{V_WR}, s{S_T0}, v{t}")
        if self.gu:
            a(f"v_and_b32 v{t+2}, 1, v{t+2}"); a(f"s_cmp_eq_u32 s{S_FG}, 0"); a(f"s_cselect_b32 s{S_T0}, 32, -32"); a(f"v_mul_i32_i24 v{t+2}, s{S_T0}, v{t+2}")
            a(f"v_sub_u32 v{V_WR+1}, v{V_WR}, v{t+2}"); a(f"v_add_u32 v{V_WR}, v{V_WR}, v{t+2}")
    def rd_x(self, c):
        S=c//2; j=c%2; s=S%3
        return [f"ds_read_b128 {vr(XB[c%2]+4*t,4)}, v{V_XR+j+(2 if s==2 else 0)} offset:{(s%2)*XSLOT+2048*t}" for t in range(4)]
    def rd_w(self, c, half):
        S=c//2; j=c%2; so=(S%2)*WSLOT; L=[]
        for i,blk in enumerate(self.blks(half)):
            for rd in range(2):
                if self.gu: v=V_WR+((blk%3)&1); off=so+j*6144+rd*768+(blk%3)*32+(blk//3)*12288
                else: v=V_WR; off=so+j*10368+rd*1280+blk*8
                L.append(f"ds_read_b64_tr_b16 {vr(WB[half]+4*i+2*rd,2)}, v{v} offset:{off}")
        return L
    def mf(self, c, half):
        L=[]
        for i,blk in enumerate(self.blks(half)):
            for t in range(4):
                ac=ACC+4*(4*blk+t)
                L.append(f"v_mfma_f32_16x16x32_bf16 {vr(ac,4)}, {vr(WB[half]+4*i,4)}, {vr(XB[c%2]+4*t,4)}, {vr(ac,4) if c>0 else 0}")
        return L
    def first_reads(self, c):
        r = self.rd_x(c); w = self.rd_w(c,0)
        return [r[0], w[0], w[1]] + r[1:] + w[2:]
    def emit(self, a, extra=None, pre_bar=None, post_bar=None):
        a(self.first_reads(0))
        for c in range(20):
            S=c//2
            for half in range(2):
                isbar = (c%2==1 and half==1 and S+1<10)
                if isbar:
                    tags={f"W{S+1}", f"X{S+1}"} | set(pre_bar(S) if pre_bar else [])
                    a(f"s_waitcnt vmcnt({self.vm.n_after(tags)}) lgkmcnt(0)"); a("s_barrier")
                    if post_bar: post_bar(a,S)
                else: a("s_waitcnt lgkmcnt(0)")
                rd = self.rd_w(c,1) if half==0 else (self.first_reads(c+1) if c+1<20 else [])
                dm=[]
                if isbar and S+2<10: dm=self.dma_w(S+2)
                if c%2==0 and S>=1 and S+2<10:
                    x=self.dma_x(S+2); dm = x[:2] if half==0 else x[2:]
                ex = extra(c,half) if extra else []
                if self.o.get("nodma"):
                    for x in dm: self.vm.add(x[1], False)
                    dm=[]
                if self.o.get("nox"):
                    for x in dm:
                        if x[1][0]=="X": self.vm.add(x[1], False)
                    dm=[x for x in dm if x[1][0]!="X"]
                if self.o.get("nords"): rd=[]
                self.put(a, place(self.mf(c,half), spread(rd, dm), ex))

def spread(x, y):
    if not y: return list(x)
    if not x: return list(y)
    return interleave(x, y)
def place(m, front, ex, lim=None):
    n=len(m); lim=min(n,lim) if lim else max(1,(3*n)//4)
    per=[0]*n
    k=len(front); i=0
    while k>0:
        per[i%lim]+=1; k-=1; i+=1
    out=[]; fi=0; ei=0
    for i,x in enumerate(m):
        out.append(x)
        for _ in range(per[i]): out.append(front[fi]); fi+=1
        tgt=(len(ex)*(i+1)+n-1)//n
        while ei<tgt: out.append(ex[ei]); ei+=1
    return out
```

```python
from p1 import *
E_RS=128
E_AB=136
E_CS=144
E_T=168
E_PHI=184
LO="op_sel:[{}] op_sel_hi:[{}]"
def pk(op, d, srcs, sel, neg=None):
    assert 'h' not in sel
    lo=",".join("1" if c=='h' else "0" for c in sel); hi=",".join("0" if c=='l' else "1" for c in sel)
    s=f"{op} {vr(d,2)}, " + ", ".join(x if isinstance(x,str) else vr(x,2) for x in srcs)
    if 'l' in sel or 'h' in sel: s+=f" op_sel:[{lo}] op_sel_hi:[{hi}]"
    if neg: n=",".join(str(x) for x in neg); s+=f" neg_lo:[{n}] neg_hi:[{n}]"
    return s
def epi_load_rs(a, RS=E_RS, flags="sc1"):
    a(f"s_lshl_b32 s{S_T0}, s{S_RT}, 8"); a(f"s_lshl_b32 s{S_T1}, s{S_TG}, 6"); a(f"s_add_u32 s{S_T0}, s{S_T0}, s{S_T1}"); a(f"s_lshl_b32 s{S_T0}, s{S_T0}, 3"); a(f"s_add_u32 s{S_T0}, s{S_T0}, {WS_RS}")
    a(f"v_and_b32 v{V_T}, 15, v0"); a(f"v_lshlrev_b32 v{V_T}, 3, v{V_T}")
    for t in range(4): a(f"buffer_load_dwordx2 {vr(RS+2*t,2)}, v{V_T}, s[{S_WS}:{S_WS+3}], s{S_T0} offen offset:{128*t} {flags}")
def epi_read_cs(a, gu, L_CS2=L_CS2):
    t=V_T
    a(f"v_lshrrev_b32 v{t}, 4, v0"); a(f"v_mul_u32_u24 v{t}, {16 if gu else 80}, v{t}")
    a(f"s_mul_i32 s{S_T0}, s{S_FG}, {192 if gu else 320}"); a(f"s_add_u32 s{S_T0}, s{S_T0}, {L_CS2}"); a(f"v_add_u32 v{t}, s{S_T0}, v{t}")
    for b in range(6 if gu else 5):
        off = ((b%3)*64 + (b//3)*384) if gu else b*16
        a(f"ds_read_b128 {vr(E_CS+4*b,4)}, v{t} offset:{off}")

def epi_gu(a, RS=E_RS, flags="sc1", hook=None, vm=None, var=0):
    for t in range(4):
        a(f"v_rcp_f32 v{E_AB+2*t}, v{RS+2*t+1}"); a(f"v_mul_f32 v{E_RS+2*t}, v{RS+2*t+1}, v{RS+2*t+1}")
    for t in range(4): a(f"v_mul_f32 v{E_AB+2*t}, {LOG2E|0x80000000}, v{E_AB+2*t}")
    vo=V_T; vmid=V_T+1
    a(f"v_lshlrev_b32 v{vo}, 4, v0")
    a(f"v_lshrrev_b32 v{vmid}, 5, v0"); a(f"v_mul_u32_u24 v{vmid}, {54*1024-512}, v{vmid}"); a(f"v_add_u32 v{vmid}, v{vmid}, v{vo}")
    a(f"s_lshl_b32 s{S_T0}, s{S_FG}, 9"); a(f"v_add_u32 v{vmid}, s{S_T0}, v{vmid}")
    sf, sm = S_EXC, S_EXC+1
    a(f"s_lshl_b32 s{sf}, s{S_RT}, 4"); a(f"s_lshl_b32 s{S_T1}, s{S_TG}, 2"); a(f"s_add_u32 s{sf}, s{sf}, s{S_T1}"); a(f"s_mul_i32 s{sf}, s{sf}, 54")
    a(f"s_mul_i32 s{S_T1}, s{S_CT}, 3"); a(f"s_add_u32 s{sf}, s{sf}, s{S_T1}"); a(f"s_lshl_b32 s{sf}, s{sf}, 10"); a(f"s_add_u32 s{sf}, s{sf}, {WS_H}")
    a(f"s_add_u32 s{sm}, s{sf}, 1024"); a(f"s_lshl_b32 s{S_T2}, s{S_FG}, 11"); a(f"s_add_u32 s{sf}, s{sf}, s{S_T2}")
    def hblock(pts, dst):
        el=[(ACC+4*(4*p+t)+e, ACC+4*(4*(3+p)+t)+e, E_CS+4*p+e, E_CS+4*(3+p)+e, t) for (p,t) in pts for e in (0,2)]
        X=E_T
        for g,u,cg,cu,t in el: a(pk("v_pk_fma_f32", g, [RS+2*t, cg, g], "lpp", [1,0,0]))
        for i,(g,u,cg,cu,t) in enumerate(el): a(pk("v_pk_mul_f32", X+2*i, [g, E_AB+2*t], "pl"))
        for i,(g,u,cg,cu,t) in enumerate(el):
            a(f"v_exp_f32 v{X+2*i}, v{X+2*i}"); a(f"v_exp_f32 v{X+2*i+1}, v{X+2*i+1}"); a(pk("v_pk_fma_f32", u, [RS+2*t, cu, u], "lpp", [1,0,0]))
        for i,(g,u,cg,cu,t) in enumerate(el): a(pk("v_pk_fma_f32", X+2*i, [X+2*i, E_RS+2*t, E_RS+2*t], "pll"))
        for i,(g,u,cg,cu,t) in enumerate(el):
            a(f"v_rcp_f32 v{X+2*i}, v{X+2*i}"); a(f"v_rcp_f32 v{X+2*i+1}, v{X+2*i+1}"); a(pk("v_pk_mul_f32", g, [g, u], "pp"))
        for i,(g,u,cg,cu,t) in enumerate(el): a(pk("v_pk_mul_f32", g, [g, X+2*i], "pp"))
        for i,(g,u,cg,cu,t) in enumerate(el): a(f"v_cvt_pk_bf16_f32 v{dst+i}, v{g}, v{g+1}")
    D=[E_T+8, E_T+12]
    nst=0
    for t in range(4):
        d=D[nst%2]; hblock([(0,t),(1,t)], d)
        a(f"buffer_store_dwordx4 {vr(d,4)}, v{vo}, s[{S_WS}:{S_WS+3}], s{sf} offen {flags}")
        if vm: vm.add("est")
        if t<3: a(f"s_add_u32 s{sf}, s{sf}, {54*1024}")
        if hook: hook(nst)
        nst+=1
        if t&1:
            d=D[nst%2]; hblock([(2,t-1),(2,t)], d)
            a(f"v_permlane32_swap_b32 v{d}, v{d+2}"); a(f"v_permlane32_swap_b32 v{d+1}, v{d+3}")
            a(f"buffer_store_dwordx4 {vr(d,4)}, v{vmid}, s[{S_WS}:{S_WS+3}], s{sm} offen {flags}")
            if vm: vm.add("est")
            if t<3: a(f"s_add_u32 s{sm}, s{sm}, {2*54*1024}")
            if hook: hook(nst)
            nst+=1

def phi_dma(a, vm=None, lab=""):
    a(f"s_lshl_b32 s{S_T0}, s{S_WAVE}, 10"); a(f"s_add_u32 m0, s{S_T0}, {L_WPHI}"); a(f"v_lshlrev_b32 v{V_T}, 4, v0")
    a(f"v_add_u32 v{V_T}, s{S_T0}, v{V_T}"); a(f"v_cmp_gt_u32 vcc, 6400, v{V_T}"); a(f"s_and_b64 exec, vcc, -1")
    a(f"s_cbranch_execz PHI_SKIP{lab}")
    a(f"buffer_load_dwordx4 v{V_T}, s[{S_PHI}:{S_PHI+3}], 0 offen lds")
    a.label(f"PHI_SKIP{lab}")
    a("s_mov_b64 exec, -1")
    if vm: vm.add("phi", False)
def lds_zero_init(a):
    t=V_T
    a(f"s_lshl_b32 s{S_T0}, s{S_WAVE}, 6"); a(f"v_add_u32 v{t+4}, s{S_T0}, v0"); a(f"v_subrev_u32 v{t+4}, 448, v{t+4}")
    for i in range(4): a(f"v_mov_b32 v{t+i}, 0")
    a(f"v_cmp_gt_u32 vcc, 50, v{t+4}"); a(f"v_lshlrev_b32 v{t+4}, 4, v{t+4}"); a(f"v_add_u32 v{t+4}, {L_ZERO}, v{t+4}")
    a(f"s_and_b64 exec, vcc, -1")
    a(f"ds_write_b128 v{t+4}, {vr(t,4)}")
    a("s_mov_b64 exec, -1")
def phi_frags(a, t=V_T):
    a(f"v_lshrrev_b32 v{t}, 4, v0"); a(f"v_and_b32 v{t+1}, 3, v0"); a(f"v_cmp_eq_u32 vcc, v{t}, v{t+1}")
    a(f"v_mul_u32_u24 v{t}, 800, v{t}"); a(f"v_bfe_u32 v{t+1}, v0, 2, 2"); a(f"v_mul_u32_u24 v{t+1}, 40, v{t+1}"); a(f"v_add_u32 v{t}, v{t}, v{t+1}")
    a(f"s_mul_i32 s{S_T0}, s{S_FG}, 3200"); a(f"s_cmp_eq_u32 s{S_TYPE}, {T_KV}"); a(f"s_cselect_b32 s{S_T0}, 0, s{S_T0}"); a(f"s_add_u32 s{S_T0}, s{S_T0}, {L_WPHI}"); a(f"v_add_u32 v{t}, s{S_T0}, v{t}")
    a(f"v_mov_b32 v{t+1}, {L_ZERO}"); a(f"v_cndmask_b32 v{t}, v{t+1}, v{t}, vcc")
    L=[]
    for b in range(5):
        for s in range(3):
            for rd in range(2):
                r=E_PHI+4*(3*b+s)+2*rd
                if s==2 and rd==1: a(f"v_mov_b32 v{r}, 0"); a(f"v_mov_b32 v{r+1}, 0")
                else: L.append(f"ds_read_b64_tr_b16 {vr(r,2)}, v{t} offset:{(8*s+4*rd)*40+b*8}")
    return L
def ln_pack(a, t, dst, RS):
    el=[(ACC+4*(4*b+t)+e, E_CS+4*b+e) for b in range(5) for e in (0,2)]
    for g,c in el: a(pk("v_pk_fma_f32", g, [RS+2*t, c, g], "lpp", [1,0,0]))
    for g,c in el: a(pk("v_pk_mul_f32", g, [g, E_AB+2*t], "pl"))
    for k,(g,c) in enumerate(el): a(f"v_cvt_pk_bf16_f32 v{dst+k}, v{g}, v{g+1}")
def phi_mfma(a, t, F):
    for s in range(3):
        for b in range(5):
            ac=ACC+4*(4*b+t)
            a(f"v_mfma_f32_16x16x32_bf16 {vr(ac,4)}, {vr(E_PHI+4*(3*b+s),4)}, {vr(F+4*s,4)}, {vr(ac,4) if s else 0}")
def epi_rstd(a, RS):
    for t in range(4): a(f"v_rcp_f32 v{E_AB+2*t}, v{RS+2*t+1}")
def epi_q(a, RS=E_RS, flags="sc1", vm=None):
    epi_rstd(a, RS)
    F=[E_T, 112]
    for f in F: a(f"v_mov_b32 v{f+10}, 0"); a(f"v_mov_b32 v{f+11}, 0")
    for t in range(4):
        ln_pack(a, t, F[t&1], RS); phi_mfma(a, t, F[t&1])
    v16=V_T; v8=V_T+1; t_=V_T+2
    a(f"v_lshrrev_b32 v{t_}, 4, v0"); a(f"v_mul_u32_u24 v{t_}, 81920, v{t_}"); a(f"v_and_b32 v{v8}, 15, v0")
    a(f"v_lshl_add_u32 v{v16}, v{v8}, 4, v{t_}"); a(f"v_lshl_add_u32 v{v8}, v{v8}, 3, v{t_}")
    a(f"s_lshl_b32 s{S_T0}, s{S_CT}, 1"); a(f"s_add_u32 s{S_T0}, s{S_T0}, s{S_FG}"); a(f"s_mul_i32 s{S_T0}, s{S_T0}, {4*81920}"); a(f"s_add_u32 s{S_T0}, s{S_T0}, {WS_PQ}")
    a(f"s_lshl_b32 s{S_T1}, s{S_RT}, 8"); a(f"s_lshl_b32 s{S_T2}, s{S_TG}, 6"); a(f"s_add_u32 s{S_T1}, s{S_T1}, s{S_T2}")
    a(f"s_lshl_b32 s{S_T2}, s{S_T1}, 3"); a(f"s_add_u32 s{S_T2}, s{S_T2}, s{S_T0}"); a(f"s_add_u32 s{S_T2}, s{S_T2}, 65536")
    a(f"s_lshl_b32 s{S_T1}, s{S_T1}, 4"); a(f"s_add_u32 s{S_T0}, s{S_T0}, s{S_T1}"); a(f"s_add_u32 s{S_T1}, s{S_T0}, 32768")
    for t in range(4):
        D=E_CS+12*(t&1)
        el=[ACC+4*(4*b+t)+e for b in range(5) for e in range(4)]
        for k in range(10): a(f"v_cvt_pk_bf16_f32 v{D+k}, v{el[2*k]}, v{el[2*k+1]}")
        a(f"buffer_store_dwordx4 {vr(D,4)}, v{v16}, s[{S_WS}:{S_WS+3}], s{S_T0} offen offset:{256*t} {flags}")
        a(f"buffer_store_dwordx4 {vr(D+4,4)}, v{v16}, s[{S_WS}:{S_WS+3}], s{S_T1} offen offset:{256*t} {flags}")
        a(f"buffer_store_dwordx2 {vr(D+8,2)}, v{v8}, s[{S_WS}:{S_WS+3}], s{S_T2} offen offset:{128*t} {flags}")
        if vm:
            for _ in range(3): vm.add("est")

def softmax20(a, p, sign, T, dst, sc=None, mid=None, scalar=False):
    out=[]
    q=[r+e for r in p for e in (0,1)]
    m=T+20; s=T+22
    op = "v_max3_f32" if sign>0 else "v_min3_f32"
    out+=[f"{op} v{m}, v{q[0]}, v{q[1]}, v{q[2]}", f"{op} v{m+1}, v{q[3]}, v{q[4]}, v{q[5]}"]
    for i in range(6,18,4): out+=[f"{op} v{m}, v{m}, v{q[i]}, v{q[i+1]}", f"{op} v{m+1}, v{m+1}, v{q[i+2]}, v{q[i+3]}"]
    out+=[f"{op} v{m}, v{m}, v{q[18]}, v{q[19]}", f"{'v_max_f32' if sign>0 else 'v_min_f32'} v{m}, v{m}, v{m+1}"]
    if sc is None:
        out+=[f"v_mov_b32 v{s}, {LOG2E if sign>0 else LOG2E|0x80000000}", f"v_mul_f32 v{m}, v{m}, v{s}"]
        for i,r in enumerate(p): out.append(pk("v_pk_fma_f32", T+2*i, [r, s, m], "pll", [0,0,1]))
    else:
        out+=[f"v_mul_f32 v{m}, v{m}, v{sc}"]
        if scalar:
            out+=[f"v_fma_f32 v{T+i}, v{r}, {'' if sign>0 else '-'}v{sc}, {'-' if sign>0 else ''}v{m}" for i,r in enumerate(q)]
            out+=[f"v_exp_f32 v{T+i}, v{T+i}" for i in range(20)]
            out+=[f"v_add_f32 v{m+k}, v{T+k}, v{T+4+k}" for k in range(4)]
            for i in range(8,20,4): out+=[f"v_add_f32 v{m+k}, v{m+k}, v{T+i+k}" for k in range(4)]
            out+=[f"v_add_f32 v{m}, v{m}, v{m+1}", f"v_add_f32 v{s}, v{s}, v{s+1}", f"v_add_f32 v{s}, v{s}, v{m}", f"v_rcp_f32 v{s}, v{s}", f"v_mul_f32 v{s}, v{s}, v{sc+1}"]
            out+=[f"v_mul_f32 v{T+i}, v{T+i}, v{s}" for i in range(20)]
            out+=[f"v_cvt_pk_bf16_f32 v{dst[k]}, v{T+2*k}, v{T+2*k+1}" for k in range(10)]
            return out
        for i,r in enumerate(p): out.append(pk("v_pk_fma_f32", T+2*i, [r, sc, m], "pll", [0,0,1] if sign>0 else [0,1,0]))
    for i in range(20): out.append(f"v_exp_f32 v{T+i}, v{T+i}")
    out+=[pk("v_pk_add_f32", s, [T, T+2], "pp"), pk("v_pk_add_f32", m, [T+4, T+6], "pp")]
    for i in range(8,20,4): out+=[pk("v_pk_add_f32", s, [s, T+i], "pp"), pk("v_pk_add_f32", m, [m, T+i+2], "pp")]
    out+=[pk("v_pk_add_f32", s, [s, m], "pp"), f"v_add_f32 v{s}, v{s}, v{s+1}", f"v_rcp_f32 v{s}, v{s}"]
    if sc is not None: out+=[f"v_mul_f32 v{s}, v{s}, v{sc+1}"]
    for i in range(10): out.append(pk("v_pk_mul_f32", T+2*i, [T+2*i, s], "pl"))
    for k in range(10): out.append(f"v_cvt_pk_bf16_f32 v{dst[k] if isinstance(dst,list) else dst+k}, v{T+2*k}, v{T+2*k+1}")
    if mid: out=interleave(out[:40], mid)+out[40:]
    if a is None: return out
    a(out)

def epi_kv(a, RS=E_RS, flags="sc1", vm=None):
    epi_rstd(a, RS)
    vw=V_T
    a(f"v_and_b32 v{vw}, 15, v0"); a(f"v_mul_u32_u24 v{vw}, {KVROW}, v{vw}"); a(f"v_lshrrev_b32 v{vw+1}, 4, v0"); a(f"v_lshl_add_u32 v{vw}, v{vw+1}, 7, v{vw}")
    a(f"s_mul_i32 s{S_T0}, s{S_TG}, {64*KVROW}"); a(f"v_add_u32 v{vw}, s{S_T0}, v{vw}")
    a(f"s_cmp_eq_u32 s{S_FG}, 0"); a("s_cbranch_scc1 KV_KWAVE")
    for t in range(4):
        F=E_PHI+12*t
        ln_pack(a, t, F, RS); a(f"v_mov_b32 v{F+10}, 0x3f803f80"); a(f"v_mov_b32 v{F+11}, 0x3f803f80")
        for i in range(3): a(f"ds_write_b128 v{vw}, {vr(F+4*i,4)} offset:{t*16*KVROW+80+16*i}")
    a("s_branch KV_JOIN")
    a.label("KV_KWAVE")
    F=[E_T, 112]
    for f in F: a(f"v_mov_b32 v{f+10}, 0"); a(f"v_mov_b32 v{f+11}, 0")
    for t in range(4):
        ln_pack(a, t, F[t&1], RS); phi_mfma(a, t, F[t&1])
    T=E_CS
    for t in range(4):
        D=E_PHI+20*(t&1)
        p=[ACC+4*(4*b+t)+e for b in range(5) for e in (0,2)]
        softmax20(a, p, +1, T, D); softmax20(a, p, -1, T, D+10)
        for i in range(5): a(f"ds_write_b128 v{vw}, {vr(D+4*i,4)} offset:{t*16*KVROW+16*i}")
    a.label("KV_JOIN")
    kv_stage(a, flags, vm)
def kv_stage(a, flags, vm, stp=None):
    a("s_waitcnt lgkmcnt(0)"); a("s_barrier")
    if stp: stp(23)
    t=V_T
    a(f"v_bfe_u32 v{t}, v0, 2, 3"); a(f"v_lshrrev_b32 v{t+1}, 5, v0"); a(f"v_lshl_add_u32 v{t}, v{t+1}, 3, v{t}"); a(f"v_mul_u32_u24 v{t}, {2*KVROW}, v{t}")
    a(f"v_and_b32 v{t+1}, 3, v0"); a(f"v_lshl_add_u32 v{t}, v{t+1}, 3, v{t}")
    a(f"s_lshr_b32 s{S_T0}, s{S_WAVE}, 1"); a(f"s_lshl_b32 s{S_T0}, s{S_T0}, 7"); a(f"v_add_u32 v{t}, s{S_T0}, v{t}")
    a(f"s_and_b32 s{S_T1}, s{S_WAVE}, 1"); a(f"s_lshl_b32 s{S_T1}, s{S_T1}, 5"); a(f"s_add_u32 s{S_T1}, s{S_T1}, 80"); a(f"v_add_u32 v{t+1}, s{S_T1}, v{t}")
    a(f"v_add_u32 v{t+2}, {128*KVROW}, v{t}"); a(f"v_add_u32 v{t+3}, {128*KVROW}, v{t+1}")
    FR=[48,64,80,96]
    for st in range(8):
        va=t+(2 if st>=4 else 0); o=(st%4)*32*KVROW; f=FR[st%4]
        for rd in range(2): a(f"ds_read_b64_tr_b16 {vr(f+12+2*rd,2)}, v{va+1} offset:{o+rd*KVROW}")
        for fb in range(3):
            for rd in range(2): a(f"ds_read_b64_tr_b16 {vr(f+4*fb+2*rd,2)}, v{va} offset:{o+rd*KVROW+32*fb}")
        if st>=1:
            a("s_waitcnt lgkmcnt(8)"); g=FR[(st-1)%4]
            for fb in range(3): a(f"v_mfma_f32_16x16x32_bf16 {vr(ACC+4*fb,4)}, {vr(g+4*fb,4)}, {vr(g+12,4)}, {vr(ACC+4*fb,4) if st>1 else 0}")
    a("s_waitcnt lgkmcnt(0)"); g=FR[3]
    for fb in range(3): a(f"v_mfma_f32_16x16x32_bf16 {vr(ACC+4*fb,4)}, {vr(g+4*fb,4)}, {vr(g+12,4)}, {vr(ACC+4*fb,4)}")
    if stp: stp(24)
    a(f"v_and_b32 v{t}, 15, v0"); a(f"s_and_b32 s{S_T1}, s{S_WAVE}, 1"); a(f"s_lshl_b32 s{S_T1}, s{S_T1}, 4"); a(f"v_add_u32 v{t}, s{S_T1}, v{t}")
    a(f"v_cmp_gt_u32 vcc, 21, v{t}"); a(f"v_lshrrev_b32 v{t+1}, 4, v0"); a(f"v_mul_u32_u24 v{t+1}, 21, v{t+1}"); a(f"v_add_u32 v{t}, v{t}, v{t+1}"); a(f"v_lshlrev_b32 v{t}, 4, v{t}")
    a(f"s_lshl_b32 s{S_T0}, s{S_RT}, 5"); a(f"s_lshl_b32 s{S_T1}, s{S_CT}, 2"); a(f"s_add_u32 s{S_T0}, s{S_T0}, s{S_T1}"); a(f"s_lshr_b32 s{S_T1}, s{S_WAVE}, 1"); a(f"s_add_u32 s{S_T0}, s{S_T0}, s{S_T1}")
    a(f"s_mul_i32 s{S_T0}, s{S_T0}, 3360"); a(f"s_add_u32 s{S_T0}, s{S_T0}, {WS_KVP}")
    a(f"s_mov_b64 exec, vcc")
    for fb in range(3):
        if fb==2: a("s_mov_b32 exec_hi, 0")
        a(f"buffer_store_dwordx4 {vr(ACC+4*fb,4)}, v{t}, s[{S_WS}:{S_WS+3}], s{S_T0} offen offset:{fb*4*21*16} {flags}")
        if vm: vm.add("est")
    a("s_mov_b64 exec, -1")

def epi_kv2(a, RS=E_RS, flags="sc1", vm=None):
    epi_rstd(a, RS)
    vw=V_T
    a(f"v_and_b32 v{vw}, 15, v0"); a(f"v_mul_u32_u24 v{vw}, {KVROW}, v{vw}"); a(f"v_lshrrev_b32 v{vw+1}, 4, v0"); a(f"v_lshl_add_u32 v{vw}, v{vw+1}, 7, v{vw}")
    a(f"s_mul_i32 s{S_T0}, s{S_TG}, {64*KVROW}"); a(f"v_add_u32 v{vw}, s{S_T0}, v{vw}")
    T=E_CS
    def sm(t, D):
        p=[ACC+4*(4*b+t)+e for b in range(5) for e in (0,2)]
        softmax20(a, p, +1, T, D); softmax20(a, p, -1, T, D+10)
        for i in range(5): a(f"ds_write_b128 v{vw}, {vr(D+4*i,4)} offset:{t*16*KVROW+16*i}")
    a(f"s_cmp_eq_u32 s{S_FG}, 0"); a("s_cbranch_scc1 KV_KWAVE")
    for t in range(4):
        F=E_PHI+12*t
        ln_pack(a, t, F, RS); a(f"v_mov_b32 v{F+10}, 0x3f803f80"); a(f"v_mov_b32 v{F+11}, 0x3f803f80")
        for i in range(3): a(f"ds_write_b128 v{vw}, {vr(F+4*i,4)} offset:{t*16*KVROW+80+16*i}")
    a("s_barrier")
    for t in (2,3):
        for b in range(5): a(f"ds_read_b128 {vr(ACC+4*(4*b+t),4)}, v{vw} offset:{t*16*KVROW+16*b}")
    a("s_waitcnt lgkmcnt(5)"); sm(2, E_PHI)
    a("s_waitcnt lgkmcnt(5)"); sm(3, E_PHI+20)
    a("s_branch KV_JOIN")
    a.label("KV_KWAVE")
    F=[E_T, 112]
    for f in F: a(f"v_mov_b32 v{f+10}, 0"); a(f"v_mov_b32 v{f+11}, 0")
    for t in (2,3):
        ln_pack(a, t, F[t&1], RS); phi_mfma(a, t, F[t&1])
    ln_pack(a, 0, F[0], RS)
    for b in range(5): a(f"ds_write_b128 v{vw}, {vr(ACC+4*(4*b+2),4)} offset:{2*16*KVROW+16*b}")
    phi_mfma(a, 0, F[0])
    for b in range(5): a(f"ds_write_b128 v{vw}, {vr(ACC+4*(4*b+3),4)} offset:{3*16*KVROW+16*b}")
    ln_pack(a, 1, F[1], RS)
    a("s_waitcnt lgkmcnt(0)"); a("s_barrier")
    phi_mfma(a, 1, F[1])
    sm(0, KV_D); sm(1, KV_D2)
    a.label("KV_JOIN")
    kv_stage(a, flags, vm)
KV_D=E_PHI+0; KV_D2=E_PHI+20

def center_pack(t, dst, RS):
    el=[(ACC+4*(4*b+t)+e, E_CS+4*b+e) for b in range(5) for e in (0,2)]
    return [pk("v_pk_fma_f32", g, [RS+2*t, c, g], "lpp", [1,0,0]) for g,c in el]+[f"v_cvt_pk_bf16_f32 v{dst+k}, v{g}, v{g+1}" for k,(g,c) in enumerate(el)]
def phi_mf(t, F):
    return [f"v_mfma_f32_16x16x32_bf16 {vr(ACC+4*(4*b+t),4)}, {vr(E_PHI+4*(3*b+s),4)}, {vr(F+4*s,4)}, {vr(ACC+4*(4*b+t),4) if s else 0}" for s in range(3) for b in range(5)]
def epi_kv3(a, RS=E_RS, flags="sc1", vm=None, st=None):
    if st: st(20)
    for t in range(4): a(f"v_rcp_f32 v{E_AB+2*t+1}, v{RS+2*t+1}")
    vw=V_T
    a(f"v_and_b32 v{vw}, 15, v0"); a(f"v_mul_u32_u24 v{vw}, {KVROW}, v{vw}"); a(f"v_lshrrev_b32 v{vw+1}, 4, v0"); a(f"v_lshl_add_u32 v{vw}, v{vw+1}, 7, v{vw}")
    a(f"s_mul_i32 s{S_T0}, s{S_TG}, {64*KVROW}"); a(f"v_add_u32 v{vw}, s{S_T0}, v{vw}")
    for t in range(4): a(f"v_mul_f32 v{E_AB+2*t}, {LOG2E}, v{E_AB+2*t+1}")
    T=E_CS
    P=lambda t: [ACC+4*(4*b+t)+e for b in range(5) for e in (0,2)]
    wr=lambda t,D,i0,i1: [f"ds_write_b128 v{vw}, {vr(D+4*i,4)} offset:{t*16*KVROW+16*i}" for i in range(i0,i1)]
    a(f"s_cmp_eq_u32 s{S_FG}, 0"); a("s_cbranch_scc1 KV_KWAVE")
    for t in range(4):
        F=E_PHI+12*t
        a(center_pack(t, F, RS)); a(f"v_cvt_pk_bf16_f32 v{F+10}, v{RS+2*t+1}, v{RS+2*t+1}"); a(f"v_mov_b32 v{F+11}, 0")
        for i in range(3): a(f"ds_write_b128 v{vw}, {vr(F+4*i,4)} offset:{t*16*KVROW+80+16*i}")
    if st: st(21)
    a("s_barrier")
    if st: st(22)
    for t in (2,3):
        for b in range(5): a(f"ds_read_b128 {vr(ACC+4*(4*b+t),4)}, v{vw} offset:{t*16*KVROW+16*b}")
    a("s_waitcnt lgkmcnt(5)")
    softmax20(a, P(2), +1, T, E_PHI, E_AB+4); softmax20(a, P(2), -1, T, E_PHI+10, E_AB+4, wr(2,E_PHI,0,2))
    a("s_waitcnt lgkmcnt(2)")
    softmax20(a, P(3), +1, T, E_PHI+20, E_AB+6, wr(2,E_PHI,2,5)); softmax20(a, P(3), -1, T, E_PHI+30, E_AB+6, wr(3,E_PHI+20,0,2))
    a(wr(3,E_PHI+20,2,5))
    a("s_branch KV_JOIN")
    a.label("KV_KWAVE")
    F=[E_T, 112]
    for f in F: a(f"v_mov_b32 v{f+10}, 0"); a(f"v_mov_b32 v{f+11}, 0")
    a(center_pack(2, F[0], RS))
    a(interleave(phi_mf(2,F[0]), center_pack(3, F[1], RS)))
    F2=KV_F2
    a(f"v_mov_b32 v{F2+10}, 0"); a(f"v_mov_b32 v{F2+11}, 0")
    a(interleave(phi_mf(3,F[1]), center_pack(0, F2, RS)))
    ex=lambda t: [f"ds_write_b128 v{vw}, {vr(ACC+4*(4*b+t),4)} offset:{t*16*KVROW+16*b}" for b in range(5)]
    a(ex(2))
    a(interleave(phi_mf(0,F2), center_pack(1, F[0], RS)))
    a(ex(3))
    a(phi_mf(1,F[0])[:5])
    a("s_waitcnt lgkmcnt(0)")
    if st: st(21)
    a("s_barrier")
    if st: st(22)
    D0=KV_D0; D1=E_PHI
    softmax20(a, P(0), +1, T, D0, E_AB+0, phi_mf(1,F[0])[5:]); softmax20(a, P(0), -1, T, D0+10, E_AB+0, wr(0,D0,0,2))
    softmax20(a, P(1), +1, T, D1, E_AB+2, wr(0,D0,2,5)); softmax20(a, P(1), -1, T, D1+10, E_AB+2, wr(1,D1,0,2))
    a(wr(1,D1,2,5))
    a.label("KV_JOIN")
    if st: st(1)
    kv_stage(a, flags, vm, st)
KV_F2=124
KV_D0=E_PHI+20

def epi_kv4(a, RS, st=None):
    vw=V_T
    a(f"v_and_b32 v{vw}, 15, v0"); a(f"v_mul_u32_u24 v{vw}, {KVROW}, v{vw}"); a(f"v_lshrrev_b32 v{vw+1}, 4, v0"); a(f"v_lshl_add_u32 v{vw}, v{vw+1}, 7, v{vw}")
    a(f"s_mul_i32 s{S_T0}, s{S_TG}, {64*KVROW}"); a(f"v_add_u32 v{vw}, s{S_T0}, v{vw}")
    a(f"s_cmp_eq_u32 s{S_FG}, 0"); a("s_cbranch_scc1 KV_KWAVE")
    a("s_waitcnt lgkmcnt(0)")
    for t in range(4):
        F=E_PHI+12*t
        a(center_pack(t, F, RS)); a(f"v_cvt_pk_bf16_f32 v{F+10}, v{RS+2*t+1}, v{RS+2*t+1}"); a(f"v_mov_b32 v{F+11}, 0")
    t=V_T+2
    a(f"v_bfe_u32 v{t}, v0, 2, 3"); a(f"v_lshrrev_b32 v{t+1}, 5, v0"); a(f"v_lshl_add_u32 v{t}, v{t+1}, 5, v{t}"); a(f"v_mul_u32_u24 v{t}, {2*KVROW}, v{t}")
    a(f"v_and_b32 v{t+1}, 3, v0"); a(f"v_lshl_add_u32 v{t}, v{t+1}, 3, v{t}")
    a(f"s_lshl_b32 s{S_T0}, s{S_TG}, 7"); a(f"v_add_u32 v{t}, s{S_T0}, v{t}"); a(f"v_add_u32 v{t+1}, {128*KVROW}, v{t}")
    a("s_barrier")
    for tb in range(4):
        F=E_PHI+12*tb
        for i in range(3): a(f"ds_write_b128 v{vw}, {vr(F+4*i,4)} offset:{tb*16*KVROW+80+16*i}")
    u=V_T+4
    a(f"v_and_b32 v{u}, 15, v0"); a(f"v_cmp_gt_u32 vcc, 5, v{u}"); a(f"v_lshrrev_b32 v{u+1}, 4, v0"); a(f"v_mul_u32_u24 v{u+1}, 21, v{u+1}"); a(f"v_add_u32 v{u}, v{u}, v{u+1}"); a(f"v_lshlrev_b32 v{u}, 4, v{u}")
    a(f"s_lshl_b32 s{S_T0}, s{S_RT}, 5"); a(f"s_lshl_b32 s{S_T1}, s{S_CT}, 2"); a(f"s_add_u32 s{S_T0}, s{S_T0}, s{S_T1}"); a(f"s_add_u32 s{S_T0}, s{S_T0}, s{S_TG}")
    a(f"s_mul_i32 s{S_T0}, s{S_T0}, 3360"); a(f"s_add_u32 s{S_T0}, s{S_T0}, {WS_KVP}")
    FR=[64,84]
    for tb in range(4):
        a("s_waitcnt lgkmcnt(0)"); a("s_barrier")
        for h in range(2):
            f=FR[h]; o=tb*16*KVROW
            for db in range(2):
                for rd in range(2): a(f"ds_read_b64_tr_b16 {vr(f+12+4*db+2*rd,2)}, v{t+h} offset:{o+rd*KVROW+80+32*db}")
            for fb in range(3):
                for rd in range(2): a(f"ds_read_b64_tr_b16 {vr(f+4*fb+2*rd,2)}, v{t+h} offset:{o+rd*KVROW+32*fb}")
        for h in range(2):
            f=FR[h]
            a(f"s_waitcnt lgkmcnt({10 if h==0 else 0})")
            for fb in range(3):
                for db in range(2):
                    ac=ACC+4*(2*fb+db)
                    a(f"v_mfma_f32_16x16x32_bf16 {vr(ac,4)}, {vr(f+4*fb,4)}, {vr(f+12+4*db,4)}, {vr(ac,4) if (tb or h) else 0}")
    if st: st(24)
    for db in range(2):
        for fb in range(3):
            if db==1 and fb==0: a("s_mov_b64 exec, vcc")
            if fb==2: a("s_mov_b32 exec_hi, 0")
            a(f"buffer_store_dwordx4 {vr(ACC+4*(2*fb+db),4)}, v{u}, s[{S_WS}:{S_WS+3}], s{S_T0} offen offset:{fb*4*21*16+db*256} sc1")
        a("s_mov_b64 exec, -1")
    a("s_branch KV_DONE")
    a.label("KV_KWAVE")
    if st: st(20)
    for t in range(4): a(f"v_rcp_f32 v{E_AB+2*t+1}, v{RS+2*t+1}")
    F=[E_T, 112, KV_F2]
    for f in F: a(f"v_mov_b32 v{f+10}, 0"); a(f"v_mov_b32 v{f+11}, 0")
    for t in range(4): a(f"v_mul_f32 v{E_AB+2*t}, {LOG2E}, v{E_AB+2*t+1}")
    a("s_waitcnt lgkmcnt(0)")
    a(center_pack(0, F[0], RS))
    a(interleave(phi_mf(0,F[0]), center_pack(1, F[1], RS)))
    a(interleave(phi_mf(1,F[1]), center_pack(2, F[2], RS)))
    a(interleave(phi_mf(2,F[2]), center_pack(3, F[0], RS)))
    T=E_CS
    P=lambda t: [ACC+4*(4*b+t)+e for b in range(5) for e in (0,2)]
    wr=lambda t,D,i0,i1: [f"ds_write_b128 v{vw}, {vr(D+4*i,4)} offset:{t*16*KVROW+16*i}" for i in range(i0,i1)]
    D=[112, E_PHI+0]
    if st: st(21)
    softmax20(a, P(0), +1, T, D[0], E_AB+0, phi_mf(3,F[0]))
    a("s_barrier")
    if st: st(22)
    for t in range(4):
        d=D[t&1]
        if t: softmax20(a, P(t), +1, T, d, E_AB+2*t, wr(t-1,D[(t-1)&1],2,5)+["s_waitcnt lgkmcnt(0)","s_barrier"])
        softmax20(a, P(t), -1, T, d+10, E_AB+2*t, wr(t,d,0,2))
    a(wr(3,D[1],2,5)); a("s_waitcnt lgkmcnt(0)")
    if st: st(1)
    a("s_barrier")
    a.label("KV_DONE")

def epi_kv5(a, RS, st=None, bk=None, bv=None):
    vw=V_T
    a(f"v_and_b32 v{vw}, 15, v0"); a(f"v_mul_u32_u24 v{vw}, {KVROW}, v{vw}"); a(f"v_lshrrev_b32 v{vw+1}, 4, v0"); a(f"v_lshl_add_u32 v{vw}, v{vw+1}, 7, v{vw}")
    a(f"s_mul_i32 s{S_T0}, s{S_TG}, {16*KVROW}"); a(f"v_add_u32 v{vw}, s{S_T0}, v{vw}")
    a(f"s_cmp_eq_u32 s{S_FG}, 0"); a("s_cbranch_scc1 KV_KWAVE")
    a("s_waitcnt lgkmcnt(0)")
    for t in range(4):
        F=[112,124,168,136][t]
        a(center_pack(t, F, RS)); a(f"v_cvt_pk_bf16_f32 v{F+10}, v{RS+2*t+1}, v{RS+2*t+1}"); a(f"v_mov_b32 v{F+11}, 0")
    t=V_T+2
    a(f"v_bfe_u32 v{t}, v0, 2, 3"); a(f"v_lshrrev_b32 v{t+1}, 5, v0"); a(f"v_lshl_add_u32 v{t}, v{t+1}, 3, v{t}"); a(f"v_mul_u32_u24 v{t}, {2*KVROW}, v{t}")
    a(f"v_and_b32 v{t+1}, 3, v0"); a(f"v_lshl_add_u32 v{t}, v{t+1}, 3, v{t}")
    a(f"s_lshl_b32 s{S_T0}, s{S_TG}, 7"); a(f"v_add_u32 v{t}, s{S_T0}, v{t}"); a(f"v_add_u32 v{t+1}, {32*KVROW}, v{t}")
    a("s_barrier")
    VF=[112,124,168,136]
    wv=lambda tb: [f"ds_write_b128 v{vw}, {vr(VF[tb]+4*i,4)} offset:{(tb&1)*64*KVROW+80+16*i}" for i in range(3)]
    a(wv(0)); a(wv(1))
    bv=list(bv or [])
    def takev(n):
        for _ in range(min(n,len(bv))): a(bv.pop(0))
    takev(10)
    u=V_T+4
    a(f"v_and_b32 v{u}, 15, v0"); a(f"v_cmp_gt_u32 vcc, 5, v{u}"); a(f"v_lshrrev_b32 v{u+1}, 4, v0"); a(f"v_mul_u32_u24 v{u+1}, 21, v{u+1}"); a(f"v_add_u32 v{u}, v{u}, v{u+1}"); a(f"v_lshlrev_b32 v{u}, 4, v{u}")
    a(f"s_lshl_b32 s{S_T0}, s{S_RT}, 5"); a(f"s_lshl_b32 s{S_T1}, s{S_CT}, 2"); a(f"s_add_u32 s{S_T0}, s{S_T0}, s{S_T1}"); a(f"s_add_u32 s{S_T0}, s{S_T0}, s{S_TG}")
    a(f"s_mul_i32 s{S_T0}, s{S_T0}, 3360"); a(f"s_add_u32 s{S_T0}, s{S_T0}, {WS_KVP}")
    FR=[64,84]
    for tb in range(4):
        a("s_waitcnt lgkmcnt(0)"); a("s_barrier")
        if tb in (1,2): a(wv(tb+1))
        for h in range(2):
            f=FR[h]; o=(tb&1)*64*KVROW
            for db in range(2):
                for rd in range(2): a(f"ds_read_b64_tr_b16 {vr(f+12+4*db+2*rd,2)}, v{t+h} offset:{o+rd*KVROW+80+32*db}")
            for fb in range(3):
                for rd in range(2): a(f"ds_read_b64_tr_b16 {vr(f+4*fb+2*rd,2)}, v{t+h} offset:{o+rd*KVROW+32*fb}")
        for h in range(2):
            f=FR[h]
            a(f"s_waitcnt lgkmcnt({10 if h==0 else 0})")
            for fb in range(3):
                for db in range(2):
                    ac=ACC+4*(2*fb+db)
                    a(f"v_mfma_f32_16x16x32_bf16 {vr(ac,4)}, {vr(f+4*fb,4)}, {vr(f+12+4*db,4)}, {vr(ac,4) if (tb or h) else 0}")
        if tb<3: takev(5)
    takev(99)
    if st: st(24)
    for db in range(2):
        for fb in range(3):
            if db==1 and fb==0: a("s_mov_b64 exec, vcc")
            if fb==2: a("s_mov_b32 exec_hi, 0")
            a(f"buffer_store_dwordx4 {vr(ACC+4*(2*fb+db),4)}, v{u}, s[{S_WS}:{S_WS+3}], s{S_T0} offen offset:{fb*4*21*16+db*256} sc1")
        a("s_mov_b64 exec, -1")
    a("s_branch KV_DONE")
    a.label("KV_KWAVE")
    if st: st(20)
    for t in range(4): a(f"v_rcp_f32 v{E_AB+2*t+1}, v{RS+2*t+1}")
    F=[E_T, 112, KV_F2]
    for f in F: a(f"v_mov_b32 v{f+10}, 0"); a(f"v_mov_b32 v{f+11}, 0")
    for t in range(4): a(f"v_mul_f32 v{E_AB+2*t}, {LOG2E}, v{E_AB+2*t+1}")
    a("s_waitcnt lgkmcnt(0)")
    a(center_pack(0, F[0], RS))
    a(interleave(phi_mf(0,F[0]), center_pack(1, F[1], RS)))
    a(interleave(phi_mf(1,F[1]), center_pack(2, F[2], RS)))
    a(interleave(phi_mf(2,F[2]), center_pack(3, F[0], RS)))
    T=E_CS
    P=lambda t: [ACC+4*(4*b+t)+e for b in range(5) for e in (0,2)]
    Q=[[112,116,120,124,128],[168,172,176,180,132]]
    D=[[q+e for q in qq for e in range(4)] for qq in Q]
    wr=lambda t,i0,i1: [f"ds_write_b128 v{vw}, {vr(Q[t&1][i],4)} offset:{(t&1)*64*KVROW+16*i}" for i in range(i0,i1)]
    bk=list(bk or [])
    def takek(n):
        r=bk[:n]; del bk[:n]; return r
    if st: st(21)
    softmax20(a, P(0), +1, T, D[0][:10], E_AB+0, phi_mf(3,F[0]))
    a("s_barrier")
    if st: st(22)
    for t in range(4):
        d=D[t&1]
        if t: softmax20(a, P(t), +1, T, d[:10], E_AB+2*t, wr(t-1,2,5)+["s_waitcnt lgkmcnt(0)","s_barrier"]+takek(4))
        softmax20(a, P(t), -1, T, d[10:], E_AB+2*t, wr(t,0,2)+takek(4 if t<3 else 99))
    a(wr(3,2,5)); a("s_waitcnt lgkmcnt(0)")
    if st: st(1)
    a("s_barrier")
    a.label("KV_DONE")

def epi_q2(a, RS):
    v16=V_T; v8=V_T+1; t_=V_T+2
    epi_rstd(a, RS)
    F=[E_T, 112]
    for f in F: a(f"v_mov_b32 v{f+10}, 0"); a(f"v_mov_b32 v{f+11}, 0")
    a(f"v_lshrrev_b32 v{t_}, 4, v0"); a(f"v_mul_u32_u24 v{t_}, 81920, v{t_}"); a(f"v_and_b32 v{v8}, 15, v0")
    a(f"v_lshl_add_u32 v{v16}, v{v8}, 4, v{t_}")
    a(f"s_lshl_b32 s{S_T0}, s{S_CT}, 1"); a(f"s_add_u32 s{S_T0}, s{S_T0}, s{S_FG}"); a(f"s_mul_i32 s{S_T0}, s{S_T0}, {4*81920}"); a(f"s_add_u32 s{S_T0}, s{S_T0}, {WS_PQ}")
    a(f"s_lshl_b32 s{S_T1}, s{S_RT}, 8"); a(f"s_lshl_b32 s{S_T2}, s{S_TG}, 6"); a(f"s_add_u32 s{S_T1}, s{S_T1}, s{S_T2}")
    a(f"s_lshl_b32 s{S_T2}, s{S_T1}, 3"); a(f"s_add_u32 s{S_T2}, s{S_T2}, s{S_T0}"); a(f"s_add_u32 s{S_T2}, s{S_T2}, 65536")
    a(f"s_lshl_b32 s{S_T1}, s{S_T1}, 4"); a(f"s_add_u32 s{S_T0}, s{S_T0}, s{S_T1}"); a(f"s_add_u32 s{S_T1}, s{S_T0}, 32768")
    a("s_waitcnt lgkmcnt(0)")
    def lnp(t, dst):
        el=[(ACC+4*(4*b+t)+e, E_CS+4*b+e) for b in range(5) for e in (0,2)]
        return [pk("v_pk_fma_f32", g, [RS+2*t, c, g], "lpp", [1,0,0]) for g,c in el]+[pk("v_pk_mul_f32", g, [g, E_AB+2*t], "pl") for g,c in el]+[f"v_cvt_pk_bf16_f32 v{dst+k}, v{g}, v{g+1}" for k,(g,c) in enumerate(el)]
    TL=124
    def out(t):
        el=[ACC+4*(4*b+t)+e for b in range(5) for e in range(4)]
        q=[ACC+4*t, ACC+16+4*t]
        L=[]
        tl=TL+4*(t>>1)+2*(t&1)
        for k in (8,9): L.append(f"v_cvt_pk_bf16_f32 v{tl+k-8}, v{el[2*k]}, v{el[2*k+1]}")
        for k in range(8): L.append(f"v_cvt_pk_bf16_f32 v{q[k>>2]+(k&3)}, v{el[2*k]}, v{el[2*k+1]}")
        L.insert(6, f"buffer_store_dwordx4 {vr(q[0],4)}, v{v16}, s[{S_WS}:{S_WS+3}], s{S_T0} offen offset:{256*t} sc1")
        L.append(f"buffer_store_dwordx4 {vr(q[1],4)}, v{v16}, s[{S_WS}:{S_WS+3}], s{S_T1} offen offset:{256*t} sc1")
        if t&1: L.append(f"buffer_store_dwordx4 {vr(TL+4*(t>>1),4)}, v{v16}, s[{S_WS}:{S_WS+3}], s{S_T2} offen offset:{128*(t-1)} sc1")
        return L
    a(lnp(0,F[0]))
    a(interleave(phi_mf(0,F[0]), lnp(1,F[1])))
    a(interleave(phi_mf(1,F[1]), out(0)+lnp(2,F[0])[:0]))
    a(lnp(2,F[0]))
    a(interleave(phi_mf(2,F[0]), out(1)))
    a(lnp(3,F[1]))
    a(interleave(phi_mf(3,F[1]), out(2)))
    a(out(3))

def epi_kv6(a, RS, role, LCS, st=None, bl=None):
    vw=V_T; T=E_CS
    bl=list(bl or [])
    def take(n):
        r=bl[:n]; del bl[:n]; return r
    epi_read_cs(a, 0, LCS)
    for t in ((0,2) if role=='k' else (1,3)): a(f"v_rcp_f32 v{E_AB+2*t+1}, v{RS+2*t+1}")
    a(f"v_and_b32 v{vw}, 15, v0"); a(f"v_mul_u32_u24 v{vw}, {KVROW}, v{vw}"); a(f"v_lshrrev_b32 v{vw+1}, 4, v0"); a(f"v_lshl_add_u32 v{vw}, v{vw+1}, 7, v{vw}")
    a(f"s_mul_i32 s{S_T0}, s{S_TG}, {16*KVROW}"); a(f"v_add_u32 v{vw}, s{S_T0}, v{vw}")
    for t in ((0,2) if role=='k' else (1,3)): a(f"v_mul_f32 v{E_AB+2*t}, {LOG2E}, v{E_AB+2*t+1}")
    P=lambda t: [ACC+4*(4*b+t)+e for b in range(5) for e in (0,2)]
    wr=lambda t,Q,i0,i1: [f"ds_write_b128 v{vw}, {vr(Q[i],4)} offset:{(t&1)*64*KVROW+16*i}" for i in range(i0,i1)]
    lin=lambda Q: [q+e for q in Q for e in range(4)]
    if role=='k':
        F=[E_T, 112, KV_F2]
        for f in F: a(f"v_mov_b32 v{f+10}, 0"); a(f"v_mov_b32 v{f+11}, 0")
        a("s_waitcnt lgkmcnt(0)")
        if st: st(20)
        a(center_pack(1, F[0], RS))
        a(interleave(phi_mf(1,F[0]), center_pack(3, F[1], RS)))
        a(interleave(phi_mf(3,F[1]), center_pack(0, F[2], RS)))
        a(interleave(phi_mf(0,F[2]), center_pack(2, F[0], RS)))
        if st: st(21)
        ex=lambda t,buf: [f"ds_write_b128 v{vw}, {vr(ACC+4*(4*b+t),4)} offset:{buf*64*KVROW+16*b}" for b in range(5)]
        a("s_barrier")
        a(interleave(phi_mf(2,F[0]), ex(1,1)+ex(3,0))); a("s_waitcnt lgkmcnt(0)"); a("s_barrier")
        if st: st(22)
        Q=[112,116,120,124,128]; D=lin(Q); Q2=[168,172,176,180,132]; D2=lin(Q2)
        softmax20(a, P(0), +1, T, D[:10], E_AB+0, take(10))
        softmax20(a, P(0), -1, T, D[10:], E_AB+0, ["s_barrier"]+wr(0,Q,0,2)+take(10))
        a(wr(0,Q,2,5))
        softmax20(a, P(2), +1, T, D2[:10], E_AB+4, ["s_waitcnt lgkmcnt(0)","s_barrier"]+take(8))
        softmax20(a, P(2), -1, T, D2[10:], E_AB+4, ["s_barrier"]+wr(2,Q2,0,2)+take(99))
        a(wr(2,Q2,2,5)); a("s_waitcnt lgkmcnt(0)")
        if st: st(23)
        a("s_barrier")
        return
    RGq=lambda F,k: (F[k>>2]+(k&3)) if isinstance(F,list) else F+k
    a("s_waitcnt lgkmcnt(0)")
    VF=[[112,116,120],[124,128,132],[168,172,176],[180,VX_A,VX_B]]
    for t in range(4):
        F=VF[t]
        el=[(ACC+4*(4*b+t)+e, E_CS+4*b+e) for b in range(5) for e in (0,2)]
        for g,c in el: a(pk("v_pk_fma_f32", g, [RS+2*t, c, g], "lpp", [1,0,0]))
        for k,(g,c) in enumerate(el): a(f"v_cvt_pk_bf16_f32 v{RGq(F,k)}, v{g}, v{g+1}")
        a(f"v_cvt_pk_bf16_f32 v{RGq(F,10)}, v{RS+2*t+1}, v{RS+2*t+1}"); a(f"v_mov_b32 v{RGq(F,11)}, 0")
    t=V_T+2
    a(f"v_bfe_u32 v{t}, v0, 2, 3"); a(f"v_lshrrev_b32 v{t+1}, 5, v0"); a(f"v_lshl_add_u32 v{t}, v{t+1}, 3, v{t}"); a(f"v_mul_u32_u24 v{t}, {2*KVROW}, v{t}")
    a(f"v_and_b32 v{t+1}, 3, v0"); a(f"v_lshl_add_u32 v{t}, v{t+1}, 3, v{t}")
    a(f"s_lshl_b32 s{S_T0}, s{S_TG}, 7"); a(f"v_add_u32 v{t}, s{S_T0}, v{t}"); a(f"v_add_u32 v{t+1}, {32*KVROW}, v{t}")
    wv=lambda tb: [f"ds_write_b128 v{vw}, {vr(VF[tb][i],4)} offset:{(tb&1)*64*KVROW+80+16*i}" for i in range(3)]
    a("s_barrier")
    a(wv(0)); a(wv(1)); a(take(10))
    u=V_T+4
    a(f"v_and_b32 v{u}, 15, v0"); a(f"v_cmp_gt_u32 s[8:9], 5, v{u}"); a(f"v_lshrrev_b32 v{u+1}, 4, v0"); a(f"v_mul_u32_u24 v{u+1}, 21, v{u+1}"); a(f"v_add_u32 v{u}, v{u}, v{u+1}"); a(f"v_lshlrev_b32 v{u}, 4, v{u}")
    a(f"s_lshl_b32 s10, s{S_RT}, 5"); a(f"s_lshl_b32 s{S_T1}, s{S_CT}, 2"); a(f"s_add_u32 s10, s10, s{S_T1}"); a(f"s_add_u32 s10, s10, s{S_TG}")
    a(f"s_mul_i32 s10, s10, 3360"); a(f"s_add_u32 s10, s10, {WS_KVP}")
    a("s_barrier")
    for tb,buf in ((1,1),(3,0)):
        for b in range(5): a(f"ds_read_b128 {vr(ACC+4*(4*b+tb),4)}, v{vw} offset:{buf*64*KVROW+16*b}")
    a("s_waitcnt lgkmcnt(0)"); a("s_barrier")
    fq=[ACC+4*(4*b+tt) for b in range(5) for tt in (0,2)]
    Q=[112,116,120,124,128]; D=lin(Q)
    KA=fq[:6]
    softmax20(a, P(1), +1, T, D[:10], E_AB+2, take(10))
    softmax20(a, P(1), -1, T, D[10:], E_AB+2, wr(1,Q,0,2)+take(5))
    a(wr(1,Q,2,5)); a("s_waitcnt lgkmcnt(0)"); a("s_barrier")
    fr=[[112,116,120,124,128],[ACC+4,ACC+20,ACC+36,ACC+52,ACC+68]]
    def rnd(tb,h,f):
        o=(tb&1)*64*KVROW
        return [f"ds_read_b64_tr_b16 {vr(f[3+db]+2*r,2)}, v{t+h} offset:{o+r*KVROW+80+32*db}" for db in range(2) for r in range(2)]+[f"ds_read_b64_tr_b16 {vr(f[fb]+2*r,2)}, v{t+h} offset:{o+r*KVROW+32*fb}" for fb in range(3) for r in range(2)]
    def rmf(f, first): return [f"v_mfma_f32_16x16x32_bf16 {vr(KA[2*fb+db],4)}, {vr(f[fb],4)}, {vr(f[3+db],4)}, {0 if first else vr(KA[2*fb+db],4)}" for fb in range(3) for db in range(2)]
    def rounds(tbs, first):
        seq=[(tb,h) for tb in tbs for h in range(2)]
        a(rnd(*seq[0], fr[0]))
        for i in range(4):
            if i+1<4: a(rnd(*seq[i+1], fr[(i+1)&1])); a("s_waitcnt lgkmcnt(10)")
            else: a("s_waitcnt lgkmcnt(0)")
            a(rmf(fr[i&1], first and i==0))
    rounds((0,1), True)
    a("s_barrier")
    a(wv(2)); a(wv(3))
    softmax20(a, P(3), +1, T, D[:10], E_AB+6, take(5))
    softmax20(a, P(3), -1, T, D[10:], E_AB+6, wr(3,Q,0,2)+take(99))
    a(wr(3,Q,2,5)); a("s_waitcnt lgkmcnt(0)"); a("s_barrier")
    rounds((2,3), False)
    if st: st(24)
    for db in range(2):
        for fb in range(3):
            if db==1 and fb==0: a("s_mov_b64 exec, s[8:9]")
            if fb==2: a("s_mov_b32 exec_hi, 0")
            a(f"buffer_store_dwordx4 {vr(KA[2*fb+db],4)}, v{u}, s[{S_WS}:{S_WS+3}], s10 offen offset:{fb*4*21*16+db*256} sc1")
        a("s_mov_b64 exec, -1")
VX_A=ACC+4*(4*3+0)+0; VX_B=ACC+4*(4*4+0)

def epi_kv7(a, RS, role, LCS, st=None, bl=None):
    vw=V_T; T=E_CS
    bl=list(bl or [])
    def take(n):
        r=bl[:n]; del bl[:n]; return r
    epi_read_cs(a, 0, LCS)
    for t in ((0,2) if role=='k' else (1,3)): a(f"v_rcp_f32 v{E_AB+2*t+1}, v{RS+2*t+1}")
    a(f"v_and_b32 v{vw}, 15, v0"); a(f"v_mul_u32_u24 v{vw}, {KVROW}, v{vw}"); a(f"v_lshrrev_b32 v{vw+1}, 4, v0"); a(f"v_lshl_add_u32 v{vw}, v{vw+1}, 7, v{vw}")
    a(f"s_mul_i32 s{S_T0}, s{S_TG}, {16*KVROW}"); a(f"v_add_u32 v{vw}, s{S_T0}, v{vw}")
    for t in ((0,2) if role=='k' else (1,3)): a(f"v_mul_f32 v{E_AB+2*t}, {LOG2E}, v{E_AB+2*t+1}")
    P=lambda t: [ACC+4*(4*b+t)+e for b in range(5) for e in (0,2)]
    wr=lambda t,Q,i0,i1: [f"ds_write_b128 v{vw}, {vr(Q[i],4)} offset:{(t&1)*64*KVROW+16*i}" for i in range(i0,i1)]
    lin=lambda Q: [q+e for q in Q for e in range(4)]
    if role=='k':
        F=[E_T, 112, KV_F2]
        for f in F: a(f"v_mov_b32 v{f+10}, 0"); a(f"v_mov_b32 v{f+11}, 0")
        a("s_waitcnt lgkmcnt(0)")
        if st: st(20)
        a(center_pack(1, F[0], RS))
        a(interleave(phi_mf(1,F[0]), center_pack(3, F[1], RS)))
        a(interleave(phi_mf(3,F[1]), center_pack(0, F[2], RS)))
        a(interleave(phi_mf(0,F[2]), center_pack(2, F[0], RS)))
        if st: st(21)
        ex=lambda t,buf: [f"ds_write_b128 v{vw}, {vr(ACC+4*(4*b+t),4)} offset:{buf*64*KVROW+16*b}" for b in range(5)]
        a("s_barrier")
        a(interleave(phi_mf(2,F[0]), ex(1,1)+ex(3,0))); a("s_waitcnt lgkmcnt(0)"); a("s_barrier")
        if st: st(22)
        Q=[112,116,120,124,128]; D=lin(Q); Q2=[168,172,176,180,132]; D2=lin(Q2)
        softmax20(a, P(0), +1, T, D[:10], E_AB+0, take(10))
        softmax20(a, P(0), -1, T, D[10:], E_AB+0, ["s_barrier"]+wr(0,Q,0,2)+take(10))
        a(wr(0,Q,2,5))
        softmax20(a, P(2), +1, T, D2[:10], E_AB+4, ["s_waitcnt lgkmcnt(0)","s_barrier"]+take(8))
        softmax20(a, P(2), -1, T, D2[10:], E_AB+4, ["s_barrier"]+wr(2,Q2,0,2)+["s_barrier"]+take(99))
        a(wr(2,Q2,2,5)); a("s_waitcnt lgkmcnt(0)")
        if st: st(23)
        a("s_barrier")
        return
    RGq=lambda F,k: (F[k>>2]+(k&3)) if isinstance(F,list) else F+k
    a("s_waitcnt lgkmcnt(0)")
    VF=[[112,116,120],[124,128,132],[168,172,176],[180,VX_A,VX_B]]
    def cen(t):
        F=VF[t]
        el=[(ACC+4*(4*b+t)+e, E_CS+4*b+e) for b in range(5) for e in (0,2)]
        for g,c in el: a(pk("v_pk_fma_f32", g, [RS+2*t, c, g], "lpp", [1,0,0]))
        for k,(g,c) in enumerate(el): a(f"v_cvt_pk_bf16_f32 v{RGq(F,k)}, v{g}, v{g+1}")
        a(f"v_cvt_pk_bf16_f32 v{RGq(F,10)}, v{RS+2*t+1}, v{RS+2*t+1}"); a(f"v_mov_b32 v{RGq(F,11)}, 0")
    a("s_barrier")
    for t in range(4): cen(t)
    t=V_T+2
    a(f"v_bfe_u32 v{t}, v0, 2, 3"); a(f"v_lshrrev_b32 v{t+1}, 5, v0"); a(f"v_lshl_add_u32 v{t}, v{t+1}, 3, v{t}"); a(f"v_mul_u32_u24 v{t}, {2*KVROW}, v{t}")
    a(f"v_and_b32 v{t+1}, 3, v0"); a(f"v_lshl_add_u32 v{t}, v{t+1}, 3, v{t}")
    a(f"s_lshl_b32 s{S_T0}, s{S_TG}, 7"); a(f"v_add_u32 v{t}, s{S_T0}, v{t}"); a(f"v_add_u32 v{t+1}, {32*KVROW}, v{t}")
    wv=lambda tb: [f"ds_write_b128 v{vw}, {vr(VF[tb][i],4)} offset:{(tb&1)*64*KVROW+80+16*i}" for i in range(3)]
    a(wv(0)); a(wv(1)); a(take(10))
    u=V_T+4
    a(f"v_and_b32 v{u}, 15, v0"); a(f"v_cmp_gt_u32 s[8:9], 5, v{u}"); a(f"v_lshrrev_b32 v{u+1}, 4, v0"); a(f"v_mul_u32_u24 v{u+1}, 21, v{u+1}"); a(f"v_add_u32 v{u}, v{u}, v{u+1}"); a(f"v_lshlrev_b32 v{u}, 4, v{u}")
    a(f"s_lshl_b32 s10, s{S_RT}, 5"); a(f"s_lshl_b32 s{S_T1}, s{S_CT}, 2"); a(f"s_add_u32 s10, s10, s{S_T1}"); a(f"s_add_u32 s10, s10, s{S_TG}")
    a(f"s_mul_i32 s10, s10, 3360"); a(f"s_add_u32 s10, s10, {WS_KVP}")
    a("s_barrier")
    for tb,buf in ((1,1),(3,0)):
        for b in range(5): a(f"ds_read_b128 {vr(ACC+4*(4*b+tb),4)}, v{vw} offset:{buf*64*KVROW+16*b}")
    a("s_waitcnt lgkmcnt(0)"); a("s_barrier")
    fq=[ACC+4*(4*b+tt) for b in range(5) for tt in (0,2)]
    Q=[112,116,120,124,128]; D=lin(Q)
    KA=fq[:6]
    softmax20(a, P(1), +1, T, D[:10], E_AB+2, take(10))
    softmax20(a, P(1), -1, T, D[10:], E_AB+2, wr(1,Q,0,2)+take(5))
    a(wr(1,Q,2,5)); a("s_waitcnt lgkmcnt(0)"); a("s_barrier")
    fr=[[112,116,120,124,128],[ACC+4,ACC+20,ACC+36,ACC+52,ACC+68]]
    def rnd(tb,h,f):
        o=(tb&1)*64*KVROW
        return [f"ds_read_b64_tr_b16 {vr(f[3+db]+2*r,2)}, v{t+h} offset:{o+r*KVROW+80+32*db}" for db in range(2) for r in range(2)]+[f"ds_read_b64_tr_b16 {vr(f[fb]+2*r,2)}, v{t+h} offset:{o+r*KVROW+32*fb}" for fb in range(3) for r in range(2)]
    def rmf(f, first): return [f"v_mfma_f32_16x16x32_bf16 {vr(KA[2*fb+db],4)}, {vr(f[fb],4)}, {vr(f[3+db],4)}, {0 if first else vr(KA[2*fb+db],4)}" for fb in range(3) for db in range(2)]
    def rounds(tbs, first):
        seq=[(tb,h) for tb in tbs for h in range(2)]
        a(rnd(*seq[0], fr[0]))
        for i in range(4):
            if i+1<4: a(rnd(*seq[i+1], fr[(i+1)&1])); a("s_waitcnt lgkmcnt(10)")
            else: a("s_waitcnt lgkmcnt(0)")
            a(rmf(fr[i&1], first and i==0))
    rounds((0,1), True)
    a("s_barrier")
    a(wv(2)); a(wv(3))
    softmax20(a, P(3), +1, T, D[:10], E_AB+6, take(5))
    softmax20(a, P(3), -1, T, D[10:], E_AB+6, ["s_waitcnt lgkmcnt(0)","s_barrier"]+wr(3,Q,0,2)+take(99))
    a(wr(3,Q,2,5))
    vb=[ACC+4,ACC+20,ACC+36,ACC+52,ACC+68,168,172,176]
    pa=[[T,T+4,T+8],[T+12,T+16,T+20],[ACC+12,ACC+28,ACC+44],[ACC+60,ACC+76,180]]
    seq=[(2,0),(2,1),(3,0),(3,1)]
    for i,(tb,h) in enumerate(seq):
        for db in range(2):
            for r in range(2): a(f"ds_read_b64_tr_b16 {vr(vb[2*i+db]+2*r,2)}, v{t+h} offset:{(tb&1)*64*KVROW+r*KVROW+80+32*db}")
    a("s_waitcnt lgkmcnt(0)"); a("s_barrier")
    for i,(tb,h) in enumerate(seq):
        for fb in range(3):
            for r in range(2): a(f"ds_read_b64_tr_b16 {vr(pa[i][fb]+2*r,2)}, v{t+h} offset:{(tb&1)*64*KVROW+r*KVROW+32*fb}")
    for i in range(4):
        a(f"s_waitcnt lgkmcnt({min(15,6*(3-i))})")
        for fb in range(3):
            for db in range(2): a(f"v_mfma_f32_16x16x32_bf16 {vr(KA[2*fb+db],4)}, {vr(pa[i][fb],4)}, {vr(vb[2*i+db],4)}, {vr(KA[2*fb+db],4)}")
    if st: st(24)
    for db in range(2):
        for fb in range(3):
            if db==1 and fb==0: a("s_mov_b64 exec, s[8:9]")
            if fb==2: a("s_mov_b32 exec_hi, 0")
            a(f"buffer_store_dwordx4 {vr(KA[2*fb+db],4)}, v{u}, s[{S_WS}:{S_WS+3}], s10 offen offset:{fb*4*21*16+db*256} sc1")
        a("s_mov_b64 exec, -1")
```

```python
from p1 import *
from p1e import *
S_DBG=4
S_OUT=16
S_B=12
S_CNT=81
SPIN_MAX=200000
SLEEP=[1]
KS0=[None]

def nonce_write(a):
    a(f"s_or_b32 s{S_T0}, s2, s{S_WAVE}"); a(f"s_cmp_eq_u32 s{S_T0}, 0"); a("s_cbranch_scc0 NONCE_SKIP")
    a(f"s_memrealtime s[{S_SAVE}:{S_SAVE+1}]"); a("s_waitcnt lgkmcnt(0)")
    a(f"s_lshl_b64 s[{S_SAVE}:{S_SAVE+1}], s[{S_SAVE}:{S_SAVE+1}], 4"); a(f"s_or_b32 s{S_SAVE}, s{S_SAVE}, 8")
    a(f"v_mov_b32 v{V_T}, s{S_SAVE}"); a(f"v_mov_b32 v{V_T+1}, s{S_SAVE+1}"); a(f"v_mov_b32 v{V_T+2}, 0")
    a("s_mov_b64 exec, 1")
    a(f"buffer_store_dwordx2 {vr(V_T,2)}, v{V_T+2}, s[{S_DBG}:{S_DBG+3}], 0 offen sc1")
    a("s_mov_b64 exec, -1")
    a.label("NONCE_SKIP")
def nonce_issue(R):
    return [f"v_mov_b32 v{R}, 0", f"buffer_load_dwordx2 {vr(R,2)}, v{R}, s[{S_DBG}:{S_DBG+3}], 0 offen sc1"]
def nonce_take(a, R, lab):
    a(f"v_readfirstlane_b32 s{S_TAG}, v{R}"); a(f"v_readfirstlane_b32 s{S_TAG+1}, v{R+1}")
    a(f"s_cmp_lg_u32 s{S_TAG}, 0"); a(f"s_cbranch_scc1 {lab}_OK")
    a(f"s_mov_b32 s{S_CNT}, 0")
    a.label(f"{lab}_SP")
    a("s_sleep 2"); a(nonce_issue(R)); a("s_waitcnt vmcnt(0)")
    a(f"v_readfirstlane_b32 s{S_TAG}, v{R}"); a(f"v_readfirstlane_b32 s{S_TAG+1}, v{R+1}")
    a(f"s_add_u32 s{S_CNT}, s{S_CNT}, 1"); a(f"s_cmp_ge_u32 s{S_CNT}, {SPIN_MAX}"); a(f"s_cbranch_scc1 {lab}_OK")
    a(f"s_cmp_eq_u32 s{S_TAG}, 0"); a(f"s_cbranch_scc1 {lab}_SP")
    a.label(f"{lab}_OK")
def publish(a, phase, T):
    a(f"s_add_u32 s{S_T0}, s{S_TAG}, {phase}"); a(f"v_mov_b32 v{T}, s{S_T0}"); a(f"v_mov_b32 v{T+1}, s{S_TAG+1}"); a(f"v_mov_b32 v{T+2}, 0")
    a(f"s_lshl_b32 s{S_T0}, s2, 7")
    a("s_mov_b64 exec, 1")
    a(f"buffer_store_dwordx2 {vr(T,2)}, v{T+2}, s[{S_WS}:{S_WS+3}], s{S_T0} offen sc1")
    a("s_mov_b64 exec, -1")
def pub_prep(a, phase, T):
    a(f"s_add_u32 s{S_T0}, s{S_TAG}, {phase}"); a(f"v_mov_b32 v{T}, s{S_T0}"); a(f"v_mov_b32 v{T+1}, s{S_TAG+1}"); a(f"s_lshl_b32 s{S_T0}, s2, 7"); a(f"v_mov_b32 v{T+2}, s{S_T0}")
def pub_fire(a, T, w, lab, more=None):
    a(f"s_cmp_eq_u32 s{S_WAVE}, {w}"); a("s_barrier"); a(f"s_cbranch_scc0 {lab}")
    a("s_mov_b64 exec, 1")
    a(f"buffer_store_dwordx2 {vr(T,2)}, v{T+2}, s[{S_WS}:{S_WS+3}], 0 offen sc1")
    a("s_mov_b64 exec, -1")
    if more: more()
    a.label(lab); a("s_barrier")
def poll_issue(VA, R):
    return [f"buffer_load_dwordx2 {vr(R,2)}, v{VA}, s[{S_WS}:{S_WS+3}], 0 offen sc1"]
def poll_test(a, R, T, need):
    if need=="sc":
        a(f"v_subrev_u32 v{T}, s{S_TAG}, v{R}"); a(f"v_lshrrev_b32 v{T+1}, 5, v0"); a(f"v_sub_u32 v{T}, v{T}, v{T+1}"); a(f"v_subrev_u32 v{T}, 1, v{T}"); need=1
    else:
        a(f"v_subrev_u32 v{T}, s{S_TAG}, v{R}"); a(f"v_subrev_u32 v{T}, {need}, v{T}")
    a(f"v_xor_b32 v{T+1}, s{S_TAG+1}, v{R+1}")
    a(f"v_cmp_ne_u32 s[{S_SAVE}:{S_SAVE+1}], 0, v{T+1}"); a(f"v_cmp_lt_u32 vcc, {4-need}, v{T}"); a(f"s_or_b64 vcc, vcc, s[{S_SAVE}:{S_SAVE+1}]")
def poll_wait(a, VA, R, T, need, lab, first_landed):
    if first_landed:
        poll_test(a, R, T, need); a(f"s_cbranch_vccz {lab}_OK")
    a(f"s_mov_b32 s{S_CNT}, 0")
    a.label(f"{lab}_SP")
    a(poll_issue(VA, R)); a("s_waitcnt vmcnt(0)")
    poll_test(a, R, T, need)
    a(f"s_add_u32 s{S_CNT}, s{S_CNT}, 1"); a(f"s_cmp_ge_u32 s{S_CNT}, {SPIN_MAX}"); a(f"s_cbranch_scc1 {lab}_OK")
    a(f"s_cbranch_vccz {lab}_OK"); a(f"s_sleep {SLEEP[0]}"); a(f"s_branch {lab}_SP")
    a.label(f"{lab}_OK")
def fa_stats(VA, T):
    return [f"s_and_b32 s{S_T0}, s{S_RT}, 3", f"s_lshl_b32 s{S_T0}, s{S_T0}, 1", f"s_lshr_b32 s{S_T1}, s{S_RT}, 2", f"s_add_u32 s{S_T0}, s{S_T0}, s{S_T1}",
            f"v_lshlrev_b32 v{VA}, 3, v0", f"v_add_u32 v{VA}, s{S_T0}, v{VA}", f"s_andn2_b32 s{S_T0}, s2, 25", f"v_and_b32 v{T}, 3, v0", f"v_lshlrev_b32 v{T}, 3, v{T}", f"v_bfe_u32 v{T+1}, v0, 2, 1", f"v_or3_b32 v{T}, s{S_T0}, v{T}, v{T+1}",
            f"v_cmp_gt_u32 vcc, 32, v0", f"v_cndmask_b32 v{VA}, v{T}, v{VA}, vcc", f"v_lshlrev_b32 v{VA}, 7, v{VA}"]
def fa_spare(VA, T):
    return [f"v_and_b32 v{VA}, 3, v0", f"v_bfe_u32 v{T}, v0, 2, 2", f"v_lshl_add_u32 v{VA}, v{T}, 3, v{VA}", f"v_add_u32 v{VA}, {28*8+4}, v{VA}", f"v_lshlrev_b32 v{VA}, 7, v{VA}"]
def fa_qkv(VA, T):
    return [f"s_lshr_b32 s{S_T0}, s2, 5", f"s_and_b32 s{S_T1}, s{S_T0}, 1", f"s_add_u32 s{S_T1}, s{S_T1}, 1", f"s_lshl_b32 s{S_T1}, s{S_T1}, 5", f"s_andn2_b32 s{S_T0}, s{S_T0}, 1", f"s_add_u32 s{S_T1}, s{S_T1}, s{S_T0}",
            f"v_and_b32 v{VA}, 3, v0", f"v_bfe_u32 v{T}, v0, 2, 1", f"v_lshl_add_u32 v{VA}, v{VA}, 3, v{T}", f"v_add_u32 v{VA}, s{S_T1}, v{VA}",
            f"s_and_b32 s{S_T1}, s2, 3", f"s_lshl_b32 s{S_T1}, s{S_T1}, 3", f"s_add_u32 s{S_T0}, s{S_T0}, s{S_T1}", f"s_bfe_u32 s{S_T1}, s2, 0x10002", f"s_add_u32 s{S_T0}, s{S_T0}, s{S_T1}",
            f"v_mov_b32 v{T}, s{S_T0}", f"v_and_b32 v{T+1}, 8, v0", f"v_cmp_eq_u32 vcc, 0, v{T+1}", f"v_cndmask_b32 v{VA}, v{T}, v{VA}, vcc", f"v_lshlrev_b32 v{VA}, 7, v{VA}"]
def fa_gemm2(VA, T):
    return [f"v_min_u32 v{T}, 2, v0", f"s_mul_i32 s{S_T0}, s{S_WAVE}, 3", f"v_add_u32 v{T}, s{S_T0}, v{T}",
            f"v_cmp_le_u32 vcc, 14, v{T}", f"v_addc_co_u32 v{T+1}, vcc, 0, v{T}, vcc",
            f"v_mul_u32_u24 v{VA}, 52, v{T+1}", f"v_lshrrev_b32 v{VA}, 8, v{VA}",
            f"v_mul_u32_u24 v{T}, 5, v{VA}", f"v_sub_u32 v{T}, v{T+1}, v{T}", f"v_add_u32 v{T}, 3, v{T}",
            f"v_lshlrev_b32 v{T}, 5, v{T}", f"v_lshl_add_u32 v{VA}, v{VA}, 1, v{T}",
            f"s_and_b32 s{S_T0}, s2, 3", f"s_lshl_b32 s{S_T0}, s{S_T0}, 3", f"s_bfe_u32 s{S_T1}, s2, 0x10002", f"s_add_u32 s{S_T0}, s{S_T0}, s{S_T1}", f"v_add_u32 v{VA}, s{S_T0}, v{VA}",
            f"v_and_b32 v{T}, 31, v0", f"v_lshlrev_b32 v{T}, 3, v{T}", f"s_and_b32 s{S_T0}, s2, 7", f"v_add_u32 v{T}, s{S_T0}, v{T}",
            f"s_cmp_ge_u32 s{S_WAVE}, 6", f"s_cselect_b64 vcc, -1, 0", f"v_cndmask_b32 v{VA}, v{VA}, v{T}, vcc", f"v_lshlrev_b32 v{VA}, 7, v{VA}"]

def relayout2(a, mid):
    t=V_T; VD=32; VR=40; VS=50; F=64
    SK=S_CT; SO=S_CTG
    a(f"s_and_b32 s{SK}, s2, 3"); a(f"s_lshl_b32 s{SK}, s{SK}, 2"); a(f"s_bfe_u32 s{S_T0}, s2, 0x20003"); a(f"s_add_u32 s{SK}, s{SK}, s{S_T0}")
    a(f"s_and_b32 s{S_T0}, s{S_WAVE}, 1"); a(f"s_lshl_b32 s{S_T0}, s{S_T0}, 2")
    for i in range(5):
        a(f"v_add_u32 v{t}, {64*i}, v0"); a(f"v_mul_u32_u24 v{t+1}, 205, v{t}"); a(f"v_lshrrev_b32 v{t+1}, 14, v{t+1}")
        a(f"v_mul_u32_u24 v{t+2}, 80, v{t+1}"); a(f"v_sub_u32 v{t}, v{t}, v{t+2}")
        a(f"v_add_u32 v{t+2}, s{S_T0}, v{t+1}"); a(f"v_lshlrev_b32 v{t+2}, 1, v{t+2}"); a(f"v_xor_b32 v{t}, v{t}, v{t+2}")
        a(f"v_mul_u32_u24 v{t+1}, 1280, v{t+1}"); a(f"v_lshl_add_u32 v{VD+i}, v{t}, 4, v{t+1}")
    a(f"s_mul_i32 s{S_M0W}, s{S_WAVE}, 5120")
    def dma(m, buf):
        lab=f"RL{m}"
        a(f"s_add_u32 s{S_T0}, s{SK}, {16*m}")
        a(f"s_bfe_u32 s{S_T1}, s{S_WAVE}, 0x10001"); a(f"s_and_b32 s{S_T2}, s{S_WAVE}, 1"); a(f"s_lshr_b32 s{S_T3}, s{S_WAVE}, 2")
        a(f"s_cmp_ge_u32 s{S_T0}, 54"); a(f"s_cbranch_scc1 {lab}_WO")
        srd(a, S_B, P(7), 1728*1280)
        a(f"s_mul_i32 s{S_ROW}, s{S_T0}, 86"); a(f"s_lshr_b32 s{S_ROW}, s{S_ROW}, 8"); a(f"s_mul_i32 s{S_ROW}, s{S_ROW}, 3"); a(f"s_sub_u32 s{S_ROW}, s{S_T0}, s{S_ROW}")
        a(f"s_cmp_eq_u32 s{S_ROW}, 1"); a(f"s_cselect_b32 s{S_ROW}, 4, 3"); a(f"s_lshl_b32 s{S_T1}, s{S_T1}, s{S_ROW}")
        a(f"s_cmp_eq_u32 s{S_ROW}, 4"); a(f"s_cselect_b32 s{S_ROW}, 3, 4"); a(f"s_lshl_b32 s{S_T3}, s{S_T3}, s{S_ROW}")
        a(f"s_lshl_b32 s{S_T2}, s{S_T2}, 2"); a(f"s_lshl_b32 s{SO}, s{S_T0}, 5")
        a(f"s_branch {lab}_GO")
        a.label(f"{lab}_WO")
        srd(a, S_B, P(3), 640*1280)
        a(f"s_sub_u32 s{S_T0}, s{S_T0}, 54"); a(f"s_mul_i32 s{S_ROW}, s{S_T0}, 52"); a(f"s_lshr_b32 s{S_ROW}, s{S_ROW}, 8")
        a(f"s_mul_i32 s{SO}, s{S_ROW}, 160"); a(f"s_mul_i32 s{S_ROW}, s{S_ROW}, 5"); a(f"s_sub_u32 s{S_T0}, s{S_T0}, s{S_ROW}")
        a(f"s_cmp_eq_u32 s{S_T0}, 4"); a(f"s_cbranch_scc1 {lab}_LO")
        a(f"s_mul_i32 s{S_T0}, s{S_T0}, 40"); a(f"s_add_u32 s{SO}, s{SO}, s{S_T0}")
        a(f"s_mul_i32 s{S_T1}, s{S_T1}, 20"); a(f"s_lshl_b32 s{S_T2}, s{S_T2}, 2"); a(f"s_lshl_b32 s{S_T3}, s{S_T3}, 3")
        a(f"s_branch {lab}_GO")
        a.label(f"{lab}_LO")
        a(f"s_add_u32 s{SO}, s{SO}, 16"); a(f"s_xor_b32 s{S_T3}, s{S_T3}, s{S_T2}"); a(f"s_mul_i32 s{S_T3}, s{S_T3}, 20")
        a(f"s_mul_i32 s{S_T1}, s{S_T1}, 80"); a(f"s_mul_i32 s{S_T2}, s{S_T2}, 40")
        a.label(f"{lab}_GO")
        a(f"s_add_u32 s{SO}, s{SO}, s{S_T1}"); a(f"s_add_u32 s{SO}, s{SO}, s{S_T2}"); a(f"s_add_u32 s{SO}, s{SO}, s{S_T3}"); a(f"s_mul_i32 s{SO}, s{SO}, 1280")
        for i in range(5):
            a(f"s_add_u32 m0, s{S_M0W}, {buf*40960+1024*i}"); a(f"buffer_load_dwordx4 v{VD+i}, s[{S_B}:{S_B+3}], s{SO} offen lds")
    for m in range(4): dma(m, m)
    a(f"s_mov_b32 s{S_ROW}, s{S_PHI}"); mid()
    a(f"v_lshrrev_b32 v{t}, 2, v0"); a(f"v_and_b32 v{t+1}, 7, v{t}"); a(f"v_mul_u32_u24 v{t}, 1280, v{t}"); a(f"v_and_b32 v{t+2}, 3, v0"); a(f"v_lshl_add_u32 v{t}, v{t+2}, 3, v{t}")
    for nb in range(5):
        a(f"s_mul_i32 s{S_T0}, s{S_WAVE}, 5"); a(f"s_add_u32 s{S_T0}, s{S_T0}, {nb}"); a(f"s_and_b32 s{S_T1}, s{S_T0}, 7"); a(f"s_lshr_b32 s{S_T0}, s{S_T0}, 3"); a(f"s_lshl_b32 s{S_T0}, s{S_T0}, 8")
        a(f"v_xor_b32 v{t+2}, s{S_T1}, v{t+1}"); a(f"v_lshl_add_u32 v{t+2}, v{t+2}, 5, v{t}"); a(f"v_add_u32 v{VR+nb}, s{S_T0}, v{t+2}"); a(f"v_add_u32 v{VR+5+nb}, 81920, v{VR+nb}")
    a(f"v_lshlrev_b32 v{VS}, 4, v0"); a(f"v_add_u32 v{VS+1}, 4096, v{VS}")
    a(f"s_mul_i32 s{S_WOFF}, s{S_WAVE}, 74"); a(f"s_add_u32 s{S_WOFF}, s{S_WOFF}, s{SK}"); a(f"s_mul_i32 s{S_WOFF}, s{S_WOFF}, 5120"); a(f"s_add_u32 s{S_WOFF}, s{S_WOFF}, {WS_WT}")
    def conv(m, buf, nwait):
        a(f"s_waitcnt vmcnt({nwait})"); a("s_barrier")
        f=F+20*(m%2)
        for nb in range(5):
            for rd in range(2): a(f"ds_read_b64_tr_b16 {vr(f+4*nb+2*rd,2)}, v{VR+nb+(5 if buf>=2 else 0)} offset:{(buf%2)*40960+rd*20480}")
        a("s_waitcnt lgkmcnt(0)")
        for nb in range(5): a(f"buffer_store_dwordx4 {vr(f+4*nb,4)}, v{VS+(nb==4)}, s[{S_WS}:{S_WS+3}], s{S_WOFF} offen offset:{1024*nb if nb<4 else 0} sc1")
        a(f"s_add_u32 s{S_WOFF}, s{S_WOFF}, {16*5120}")
    conv(0,0,18)
    conv(1,1,18)
    a(f"s_cmp_lt_u32 s{SK}, 10"); a("s_cbranch_scc0 RL_NO5")
    dma(4, 0)
    a.label("RL_NO5")
    conv(2,2,18)
    conv(3,3,18)
    a(f"s_cmp_lt_u32 s{SK}, 10"); a("s_cbranch_scc0 RL_DONE")
    conv(4,0,10)
    a.label("RL_DONE")

def relayout3(a, mid, early):
    t=V_T; VD=32; VR=40; VS=50; F=64
    SK=S_CT; SO=S_CTG
    a(f"s_and_b32 s{SK}, s2, 3"); a(f"s_lshl_b32 s{SK}, s{SK}, 2"); a(f"s_bfe_u32 s{S_T0}, s2, 0x20003"); a(f"s_add_u32 s{SK}, s{SK}, s{S_T0}")
    a(f"s_and_b32 s{S_T0}, s{S_WAVE}, 1"); a(f"s_lshl_b32 s{S_T0}, s{S_T0}, 2")
    for i in range(5):
        a(f"v_add_u32 v{t}, {64*i}, v0"); a(f"v_mul_u32_u24 v{t+1}, 205, v{t}"); a(f"v_lshrrev_b32 v{t+1}, 14, v{t+1}")
        a(f"v_mul_u32_u24 v{t+2}, 80, v{t+1}"); a(f"v_sub_u32 v{t}, v{t}, v{t+2}")
        a(f"v_add_u32 v{t+2}, s{S_T0}, v{t+1}"); a(f"v_lshlrev_b32 v{t+2}, 1, v{t+2}"); a(f"v_xor_b32 v{t}, v{t}, v{t+2}")
        a(f"v_mul_u32_u24 v{t+1}, 1280, v{t+1}"); a(f"v_lshl_add_u32 v{VD+i}, v{t}, 4, v{t+1}")
    a(f"s_mul_i32 s{S_M0W}, s{S_WAVE}, 5120")
    def ksof(m, d):
        if m<2:
            a(f"s_add_u32 s{d}, s{SK}, {16*m}"); a(f"s_lshr_b32 s{S_T1}, s{d}, 2"); a(f"s_and_b32 s{d}, s{d}, 3")
            a(KS0[0](S_T1, S_T2)); a(f"s_add_u32 s{d}, s{d}, s{S_T2}")
        else:
            a(f"s_add_u32 s{d}, s{SK}, {16*(m-2)}")
            a(f"s_andn2_b32 s{S_T1}, s{d}, 3"); a(f"s_add_u32 s{S_T1}, s{S_T1}, 4")
            a(f"s_cmp_ge_u32 s{d}, 18"); a(f"s_cselect_b32 s{S_T1}, 24, s{S_T1}"); a(f"s_cmp_ge_u32 s{d}, 20"); a(f"s_cselect_b32 s{S_T1}, 28, s{S_T1}"); a(f"s_cmp_ge_u32 s{d}, 21"); a(f"s_cselect_b32 s{S_T1}, 32, s{S_T1}")
            a(f"s_add_u32 s{d}, s{d}, s{S_T1}")
    def dma(m, buf):
        lab=f"RL{m}"
        ksof(m, S_T0)
        a(f"s_bfe_u32 s{S_T1}, s{S_WAVE}, 0x10001"); a(f"s_and_b32 s{S_T2}, s{S_WAVE}, 1"); a(f"s_lshr_b32 s{S_T3}, s{S_WAVE}, 2")
        a(f"s_cmp_ge_u32 s{S_T0}, 54"); a(f"s_cbranch_scc1 {lab}_WO")
        srd(a, S_B, P(7), 1728*1280)
        a(f"s_mul_i32 s{S_ROW}, s{S_T0}, 86"); a(f"s_lshr_b32 s{S_ROW}, s{S_ROW}, 8"); a(f"s_mul_i32 s{S_ROW}, s{S_ROW}, 3"); a(f"s_sub_u32 s{S_ROW}, s{S_T0}, s{S_ROW}")
        a(f"s_cmp_eq_u32 s{S_ROW}, 1"); a(f"s_cselect_b32 s{S_ROW}, 4, 3"); a(f"s_lshl_b32 s{S_T1}, s{S_T1}, s{S_ROW}")
        a(f"s_cmp_eq_u32 s{S_ROW}, 4"); a(f"s_cselect_b32 s{S_ROW}, 3, 4"); a(f"s_lshl_b32 s{S_T3}, s{S_T3}, s{S_ROW}")
        a(f"s_lshl_b32 s{S_T2}, s{S_T2}, 2"); a(f"s_lshl_b32 s{SO}, s{S_T0}, 5")
        a(f"s_branch {lab}_GO")
        a.label(f"{lab}_WO")
        srd(a, S_B, P(3), 640*1280)
        a(f"s_sub_u32 s{S_T0}, s{S_T0}, 54"); a(f"s_mul_i32 s{S_ROW}, s{S_T0}, 52"); a(f"s_lshr_b32 s{S_ROW}, s{S_ROW}, 8")
        a(f"s_mul_i32 s{SO}, s{S_ROW}, 160"); a(f"s_mul_i32 s{S_ROW}, s{S_ROW}, 5"); a(f"s_sub_u32 s{S_T0}, s{S_T0}, s{S_ROW}")
        a(f"s_cmp_eq_u32 s{S_T0}, 4"); a(f"s_cbranch_scc1 {lab}_LO")
        a(f"s_mul_i32 s{S_T0}, s{S_T0}, 40"); a(f"s_add_u32 s{SO}, s{SO}, s{S_T0}")
        a(f"s_mul_i32 s{S_T1}, s{S_T1}, 20"); a(f"s_lshl_b32 s{S_T2}, s{S_T2}, 2"); a(f"s_lshl_b32 s{S_T3}, s{S_T3}, 3")
        a(f"s_branch {lab}_GO")
        a.label(f"{lab}_LO")
        a(f"s_add_u32 s{SO}, s{SO}, 16"); a(f"s_xor_b32 s{S_T3}, s{S_T3}, s{S_T2}"); a(f"s_mul_i32 s{S_T3}, s{S_T3}, 20")
        a(f"s_mul_i32 s{S_T1}, s{S_T1}, 80"); a(f"s_mul_i32 s{S_T2}, s{S_T2}, 40")
        a.label(f"{lab}_GO")
        a(f"s_add_u32 s{SO}, s{SO}, s{S_T1}"); a(f"s_add_u32 s{SO}, s{SO}, s{S_T2}"); a(f"s_add_u32 s{SO}, s{SO}, s{S_T3}"); a(f"s_mul_i32 s{SO}, s{SO}, 1280")
        for i in range(5):
            a(f"s_add_u32 m0, s{S_M0W}, {buf*40960+1024*i}"); a(f"buffer_load_dwordx4 v{VD+i}, s[{S_B}:{S_B+3}], s{SO} offen lds")
    for m in range(4): dma(m, m)
    a(f"s_mov_b32 s{S_ROW}, s{S_PHI}"); nmid=mid()
    a(f"v_lshrrev_b32 v{t}, 2, v0"); a(f"v_and_b32 v{t+1}, 7, v{t}"); a(f"v_mul_u32_u24 v{t}, 1280, v{t}"); a(f"v_and_b32 v{t+2}, 3, v0"); a(f"v_lshl_add_u32 v{t}, v{t+2}, 3, v{t}")
    for nb in range(5):
        a(f"s_mul_i32 s{S_T0}, s{S_WAVE}, 5"); a(f"s_add_u32 s{S_T0}, s{S_T0}, {nb}"); a(f"s_and_b32 s{S_T1}, s{S_T0}, 7"); a(f"s_lshr_b32 s{S_T0}, s{S_T0}, 3"); a(f"s_lshl_b32 s{S_T0}, s{S_T0}, 8")
        a(f"v_xor_b32 v{t+2}, s{S_T1}, v{t+1}"); a(f"v_lshl_add_u32 v{t+2}, v{t+2}, 5, v{t}"); a(f"v_add_u32 v{VR+nb}, s{S_T0}, v{t+2}"); a(f"v_add_u32 v{VR+5+nb}, 81920, v{VR+nb}")
    a(f"v_lshlrev_b32 v{VS}, 4, v0"); a(f"v_add_u32 v{VS+1}, 4096, v{VS}")
    def conv(m, buf, nwait, after=None):
        ksof(m, S_WOFF); a(f"s_mul_i32 s{S_T1}, s{S_WAVE}, 74"); a(f"s_add_u32 s{S_WOFF}, s{S_WOFF}, s{S_T1}"); a(f"s_mul_i32 s{S_WOFF}, s{S_WOFF}, 5120"); a(f"s_add_u32 s{S_WOFF}, s{S_WOFF}, {WS_WT}")
        a(f"s_waitcnt vmcnt({nwait})"); a("s_barrier")
        if after: after()
        f=F+20*(m%2)
        for nb in range(5):
            for rd in range(2): a(f"ds_read_b64_tr_b16 {vr(f+4*nb+2*rd,2)}, v{VR+nb+(5 if buf>=2 else 0)} offset:{(buf%2)*40960+rd*20480}")
        a("s_waitcnt lgkmcnt(0)")
        for nb in range(5): a(f"buffer_store_dwordx4 {vr(f+4*nb,4)}, v{VS+(nb==4)}, s[{S_WS}:{S_WS+3}], s{S_WOFF} offen offset:{1024*nb if nb<4 else 0} sc1")
    conv(0,0,15+nmid)
    conv(1,1,15+nmid)
    def aft():
        early()
        a(f"s_cmp_lt_u32 s{SK}, 10"); a("s_cbranch_scc0 RL_NO5")
        dma(4, 0)
        a.label("RL_NO5")
    conv(2,2,0,aft)
    conv(3,3,63)
    a(f"s_cmp_lt_u32 s{SK}, 10"); a("s_cbranch_scc0 RL_DONE")
    conv(4,0,10)
    a.label("RL_DONE")

def o_issue(a, RP, RQ, flags="sc1"):
    t=V_T
    a(f"s_lshr_b32 s{S_T0}, s2, 3")
    a(f"s_mul_i32 s{S_T1}, s{S_T0}, 81920"); a(f"s_add_u32 s{S_T1}, s{S_T1}, {WS_PQ}")
    a(f"s_and_b32 s{S_T2}, s2, 7"); a(f"s_lshl_b32 s{S_T2}, s{S_T2}, 3"); a(f"s_add_u32 s{S_T2}, s{S_T2}, s{S_WAVE}"); a(f"s_lshl_b32 s{S_T2}, s{S_T2}, 8")
    a(f"s_add_u32 s{S_T3}, s{S_T1}, s{S_T2}"); a(f"s_add_u32 s{S_T3}, s{S_T3}, 65536")
    a(f"s_lshl_b32 s{S_T2}, s{S_T2}, 1"); a(f"s_add_u32 s{S_T1}, s{S_T1}, s{S_T2}"); a(f"s_add_u32 s{S_T2}, s{S_T1}, 32768")
    a(f"v_and_b32 v{t}, 31, v0"); a(f"v_lshlrev_b32 v{t+1}, 3, v{t}"); a(f"v_lshlrev_b32 v{t}, 4, v{t}")
    a(f"buffer_load_dwordx4 {vr(RQ,4)}, v{t}, s[{S_WS}:{S_WS+3}], s{S_T1} offen {flags}")
    a(f"buffer_load_dwordx4 {vr(RQ+4,4)}, v{t}, s[{S_WS}:{S_WS+3}], s{S_T2} offen {flags}")
    a(f"buffer_load_dwordx2 {vr(RQ+8,2)}, v{t+1}, s[{S_WS}:{S_WS+3}], s{S_T3} offen {flags}")
    a(f"v_and_b32 v{t}, 31, v0"); a(f"s_mul_i32 s{S_T1}, s{S_WAVE}, 28"); a(f"v_add_u32 v{t+2}, s{S_T1}, v{t}"); a(f"v_min_u32 v{t+2}, 209, v{t+2}")
    a(f"v_lshrrev_b32 v{t+1}, 5, v0"); a(f"v_mul_u32_u24 v{t+1}, {4*32*3360}, v{t+1}"); a(f"v_lshl_add_u32 v{t}, v{t+2}, 4, v{t+1}")
    a(f"s_mul_i32 s{S_T0}, s{S_T0}, 3360"); a(f"s_add_u32 s{S_T0}, s{S_T0}, {WS_KVP}")
    for r in range(4):
        a(f"buffer_load_dwordx4 {vr(RP+4*r,4)}, v{t}, s[{S_WS}:{S_WS+3}], s{S_T0} offen {flags}")
        if r<3: a(f"s_add_u32 s{S_T0}, s{S_T0}, {32*3360}")
def o_kvz(a, RP, LB):
    t=V_T
    for e in (0,2):
        a(pk("v_pk_add_f32", RP+e, [RP+e, RP+4+e], "pp")); a(pk("v_pk_add_f32", RP+8+e, [RP+8+e, RP+12+e], "pp"))
    for e in (0,2): a(pk("v_pk_add_f32", RP+e, [RP+e, RP+8+e], "pp"))
    for e in range(4): a(f"v_mov_b32 v{RP+4+e}, v{RP+e}")
    for e in range(4): a(f"v_permlane32_swap_b32 v{RP+e}, v{RP+4+e}")
    for e in (0,2): a(pk("v_pk_add_f32", RP+e, [RP+e, RP+4+e], "pp"))
    a(f"v_cvt_pk_bf16_f32 v{RP+4}, v{RP}, v{RP+1}"); a(f"v_cvt_pk_bf16_f32 v{RP+5}, v{RP+2}, v{RP+3}")
    a(f"v_mov_b32 v{RP+6}, 0"); a(f"v_mov_b32 v{RP+7}, 0")
    a(f"v_and_b32 v{t}, 31, v0"); a(f"s_mul_i32 s{S_T1}, s{S_WAVE}, 28"); a(f"v_add_u32 v{t}, s{S_T1}, v{t}"); a(f"v_min_u32 v{t}, 209, v{t}")
    a(f"v_mul_u32_u24 v{t+1}, 3121, v{t}"); a(f"v_lshrrev_b32 v{t+1}, 16, v{t+1}")
    a(f"v_mul_u32_u24 v{t+2}, 21, v{t+1}"); a(f"v_sub_u32 v{t+2}, v{t}, v{t+2}")
    a(f"v_cmp_le_u32 vcc, 5, v{t+1}"); a(f"v_cndmask_b32 v{t+3}, 0, 1, vcc")
    a(f"v_mul_u32_u24 v{t+4}, 5, v{t+3}"); a(f"v_sub_u32 v{t+1}, v{t+1}, v{t+4}")
    a(f"v_cmp_eq_u32 vcc, 20, v{t+2}"); a(f"v_cndmask_b32 v{t+4}, 0, 4, vcc"); a(f"v_lshrrev_b32 v{t+5}, 5, v0"); a(f"v_mad_u32_u24 v{t+2}, v{t+4}, v{t+5}, v{t+2}")
    a(f"v_lshl_add_u32 v{t+3}, v{t+3}, 5, v{t+2}"); a(f"v_lshlrev_b32 v{t+3}, 4, v{t+3}")
    a(f"v_lshrrev_b32 v{t+4}, 1, v{t+1}"); a(f"v_lshl_add_u32 v{t+3}, v{t+4}, 10, v{t+3}")
    a(f"v_and_b32 v{t+4}, 1, v{t+1}"); a(f"v_lshl_add_u32 v{t+3}, v{t+4}, 3, v{t+3}"); a(f"v_add_u32 v{t+3}, {LB}, v{t+3}")
    a(f"ds_write_b64 v{t+3}, {vr(RP+4,2)}")
    a(f"v_cmp_eq_u32 vcc, 4, v{t+1}"); a(f"s_mov_b64 exec, vcc")
    a(f"ds_write_b64 v{t+3}, {vr(RP+6,2)} offset:8")
    a("s_mov_b64 exec, -1")
def o_softmax(a, RQ, T, F):
    t=V_T
    a(f"v_lshrrev_b32 v{t}, 5, v0"); a(f"v_mul_u32_u24 v{t}, 0x8000, v{t}"); a(f"v_lshl_add_u32 v{t}, v{t}, 16, v{t}")
    for k in range(10): a(f"v_xor_b32 v{RQ+k}, v{RQ+k}, v{t}")
    for k in range(10): a(f"v_lshlrev_b32 v{T+2*k}, 16, v{RQ+k}"); a(f"v_and_b32 v{T+2*k+1}, 0xffff0000, v{RQ+k}")
    softmax20(a, [T+2*i for i in range(10)], +1, T+20, F)
    a(f"v_mov_b32 v{F+10}, 0"); a(f"v_mov_b32 v{F+11}, 0")
def o_finish(a, LB, AF, F, D, flags="sc1"):
    t=V_T
    a(f"v_lshlrev_b32 v{t}, 4, v0"); a(f"v_add_u32 v{t}, {LB}, v{t}")
    for s in range(3): a(f"ds_read_b128 {vr(AF+4*s,4)}, v{t} offset:{1024*s}")
    a(f"s_lshr_b32 s{S_T0}, s2, 3")
    a(f"s_and_b32 s{S_T1}, s2, 7"); a(f"s_lshl_b32 s{S_T1}, s{S_T1}, 3"); a(f"s_add_u32 s{S_T1}, s{S_T1}, s{S_WAVE}"); a(f"s_mul_i32 s{S_T1}, s{S_T1}, 40")
    a(f"s_lshr_b32 s{S_T2}, s{S_T0}, 3"); a(f"s_mul_i32 s{S_T2}, s{S_T2}, 5"); a(f"s_add_u32 s{S_T1}, s{S_T1}, s{S_T2}")
    a(f"s_lshl_b32 s{S_T1}, s{S_T1}, 10"); a(f"s_add_u32 s{S_T1}, s{S_T1}, {WS_O}")
    a(f"s_and_b32 s{S_T0}, s{S_T0}, 7")
    a(f"s_lshl_b32 s{S_T2}, s{S_T0}, 9"); a(f"s_add_u32 s{S_T2}, s{S_T2}, s{S_T1}")
    a(f"s_lshr_b32 s{S_T3}, s{S_T0}, 1"); a(f"s_xor_b32 s{S_T0}, s{S_T0}, s{S_T3}"); a(f"s_and_b32 s{S_T0}, s{S_T0}, 1"); a(f"s_lshl_b32 s{S_T0}, s{S_T0}, 3")
    a(f"s_lshl_b32 s{S_T3}, s{S_T3}, 8"); a(f"s_add_u32 s{S_T0}, s{S_T0}, s{S_T3}"); a(f"s_add_u32 s{S_T0}, s{S_T0}, s{S_T1}"); a(f"s_add_u32 s{S_T0}, s{S_T0}, 4096")
    a(f"v_bfe_u32 v{t}, v0, 4, 1"); a(f"v_mul_u32_u24 v{t}, 20480, v{t}"); a(f"v_and_b32 v{t+1}, 15, v0"); a(f"v_lshl_add_u32 v{t}, v{t+1}, 4, v{t}")
    a(f"v_lshrrev_b32 v{t+1}, 5, v0"); a(f"v_lshl_add_u32 v{t+1}, v{t+1}, 8, v{t}")
    a(f"v_cmp_gt_u32 vcc, 32, v0")
    a("s_waitcnt lgkmcnt(0)")
    for s in range(3): a(f"v_mfma_f32_32x32x16_bf16 {vr(D,16)}, {vr(AF+4*s,4)}, {vr(F+4*s,4)}, {vr(D,16) if s else 0}")
    a(f"v_cndmask_b32 v{D+14}, v{D+8}, v{D+12}, vcc"); a(f"v_add_f32 v{D+14}, 0x358637bd, v{D+14}"); a(f"v_rcp_f32 v{D+14}, v{D+14}")
    for i in range(0,12,2): a(pk("v_pk_mul_f32", D+i, [D+i, D+14], "pl"))
    for k in range(6): a(f"v_cvt_pk_bf16_f32 v{AF+k}, v{D+2*k}, v{D+2*k+1}")
    a(f"buffer_store_dwordx4 {vr(AF,4)}, v{t+1}, s[{S_WS}:{S_WS+3}], s{S_T2} offen {flags}")
    a("s_mov_b32 exec_hi, 0")
    a(f"buffer_store_dwordx2 {vr(AF+4,2)}, v{t}, s[{S_WS}:{S_WS+3}], s{S_T0} offen {flags}")
    a("s_mov_b64 exec, -1")

S_BO=39; S_AO=40; S_LB=41; S_ROT=44; S_NS=49; S_IX=50
G_A=1
G_B=5
G_L=7
G_X=8
G_F=11
def g2_addr_b(a, rot=1):
    a(f"v_lshlrev_b32 v{G_B}, 4, v0"); a(f"v_add_u32 v{G_B+1}, 4096, v{G_B}")
    a(f"s_mul_i32 s{S_LB}, s{S_WAVE}, 20480"); a(f"v_add_u32 v{G_L}, s{S_LB}, v{G_B}")
    a(f"s_mul_i32 s{S_T0}, s{S_WAVE}, 9"); a(f"s_cmp_eq_u32 s{S_WAVE}, 7"); a(f"s_cselect_b32 s{S_T0}, 64, s{S_T0}")
    a(f"s_bfe_u32 s{S_T1}, s2, 0x30003"); a(f"s_mul_i32 s{S_T1}, s{S_T1}, 74"); a(f"s_add_u32 s{S_BO}, s{S_T0}, s{S_T1}"); a(f"s_mul_i32 s{S_BO}, s{S_BO}, 5120"); a(f"s_add_u32 s{S_BO}, s{S_BO}, {WS_WT}")
    a(f"s_bfe_u32 s{S_ROT}, s2, 0x30003"); a(f"s_lshr_b32 s{S_T0}, s2, 6"); a(f"s_lshl_b32 s{S_T0}, s{S_T0}, 1"); a(f"s_add_u32 s{S_ROT}, s{S_ROT}, s{S_T0}")
    a(f"s_cmp_ge_u32 s{S_ROT}, 9"); a(f"s_cselect_b32 s{S_T0}, 9, 0"); a(f"s_sub_u32 s{S_ROT}, s{S_ROT}, s{S_T0}")
    if not rot: a(f"s_mov_b32 s{S_ROT}, 0")
    a(f"s_cmp_ge_u32 s{S_WAVE}, 6"); a(f"s_cselect_b32 s{S_NS}, 10, 9")
def ix(s, dst, base, mul):
    return [f"s_add_u32 s{S_IX}, s{S_ROT}, {s}", f"s_sub_u32 s{dst}, s{S_IX}, s{S_NS}", f"s_min_u32 s{S_IX}, s{S_IX}, s{dst}", f"s_mul_i32 s{S_IX}, s{S_IX}, {mul}", f"s_add_u32 s{dst}, s{base}, s{S_IX}"]
def g2_addr_a(a):
    a(f"s_and_b32 s{S_T0}, s2, 7"); a(f"s_lshl_b32 s{S_T0}, s{S_T0}, 4"); a(f"s_lshr_b32 s{S_T1}, s2, 6"); a(f"s_lshl_b32 s{S_T1}, s{S_T1}, 2"); a(f"s_add_u32 s{S_T0}, s{S_T0}, s{S_T1}")
    a(f"s_mul_i32 s{S_T1}, s{S_WAVE}, 9"); a(f"s_mul_i32 s{S_T2}, s{S_WAVE}, 10"); a(f"s_sub_u32 s{S_T2}, s{S_T2}, 60")
    a(f"s_cmp_ge_u32 s{S_WAVE}, 6"); a(f"s_cselect_b32 s{S_T1}, s{S_T2}, s{S_T1}"); a(f"s_cselect_b32 s{S_T2}, 20, 54"); a(f"s_mov_b32 s{S_T3}, {WS_H}"); a(f"s_cselect_b32 s{S_T3}, {WS_O}, s{S_T3}")
    a(f"s_mul_i32 s{S_AO}, s{S_T0}, s{S_T2}"); a(f"s_add_u32 s{S_AO}, s{S_AO}, s{S_T1}"); a(f"s_lshl_b32 s{S_AO}, s{S_AO}, 10"); a(f"s_add_u32 s{S_AO}, s{S_AO}, s{S_T3}")
    a(f"s_lshl_b32 s{S_T2}, s{S_T2}, 10"); a(f"v_lshlrev_b32 v{G_A}, 4, v0")
    for i in range(1,4): a(f"v_add_u32 v{G_A+i}, s{S_T2}, v{G_A+i-1}")
def g2_bdma(s, slot):
    L=[]
    for nb in range(5):
        it=[f"s_add_u32 m0, s{S_LB}, {slot*5120+(4096 if nb==4 else 0)}"]
        if nb==0: it=ix(s, S_T3, S_BO, 5120)+it
        it.append(f"buffer_load_dwordx4 v{G_B+(nb==4)}, s[{S_WS}:{S_WS+3}], s{S_T3} offen offset:{1024*nb if nb<4 else 0} sc1 lds")
        L.append(it)
    return L
def g2_bload(s, R):
    L=[]
    for nb in range(5):
        it=[]
        if nb==0: it+=ix(s, S_T3, S_BO, 5120)
        it.append(f"buffer_load_dwordx4 {vr(R+4*nb,4)}, v{G_B+(nb==4)}, s[{S_WS}:{S_WS+3}], s{S_T3} offen offset:{1024*nb if nb<4 else 0} sc1")
        L.append(it)
    return L
def g2_aload(s, R):
    L=[]
    for t in range(4):
        it=[]
        if t==0: it+=ix(s, S_T2, S_AO, 1024)
        it.append(f"buffer_load_dwordx4 {vr(R+4*t,4)}, v{G_A+t}, s[{S_WS}:{S_WS+3}], s{S_T2} offen sc1")
        L.append(it)
    return L
def g2_lread(slot, R):
    return [f"ds_read_b128 {vr(R+4*nb,4)}, v{G_L} offset:{slot*5120+nb*1024}" for nb in range(5)]
def g2_mfma(Wf, Af, first):
    return [f"v_mfma_f32_16x16x32_bf16 {vr(ACC+4*(4*nb+t),4)}, {vr(Wf+4*nb,4)}, {vr(Af+4*t,4)}, {0 if first else vr(ACC+4*(4*nb+t),4)}" for t in range(4) for nb in range(5)]
def g2_x_issue(a, R):
    t=V_T
    a(f"s_and_b32 s{S_T0}, s2, 7"); a(f"s_lshl_b32 s{S_T0}, s{S_T0}, 8"); a(f"s_lshr_b32 s{S_T1}, s2, 6"); a(f"s_lshl_b32 s{S_T1}, s{S_T1}, 6"); a(f"s_add_u32 s{S_T0}, s{S_T0}, s{S_T1}")
    a(f"s_lshl_b32 s{S_T1}, s{S_WAVE}, 3"); a(f"s_add_u32 s{S_T0}, s{S_T0}, s{S_T1}"); a(f"s_mul_i32 s{S_T0}, s{S_T0}, 1280")
    a(f"s_bfe_u32 s{S_T1}, s2, 0x30003"); a(f"s_mul_i32 s{S_T1}, s{S_T1}, 160"); a(f"s_add_u32 s{S_T0}, s{S_T0}, s{S_T1}")
    for r in range(3):
        a(f"v_add_u32 v{t}, {64*r}, v0"); a(f"v_mul_u32_u24 v{t+1}, 205, v{t}"); a(f"v_lshrrev_b32 v{t+1}, 12, v{t+1}")
        a(f"v_mul_u32_u24 v{t+2}, {1280-160}, v{t+1}"); a(f"v_lshl_add_u32 v{t+2}, v{t}, 3, v{t+2}"); a(f"v_add_u32 v{G_X+r}, s{S_T0}, v{t+2}")
        if r==2:
            a(f"v_cmp_gt_u32 vcc, 32, v0"); a(f"v_mov_b32 v{t}, 0x7ffffff0"); a(f"v_cndmask_b32 v{G_X+r}, v{t}, v{G_X+r}, vcc")
        a(f"buffer_load_dwordx2 {vr(R+2*r,2)}, v{G_X+r}, s[{S_XALL}:{S_XALL+3}], 0 offen")
def g2_reduce_final(a, RX):
    t=V_T
    a(f"v_and_b32 v{t}, 15, v0"); a(f"v_mul_u32_u24 v{t}, 320, v{t}"); a(f"v_lshrrev_b32 v{t+1}, 4, v0"); a(f"v_lshrrev_b32 v{t+2}, 1, v0"); a(f"v_xor_b32 v{t+1}, v{t+1}, v{t+2}")
    a(f"v_and_b32 v{t+1}, 3, v{t+1}"); a(f"v_lshl_add_u32 v{t}, v{t+1}, 4, v{t}"); a(f"v_add_u32 v{t}, s{S_LB}, v{t}")
    for nb in range(5):
        for tb in range(4): a(f"ds_write_b128 v{t}, {vr(ACC+4*(4*nb+tb),4)} offset:{tb*5120+nb*64}")
    RA=t+1
    for r in range(3):
        a(f"v_add_u32 v{t+4}, {64*r}, v0"); a(f"v_mul_u32_u24 v{t+5}, 205, v{t+4}"); a(f"v_lshrrev_b32 v{t+5}, 13, v{t+5}")
        a(f"v_and_b32 v{t+5}, 3, v{t+5}"); a(f"v_xor_b32 v{t+4}, v{t+4}, v{t+5}")
        a(f"v_lshlrev_b32 v{RA+r}, 4, v{t+4}")
    a(f"s_mul_i32 s{S_T0}, s{S_WAVE}, 2560")
    for r in range(3): a(f"v_add_u32 v{RA+r}, s{S_T0}, v{RA+r}")
    V2=t+4
    for r in range(3): a(f"v_add_u32 v{V2+r}, 81920, v{RA+r}")
    a(f"v_cmp_gt_u32 vcc, 32, v0"); a(f"v_cndmask_b32 v{V2+2}, 0, v{V2+2}, vcc")
    a("s_waitcnt lgkmcnt(0)"); a("s_barrier")
    B=128
    for r in range(3):
        for w in range(8): a(f"ds_read_b128 {vr(B+32*r+4*w,4)}, v{(RA if w<4 else V2)+r} offset:{(w%4)*20480}")
    a(f"s_mov_b32 s{S_L2E}, {LOG2E|0x80000000}")
    for r in range(3):
        a(f"s_waitcnt lgkmcnt({min(15,8*(2-r))})" + (" vmcnt(0)" if r==0 else ""))
        b=B+32*r
        for w in (1,2):
            for e in (0,2): a(pk("v_pk_add_f32", b+e, [b+e, b+4*w+e], "pp")); a(pk("v_pk_add_f32", b+12+e, [b+12+e, b+12+4*w+e], "pp"))
        for e in (0,2): a(pk("v_pk_add_f32", b+e, [b+e, b+12+e], "pp")); a(pk("v_pk_add_f32", b+24+e, [b+24+e, b+28+e], "pp"))
        for e in range(4): a(f"v_mul_f32 v{b+4+e}, s{S_L2E}, v{b+e}")
        for e in range(4): a(f"v_exp_f32 v{b+4+e}, v{b+4+e}")
        for e in (0,2): a(pk("v_pk_mul_f32", b+e, [b+e, b+24+e], "pp"))
        for e in range(4): a(f"v_add_f32 v{b+4+e}, 1.0, v{b+4+e}")
        for e in range(4): a(f"v_rcp_f32 v{b+4+e}, v{b+4+e}")
        for e in range(2): a(f"v_lshlrev_b32 v{b+8+2*e}, 16, v{RX+2*r+e}"); a(f"v_and_b32 v{b+9+2*e}, 0xffff0000, v{RX+2*r+e}")
        for e in (0,2): a(pk("v_pk_fma_f32", b+8+e, [b+e, b+4+e, b+8+e], "ppp"))
        a(f"v_cvt_pk_bf16_f32 v{b}, v{b+8}, v{b+9}"); a(f"v_cvt_pk_bf16_f32 v{b+1}, v{b+10}, v{b+11}")
        a(f"buffer_store_dwordx2 {vr(b,2)}, v{G_X+r}, s[{S_OUT}:{S_OUT+3}], 0 offen")
```
